```python
import torch

def _softmax(x, axis=-1):
    return torch.softmax(x, dim=axis)

def _gelu(x):
    return torch.nn.functional.gelu(x, approximate='tanh')

def _silu(x):
    return torch.nn.functional.silu(x)

def _sigmoid(x):
    return torch.sigmoid(x)

def _layernorm(x, axis=-1, eps=1e-05):
    m = x.mean(dim=axis, keepdim=True)
    v = x.var(dim=axis, keepdim=True, unbiased=False)
    return (x - m) / torch.sqrt(v + eps)

def _scatter_add(tgt, idx, src, axis=0):
    return tgt.clone().index_add_(axis, idx, src)

def _segment_sum(src, seg, n):
    out = torch.zeros((n,) + src.shape[1:], dtype=src.dtype)
    return out.index_add_(0, seg, src)

def _pad(x, pw):
    flat = tuple((v for pair in reversed(pw) for v in pair))
    return torch.nn.functional.pad(x, flat)
kernel_name = 'interleave_layers__memory_aug_recurrent_mem_tr__spectral_gfnet__prompt'

def setup_inputs():

    _w = lambda a: (lambda t: t.to(torch.bfloat16) if t.is_floating_point() else t)(torch.as_tensor(a))

    def _A_setup():
        B, S, Dm = (1, 2048, 448)
        H, Dh = (16, 256)
        M, seg = (8, 32)
        seg = min(seg, S)
        S = S // seg * seg
        return {'x': _w((lambda *s: torch.randn(*s, dtype=torch.bfloat16) * 0.05)(B, S, Dm)), 'mem0': _w((lambda *s: torch.randn(*s, dtype=torch.bfloat16) * 0.2)(B, M, Dm)), 'Wq': _w((lambda *s: torch.randn(*s, dtype=torch.bfloat16) * 1.6)(Dm, H, Dh) * Dm ** (-0.5)), 'Wk': _w((lambda *s: torch.randn(*s, dtype=torch.bfloat16) * 1.6)(Dm, H, Dh) * Dm ** (-0.5)), 'Wv': _w((lambda *s: torch.randn(*s, dtype=torch.bfloat16) * 0.2)(Dm, H, Dh) * Dm ** (-0.5)), 'Wo': _w((lambda *s: torch.randn(*s, dtype=torch.bfloat16) * 0.2)(H, Dh, Dm) * (H * Dh) ** (-0.5)), 'seg_len': seg}
    _A_in = _A_setup()

    def _B_setup():
        B, S, D = (1, 2048, 448)
        Df = D // 2 + 1
        return {'x': _w((lambda *s: torch.randn(*s, dtype=torch.bfloat16) * 0.05)(B, S, D)), 'w_r': _w((lambda *s: torch.randn(*s, dtype=torch.bfloat16) * 0.4)(S, Df) * 0.02), 'w_i': _w((lambda *s: torch.randn(*s, dtype=torch.bfloat16) * 0.4)(S, Df) * 0.02)}
    _B_in = _B_setup()
    return {'A_x': _A_in['x'], 'A_mem0': _A_in['mem0'], 'A_Wq': _A_in['Wq'], 'A_Wk': _A_in['Wk'], 'A_Wv': _A_in['Wv'], 'A_Wo': _A_in['Wo'], 'A_seg_len': _A_in['seg_len'], 'B_x': _B_in['x'], 'B_w_r': _B_in['w_r'], 'B_w_i': _B_in['w_i']}

def reference(A_x, A_mem0, A_Wq, A_Wk, A_Wv, A_Wo, A_seg_len, B_x, B_w_r, B_w_i):

    def _A_ref(x, mem0, Wq, Wk, Wv, Wo, seg_len):
        B, S, Dm = x.shape
        H, Dh = (Wq.shape[1], Wq.shape[2])
        M = mem0.shape[1]
        scale = Dh ** (-0.5)
        n_seg = S // seg_len
        L = M + seg_len
        idx = torch.arange(L)
        mask = (idx[:, None] < M) | (idx[:, None] >= idx[None, :])
        mem = mem0
        outs = []
        for s in range(n_seg):
            xs = x[:, s * seg_len:(s + 1) * seg_len, :].clone()
            h = torch.concatenate([mem, xs], axis=1)
            q = torch.einsum('btd,dhe->bhte', h, Wq)
            k = torch.einsum('btd,dhe->bhte', h, Wk)
            v = torch.einsum('btd,dhe->bhte', h, Wv)
            scores = torch.einsum('bhqe,bhke->bhqk', q, k) * scale
            scores = torch.where(mask[None, None], scores, -1000000000.0)
            p = _softmax(scores, axis=-1)
            o = torch.einsum('bhqk,bhke->bhqe', p, v)
            o = torch.einsum('bhte,hed->btd', o, Wo)
            mem = o[:, :M, :].clone()
            outs.append(o[:, M:, :])
        return torch.concatenate(outs, axis=1)

    def _B_ref(x, w_r, w_i):
        B, S, D = x.shape
        X = (lambda x, axes=(-2, -1): torch.fft.rfft2(x.float(), dim=axes))(x, axes=(-2, -1))
        W = w_r + 1j * w_i
        X = X * W
        y = (lambda x, s, axes=(-2, -1): torch.fft.irfft2(x, s=s, dim=axes).to(torch.bfloat16))(X, (S, D), axes=(-2, -1))
        return y
    x = A_x
    x = x + _A_ref(_layernorm(x, axis=-1), A_mem0, A_Wq, A_Wk, A_Wv, A_Wo, A_seg_len)
    x = x + _B_ref(_layernorm(x, axis=-1), B_w_r, B_w_i)
    x = x + _A_ref(_layernorm(x, axis=-1), A_mem0, A_Wq, A_Wk, A_Wv, A_Wo, A_seg_len)
    x = x + _B_ref(_layernorm(x, axis=-1), B_w_r, B_w_i)
    return x
```

```python
import re

def v(i, n=1):
    return f"v{i}" if n == 1 else f"v[{i}:{i+n-1}]"
def a(i, n=1):
    return f"a{i}" if n == 1 else f"a[{i}:{i+n-1}]"
def s(i, n=1):
    return f"s{i}" if n == 1 else f"s[{i}:{i+n-1}]"
def u(i, n=1):
    if i < 256:
        assert i + n <= 256, (i, n)
        return v(i, n)
    return a(i - 256, n)

TRANS = ("v_exp_f32", "v_log_f32", "v_rcp_f32", "v_rsq_f32", "v_sqrt_f32", "v_sin_f32", "v_cos_f32",
         "v_rcp_iflag_f32")
_reg_re = re.compile(r"^(-|\|)?([vas])(?:(\d+)|\[(\d+):(\d+)\])\|?$")

def parse_reg(tok):
    tok = tok.strip()
    if tok.startswith("-"):
        tok = tok[1:]
    tok = tok.strip("|")
    if tok == "vcc": return [("s", "vcc_lo"), ("s", "vcc_hi")]
    if tok in ("vcc_lo", "vcc_hi"): return [("s", tok)]
    if tok == "exec": return [("s", "exec_lo"), ("s", "exec_hi")]
    if tok in ("exec_lo", "exec_hi", "m0", "scc"): return [("s", tok)]
    m = re.match(r"^([vas])(\d+)$", tok)
    if m: return [(m.group(1), int(m.group(2)))]
    m = re.match(r"^([vas])\[(\d+):(\d+)\]$", tok)
    if m: return [(m.group(1), i) for i in range(int(m.group(2)), int(m.group(3)) + 1)]
    return []

class Ins:
    __slots__ = ("text", "op", "ops", "mods", "kind", "defs", "uses", "passes", "srcc", "srcab",
                 "label", "target", "nop", "dpp", "wide_store", "sdata")
    def __init__(self, text):
        self.text = text
        self.label = None; self.target = None; self.nop = 0
        self.defs = set(); self.uses = set(); self.passes = 0
        self.srcc = []; self.srcab = set(); self.dpp = False; self.wide_store = False; self.sdata = set()
        t = text.split(";")[0].strip()
        self.op = None; self.kind = None; self.ops = []; self.mods = ""
        if not t: return
        if t.endswith(":"):
            self.label = t[:-1]; return
        if t.startswith("."):
            return
        parts = t.split(None, 1)
        op = parts[0]; self.op = op
        rest = parts[1] if len(parts) > 1 else ""
        ops = []; cur = ""; depth = 0
        for ch in rest:
            if ch in "[(": depth += 1
            if ch in "])": depth -= 1
            if ch == "," and depth == 0:
                ops.append(cur.strip()); cur = ""
            else:
                cur += ch
        if cur.strip(): ops.append(cur.strip())
        mods = ""
        if ops:
            last = ops[-1].split(None, 1)
            ops[-1] = last[0]
            if len(last) > 1: mods = last[1]
        self.ops = ops; self.mods = mods
        self.classify()

    def classify(self):
        op, ops, mods = self.op, self.ops, self.mods
        R = [parse_reg(o) for o in ops]
        flat = lambda L: set(x for l in L for x in l)
        if op.startswith("v_mfma") or op.startswith("v_smfmac"):
            self.kind = "mfma"
            if "32x32" in op: self.passes = 8
            elif "16x16" in op: self.passes = 4
            elif "4x4x4" in op: self.passes = 2
            else: raise ValueError(op)
            if op.endswith("_f32") and "bf16" not in op and "f16" not in op:
                raise ValueError("SGEMM mfma not modelled: " + op)
            self.defs = set(R[0])
            if op.startswith("v_smfmac"):
                self.srcc = list(R[0]); self.srcab = flat(R[1:4])
            else:
                self.srcc = list(R[3]); self.srcab = flat(R[1:3])
            self.uses = set(self.srcc) | self.srcab
        elif op.startswith("v_"):
            self.kind = "valu"
            self.dpp = ("quad_perm" in mods or "row_" in mods or "wave_" in mods or "dpp" in op)
            if op.startswith("v_permlane") and "swap" in op:
                self.defs = flat(R[0:2]); self.uses = flat(R[0:2])
            elif op.startswith("v_cmp"):
                self.defs = set(R[0]); self.uses = flat(R[1:])
            elif op.startswith(("v_add_co", "v_sub_co", "v_addc_co", "v_subb_co", "v_subrev_co")):
                self.defs = flat(R[0:2]); self.uses = flat(R[2:])
            elif op.startswith("v_nop"):
                pass
            else:
                self.defs = set(R[0]); self.uses = flat(R[1:])
                if op.startswith(("v_fmac", "v_mac", "v_dot2c", "v_writelane", "v_pk_fmac")) or "_sdwa" in op or \
                   "op_sel" in mods or op in ("v_cvt_pk_bf16_f32_hi",):
                    self.uses |= set(R[0])
                if self.dpp: self.uses |= set(R[0])
                if op.startswith("v_cndmask") and len(ops) == 3:
                    self.uses |= {("s", "vcc_lo"), ("s", "vcc_hi")}
            self.uses |= {("s", "exec_lo"), ("s", "exec_hi")}
        elif op.startswith(("buffer_", "global_", "flat_")):
            self.kind = "vmem"
            is_store = "store" in op
            is_atomic = "atomic" in op
            lds = re.search(r"\blds\b", mods) is not None or "load_lds" in op
            if op.startswith("buffer_"):
                if lds and not is_store:
                    self.uses = flat(R); self.uses.add(("s", "m0"))
                elif is_store:
                    self.sdata = set(R[0]); self.uses = flat(R)
                elif is_atomic:
                    self.sdata = set(R[0]); self.uses = flat(R)
                    if "sc0" in mods.split(): self.defs = set(R[0][:max(1, len(R[0]) // (2 if "cmpswap" in op else 1))])
                else:
                    self.defs = set(R[0]); self.uses = flat(R[1:])
            else:
                if lds:
                    self.uses = flat(R); self.uses.add(("s", "m0"))
                elif is_store:
                    self.sdata = set(R[1]); self.uses = flat(R)
                elif is_atomic:
                    if "sc0" in mods.split():
                        self.defs = set(R[0]); self.uses = flat(R[1:]); self.sdata = set(R[2])
                    else:
                        self.uses = flat(R); self.sdata = set(R[1])
                else:
                    self.defs = set(R[0]); self.uses = flat(R[1:])
            if is_store and (op.endswith("x4") or op.endswith("x3")): self.wide_store = True
            if is_atomic and "cmpswap_x2" in op: self.wide_store = True
        elif op.startswith("ds_"):
            self.kind = "ds"
            if op.startswith(("ds_read", "ds_bpermute", "ds_permute", "ds_swizzle")):
                self.defs = set(R[0]); self.uses = flat(R[1:])
            elif "_rtn" in op:
                self.defs = set(R[0]); self.uses = flat(R[1:])
            else:
                self.uses = flat(R)
        elif op.startswith("s_"):
            if op.startswith(("s_load", "s_buffer_load", "s_memtime", "s_memrealtime")):
                self.kind = "smem"; self.defs = set(R[0]); self.uses = flat(R[1:])
            elif op == "s_nop":
                self.kind = "nop"; self.nop = int(ops[0], 0) + 1
            elif op.startswith(("s_cbranch", "s_branch")):
                self.kind = "branch"; self.target = ops[0]
            elif op in ("s_endpgm",):
                self.kind = "end"
            elif op.startswith(("s_waitcnt", "s_barrier", "s_setprio", "s_sleep", "s_sethalt")):
                self.kind = "sctl"
            elif op.startswith("s_cmp") or op.startswith("s_bitcmp"):
                self.kind = "salu"; self.uses = flat(R)
            else:
                self.kind = "salu"; self.defs = set(R[0]) if R else set(); self.uses = flat(R[1:])
                if "saveexec" in op: self.defs |= {("s", "exec_lo"), ("s", "exec_hi")}
        else:
            raise ValueError("unknown instruction: " + self.text)

    def states(self):
        if self.kind == "nop": return self.nop
        if self.op is None: return 0
        if self.kind == "mfma" and self.passes >= 4: return 2
        return 1

def vregs(S):
    return {r for r in S if r[0] in "va"}
def sregs(S):
    return {r for r in S if r[0] == "s"}

def need(p, c):
    w = 0
    if p.kind == "valu":
        pv = vregs(p.defs); ps = sregs(p.defs)
        if c.kind == "mfma" and pv & vregs(c.uses): w = max(w, 2)
        if c.kind == "valu":
            if pv & vregs(c.uses):
                if c.dpp: w = max(w, 2)
                if c.op.startswith("v_permlane"): w = max(w, 2)
                if c.op.startswith(("v_readlane", "v_readfirstlane")): w = max(w, 1)
                if p.op.startswith(TRANS) and not c.op.startswith(TRANS): w = max(w, 1)
                if p.op.startswith(TRANS): w = max(w, 1)
                if "op_sel" in p.mods or "dst_sel" in p.mods or "_sdwa" in p.op: w = max(w, 1)
                if p.op.startswith("v_dot"):
                    same_c = (c.op == p.op and not (pv & flat_ab(c)))
                    if not same_c: w = max(w, 3)
            if p.op.startswith("v_dot") and (pv & vregs(c.defs)) and c.op != p.op: w = max(w, 3)
            cs = sregs(c.uses) - {("s", "exec_lo"), ("s", "exec_hi")}
            if ps & cs:
                if c.op.startswith(("v_readlane", "v_writelane")): w = max(w, 4)
                else: w = max(w, 2)
            if ps & {("s", "exec_lo"), ("s", "exec_hi")}:
                if c.dpp: w = max(w, 5)
                if c.op.startswith(("v_readlane", "v_readfirstlane", "v_writelane", "v_permlane")): w = max(w, 4)
        if c.kind in ("vmem", "ds") and p.op.startswith("v_dot") and pv & vregs(c.uses): w = max(w, 3)
        if c.kind in ("vmem", "ds") and p.op.startswith(TRANS) and pv & vregs(c.uses): w = max(w, 1)
        if c.kind == "mfma" and p.op.startswith("v_dot") and pv & vregs(c.uses): w = max(w, 3)
        if c.kind == "vmem" and ps & sregs(c.uses): w = max(w, 5)
        if c.kind == "smem" and ps & sregs(c.uses): w = max(w, 5)
        if c.kind == "mfma" and ps & {("s", "exec_lo"), ("s", "exec_hi")}: w = max(w, 4)
    elif p.kind == "mfma":
        D = p.defs; n = p.passes
        hard = {2: 5, 4: 8, 8: 12}[n]
        if c.kind == "mfma":
            if D & c.srcab: w = max(w, hard)
            if D & set(c.srcc):
                exact = (list(sorted(D, key=str)) == list(sorted(set(c.srcc), key=str))) and c.passes == n
                if exact: w = max(w, 2 if n == 2 else 0)
                else: w = max(w, {2: 4, 4: 6, 8: 10}[n])
            elif D & c.defs:
                w = max(w, {2: 4, 4: 6, 8: 10}[n])
        elif c.kind in ("valu", "vmem", "ds"):
            if D & (vregs(c.uses) | vregs(c.defs)): w = max(w, hard)
        if c.kind == "valu" and set(p.srcc) & vregs(c.defs): w = max(w, {2: 1, 4: 3, 8: 7}[n])
        if c.kind in ("vmem", "ds") and set(p.srcc) & vregs(c.defs): w = max(w, {2: 1, 4: 3, 8: 7}[n])
    elif p.kind == "vmem":
        if p.wide_store and p.sdata & vregs(c.defs):
            w = max(w, 2 if c.kind in ("valu",) else 2)
    elif p.kind == "salu":
        if ("s", "m0") in p.defs and ("s", "m0") in c.uses and c.kind in ("vmem", "ds"): w = max(w, 1)
        if ("s", "m0") in p.defs and c.kind == "vmem" and ("lds" in c.mods.split() or "load_lds" in c.op): w = max(w, 1)
    return w

def flat_ab(c):
    R = [parse_reg(o) for o in c.ops]
    if c.op.startswith("v_dot2c"):
        return set(x for l in R[1:3] for x in l)
    return set(x for l in R[1:3] for x in l)

MAXW = 12

def pad_hazards(lines):
    ins = [Ins(t) for t in lines]
    branches = {}
    for i, x in enumerate(ins):
        if x.kind == "branch": branches.setdefault(x.target, []).append(i)
    def preds(i):
        out = []
        if i > 0:
            p = ins[i - 1]
            if not (p.kind == "end" or (p.kind == "branch" and p.op == "s_branch")):
                out.append(i - 1)
        if ins[i].label: out += branches.get(ins[i].label, [])
        return out
    extra = [0] * len(ins)
    for i, c in enumerate(ins):
        if c.op is None or c.kind in ("nop", "branch", "end", "sctl"): continue
        worst = 0
        stack = [(j, 0) for j in preds(i)]
        seen = {}
        while stack:
            j, d = stack.pop()
            if d >= MAXW: continue
            if seen.get(j, 99) <= d: continue
            seen[j] = d
            p = ins[j]
            if p.op is not None and p.kind != "nop":
                w = need(p, c)
                if w > d: worst = max(worst, w - d)
            nd = d + p.states() + extra[j]
            for k in preds(j): stack.append((k, nd))
        extra[i] = worst
    out = []; total = 0
    for i, c in enumerate(ins):
        n = extra[i]
        total += n
        while n > 0:
            k = min(n, 16)
            out.append(f"  s_nop {k-1}"); n -= k
        out.append(c.text)
    return out, total

class Asm:
    def __init__(self):
        self.L = []
        self._n = 0
    def __call__(self, t, *args):
        for line in t.split("\n"):
            if line.strip(): self.L.append("  " + line.strip() if not line.strip().endswith(":") else line.strip())
    def label(self, name): self.L.append(name + ":")
    def uniq(self, base):
        self._n += 1
        return f"{base}_{self._n}"

def kernel_text(name, body_lines, vgpr=256, agpr=0, sgpr=102, pad=True):
    added = 0
    if pad:
        body_lines, added = pad_hazards(body_lines)
    txt = f".text\n.globl {name}\n.p2align 8\n.type {name},@function\n{name}:\n" + "\n".join(body_lines) + "\n"
    return txt, added

def kernel_desc(name, vgpr=256, agpr=0, sgpr=102, kernarg=104, wgy=False):
    acc = (vgpr + 3) // 4 * 4
    tot = acc + agpr if agpr else vgpr
    t = f""".amdhsa_kernel {name}
  .amdhsa_next_free_vgpr {tot}
  .amdhsa_next_free_sgpr {sgpr}
  .amdhsa_accum_offset {acc}
  .amdhsa_group_segment_fixed_size 0
  .amdhsa_kernarg_size {kernarg}
  .amdhsa_user_sgpr_count 2
  .amdhsa_user_sgpr_kernarg_segment_ptr 1
  .amdhsa_system_sgpr_workgroup_id_x 1
"""
    if wgy: t += "  .amdhsa_system_sgpr_workgroup_id_y 1\n"
    t += ".end_amdhsa_kernel\n"
    return t
```

```python
from asm import *
import layout as L

WS_SLOT = 96
S_WS = 4; S_WAVE = 6; S_LAYER = 3
S_T = 8
S_W = 16
S_X = 20
S_O = 24
S_M = 28
S_O2 = 32
S_HEAD = 36; S_SEG = 37; S_CNT = 38; S_CUR = 39; S_NXT = 40; S_NN = 41; S_XO = 42; S_XP = 43; S_4K = 44
S_MO = 45; S_PO = 46; S_PM = 47; S_MU = 48
SEGB = 28 * 1024

def srd(A, r, base, off, size):
    A(f"s_add_u32 s{r}, s{base}, {off}")
    A(f"s_addc_u32 s{r+1}, s{base+1}, 0")
    A(f"s_mov_b32 s{r+2}, {size}")
    A(f"s_mov_b32 s{r+3}, 0x20000")

def stream(A, mf, fill):
    for x in fill.get(-1, []): A(x)
    for i, m in enumerate(mf):
        A(m)
        for x in fill.get(i, []): A(x)

def entry(A, name, nwg):
    A(f"""
    s_cmp_ge_u32 s2, {nwg}
    s_cbranch_scc1 {name}_end
    s_load_dwordx2 s[{S_WS}:{S_WS+1}], s[0:1], {WS_SLOT}
    v_lshrrev_b32 v1, 6, v0
    s_nop 0
    v_readfirstlane_b32 s{S_WAVE}, v1
    s_waitcnt lgkmcnt(0)
    """)

LANE = 1; LR = 2; XR = 3; XRN = 4; XG = 5; ST = 6; ST2 = 7; KA = 8; KH = 9; MKA = 10
SPW = 14; SPR = 15
AF = 16
ACC = 48
TMP = 104
PMA = 108; PMM = 109; MG = 110
BIAS = 112
WV = 120
def Wu(tau, kb):
    g = (kb * 4 + tau) if tau < 4 else (56 + kb * 3 + tau - 4)
    return a(4 * g, 4) if g < 64 else v(WV + 4 * (g - 64), 4)
def acc(tau, nu): return ACC + 8 * tau + 4 * nu

def head_seg(A):
    A(f"""
    s_and_b32 s{S_T}, s2, 7
    s_lshl_b32 s{S_T}, s{S_T}, 1
    s_bfe_u32 s{S_T+1}, s2, 0x10003
    s_add_u32 s{S_HEAD}, s{S_T}, s{S_T+1}
    s_lshr_b32 s{S_SEG}, s2, 4
    s_lshl_b32 s{S_SEG}, s{S_SEG}, 2
    s_mov_b32 s{S_CNT}, 4
    """)

def x_dma(slot_s):
    l = [f"s_mul_i32 s{S_T}, s{S_WAVE}, 7168", f"s_add_u32 s{S_T}, s{S_T}, s{slot_s}", f"s_mov_b32 m0, s{S_T}"]
    for i in range(4): l.append(f"buffer_load_dwordx4 v{XG}, s[{S_X}:{S_X+3}], 0 offen offset:{1024*i} lds")
    l += [f"s_add_u32 s{S_T}, s{S_T}, 4096", f"s_mov_b32 m0, s{S_T}"]
    for i in range(3): l.append(f"buffer_load_dwordx4 v{XG}, s[{S_X}:{S_X+3}], s{S_4K} offen offset:{1024*i} lds")
    l.append(f"v_add_u32 v{XG}, {SEGB}, v{XG}")
    return l

def load_weights(A, permuted):
    VA = ACC
    A(f"""
    s_mul_i32 s{S_T}, s{S_HEAD}, {28*14*1024}
    v_and_b32 v20, 15, v{LANE}
    v_lshrrev_b32 v21, 4, v{LANE}
    """)
    if not permuted:
        A(f"s_mul_i32 s{S_T+1}, s{S_WAVE}, {7*14*1024}\ns_add_u32 s{S_T}, s{S_T}, s{S_T+1}")
        for tau in range(7):
            A(f"v_add_u32 v{VA+tau}, {tau*14*1024}, v{LR}")
    else:
        A(f"""
        v_lshrrev_b32 v22, 3, v20
        v_mul_u32_u24 v22, {14*1024}, v22
        v_bfe_u32 v23, v20, 2, 1
        v_lshlrev_b32 v23, 3, v23
        v_and_b32 v24, 3, v20
        v_add_u32 v23, v23, v24
        v_lshl_add_u32 v23, v21, 4, v23
        v_lshl_add_u32 v22, v23, 4, v22
        s_mul_i32 s{S_T+1}, s{S_WAVE}, 7
        s_add_u32 s{S_T+1}, s{S_T+1}, 1
        s_lshr_b32 s{S_T+1}, s{S_T+1}, 1           ; base = [0,4,7,11][w]
        s_lshr_b32 s{S_T+2}, s{S_WAVE}, 1
        s_mul_i32 s{S_T+2}, s{S_T+2}, 7
        s_add_u32 s{S_T+2}, s{S_T+2}, 3
        s_and_b32 s{S_T+3}, s{S_WAVE}, 1
        """)
        for i in range(3):
            A(f"""
            s_add_u32 s{S_T+4}, s{S_T+1}, {i}
            s_mul_i32 s{S_T+4}, s{S_T+4}, {2*14*1024}
            v_add_u32 v{VA+2*i}, s{S_T+4}, v22
            v_add_u32 v{VA+2*i+1}, 64, v{VA+2*i}
            """)
        A(f"""
        s_mul_i32 s{S_T+4}, s{S_T+2}, {2*14*1024}
        s_lshl_b32 s{S_T+5}, s{S_T+3}, 6
        s_add_u32 s{S_T+4}, s{S_T+4}, s{S_T+5}
        v_add_u32 v{VA+6}, s{S_T+4}, v22
        """)
    for taus in (range(0, 4), range(4, 7)):
        for kb in range(14):
            if kb % 4 == 0:
                A(f"s_add_u32 s{S_T+6}, s{S_T}, {kb*1024}")
            for tau in taus:
                A(f"buffer_load_dwordx4 {Wu(tau,kb)}, v{VA+tau}, s[{S_W}:{S_W+3}], s{S_T+6} offen offset:{(kb%4)*1024}")

def ring_init(A):
    A(f"""
    s_mov_b32 s{S_CUR}, 0
    s_mov_b32 s{S_NXT}, {SEGB}
    s_mov_b32 s{S_NN}, {2*SEGB}
    s_mov_b32 s{S_4K}, 4096
    v_mov_b32 v{XR}, v{LR}
    v_add_u32 v{XRN}, {SEGB}, v{LR}
    s_mul_i32 s{S_T}, s{S_SEG}, {SEGB}
    s_mul_i32 s{S_T+1}, s{S_WAVE}, 7168
    s_add_u32 s{S_T}, s{S_T}, s{S_T+1}
    v_add_u32 v{XG}, s{S_T}, v{LR}
    """)
def ring_rotate(A):
    A(f"""
    s_mov_b32 s{S_T}, s{S_CUR}
    s_mov_b32 s{S_CUR}, s{S_NXT}
    s_mov_b32 s{S_NXT}, s{S_NN}
    s_mov_b32 s{S_NN}, s{S_T}
    v_mov_b32 v{XR}, v{XRN}
    v_add_u32 v{XRN}, s{S_NXT}, v{LR}
    """)

def afrag(i, nu): return AF + 8 * (i % 4) + 4 * nu
def aread(i, areg, kb):
    return [f"ds_read_b128 {v(afrag(i,nu),4)}, v{areg} offset:{(nu*14+kb)*1024}" for nu in range(2)]

def gemm_phases(w_is_a, next_prefetch=True):
    mf = []; fill = {}; start = []
    def F(i, *ins): fill.setdefault(i, []).extend(ins)
    for st in range(28):
        kb = st % 14; taus = range(0, 4) if st < 14 else range(4, 7)
        start.append(len(mf))
        for tau in taus:
            for nu in range(2):
                x = v(afrag(st, nu), 4); w = Wu(tau, kb); d = v(acc(tau, nu), 4)
                c = d if kb else "0"
                mf.append(f"v_mfma_f32_16x16x32_bf16 {d}, {w}, {x}, {c}" if w_is_a else
                          f"v_mfma_f32_16x16x32_bf16 {d}, {x}, {w}, {c}")
    for st in range(28):
        if st + 1 < 28 or next_prefetch: F(start[st] - 1, "s_waitcnt lgkmcnt(2)")
        else: F(start[st] - 1, "s_waitcnt lgkmcnt(0)")
        n = st + 2
        if n < 28: F(start[st], *aread(n, XR, n % 14))
    return mf, fill, start

def gen_kx(name):
    A = Asm()
    entry(A, name, 256)
    head_seg(A)
    srd(A, S_W, S_WS, L.VI, L.IMG)
    srd(A, S_X, S_WS, L.XI, L.XB)
    srd(A, S_O, S_WS, L.XV, L.XV_SZ)
    A(f"v_and_b32 v{LANE}, 63, v0\nv_lshlrev_b32 v{LR}, 4, v{LANE}")
    ring_init(A)
    for x in x_dma(S_CUR): A(x)
    load_weights(A, False)
    for x in x_dma(S_NXT): A(x)
    A(f"""
    s_mul_i32 s{S_T}, s{S_HEAD}, 28
    s_mul_i32 s{S_T+1}, s{S_WAVE}, 7
    s_add_u32 s{S_T}, s{S_T}, s{S_T+1}
    s_lshl_b32 s{S_T}, s{S_T}, 10
    v_add_u32 v{ST}, s{S_T}, v{LR}
    v_add_u32 v{ST2}, 4096, v{ST}
    s_mul_i32 s{S_XO}, s{S_SEG}, {16*SEGB}
    s_mov_b32 s{S_XP}, s{S_XO}
    s_waitcnt vmcnt(49)
    s_barrier
    """)
    for st in range(2):
        for x in aread(st, XR, st): A(x)
    A.label(f"{name}_loop")
    mf, fill, start = gemm_phases(False)
    def F(i, *ins): fill.setdefault(i, []).extend(ins)
    def epi(tau, t, vst, soff, off):
        return [f"v_cvt_pk_bf16_f32 v{t}, v{acc(tau,0)}, v{acc(tau,0)+1}",
                f"v_cvt_pk_bf16_f32 v{t+1}, v{acc(tau,0)+2}, v{acc(tau,0)+3}",
                f"v_cvt_pk_bf16_f32 v{t+2}, v{acc(tau,1)}, v{acc(tau,1)+1}",
                f"v_cvt_pk_bf16_f32 v{t+3}, v{acc(tau,1)+2}, v{acc(tau,1)+3}",
                f"buffer_store_dwordx4 {v(t,4)}, v{vst}, s[{S_O}:{S_O+3}], s{soff} offen offset:{off}"]
    for j, tau in enumerate(range(4, 7)):
        e = epi(tau, TMP + 4 * (j & 1), ST2, S_XP, 1024 * j)
        p = start[1 + 2 * j]
        for i_, x in enumerate(e): F(p + 1 + i_, x)
    F(start[14] - 1, "s_waitcnt vmcnt(10)")
    for tau in range(4):
        e = epi(tau, TMP + 4 * (tau & 1), ST, S_XO, 1024 * tau)
        p = start[15 + 2 * tau]
        for i_, x in enumerate(e): F(p + 1 + i_, x)
    F(start[26] - 1, "s_waitcnt vmcnt(7)", "s_barrier")
    F(start[26], *aread(28, XRN, 0))
    F(start[27], *aread(29, XRN, 1))
    dm = x_dma(S_NN)
    for i_, x in enumerate(dm): F(start[26] + 1 + i_ * 11 // len(dm), x)
    stream(A, mf, fill)
    ring_rotate(A)
    A(f"""
    s_mov_b32 s{S_XP}, s{S_XO}
    s_add_u32 s{S_XO}, s{S_XO}, {16*SEGB}
    s_sub_u32 s{S_CNT}, s{S_CNT}, 1
    s_cmp_lg_u32 s{S_CNT}, 0
    s_cbranch_scc1 {name}_loop
    """)
    A("s_nop 7")
    for j, tau in enumerate(range(4, 7)):
        for x in epi(tau, TMP + 4 * (j & 1), ST2, S_XP, 1024 * j): A(x)
    A("s_waitcnt vmcnt(0)")
    A.label(f"{name}_end")
    A("s_endpgm")
    return A.L

MBASE = 3 * SEGB
SPBASE = MBASE + 16384
S_MS = 50; S_DM = 51; S_DS = 52
def gen_kt(name, layer_reg=True):
    A = Asm()
    entry(A, name, 256)
    head_seg(A)
    srd(A, S_W, S_WS, L.AI, L.IMG)
    srd(A, S_X, S_WS, L.XI, L.XB)
    srd(A, S_O, S_WS, L.PTX, L.PTX_SZ)
    srd(A, S_O2, S_WS, L.PTM, L.PTM_SZ)
    A(f"s_mul_i32 s{S_T}, s{S_LAYER}, {L.MI[1]-L.MI[0]}\ns_add_u32 s{S_T}, s{S_T}, {L.MI[0]}")
    A(f"s_add_u32 s{S_M}, s{S_WS}, s{S_T}\ns_addc_u32 s{S_M+1}, s{S_WS+1}, 0\ns_mov_b32 s{S_M+2}, {L.MI_SZ}\ns_mov_b32 s{S_M+3}, 0x20000")
    A(f"v_and_b32 v{LANE}, 63, v0\nv_lshlrev_b32 v{LR}, 4, v{LANE}")
    ring_init(A)
    A(f"""
    s_mul_i32 s{S_T}, s{S_SEG}, {L.MB}
    s_lshl_b32 s{S_T+1}, s{S_WAVE}, 10
    s_add_u32 s{S_T}, s{S_T}, s{S_T+1}
    v_add_u32 v{MG}, s{S_T}, v{LR}
    """)
    def m_dma():
        return [f"s_lshl_b32 s{S_T}, s{S_WAVE}, 10", f"s_add_u32 s{S_T}, s{S_T}, {MBASE}", f"s_add_u32 s{S_T}, s{S_T}, s{S_MS}", f"s_mov_b32 m0, s{S_T}",
                f"s_nop 0",
                f"buffer_load_dwordx4 v{MG}, s[{S_M}:{S_M+3}], 0 offen lds",
                f"s_add_u32 s{S_T}, s{S_T}, 4096", f"s_mov_b32 m0, s{S_T}", "s_nop 0",
                f"buffer_load_dwordx4 v{MG}, s[{S_M}:{S_M+3}], s{S_4K} offen lds",
                f"v_add_u32 v{MG}, {L.MB}, v{MG}"]
    A(f"s_mov_b32 s{S_MS}, 0\ns_mov_b32 s{S_DM}, 8192\ns_mov_b32 s{S_DS}, 24576")
    for x in x_dma(S_CUR): A(x)
    for x in m_dma(): A(x)
    load_weights(A, True)
    A(f"""
    s_cmp_lg_u32 s{S_T+3}, 0
    s_cselect_b64 s[{S_MU}:{S_MU+1}], -1, 0
    s_lshl_b32 s{S_T+4}, s{S_T+1}, 10
    s_lshl_b32 s{S_T+5}, s{S_T+2}, 10
    v_mov_b32 v{KA}, s{S_T+4}
    v_mov_b32 v{KH}, s{S_T+5}
    v_and_b32 v20, 15, v{LANE}            ; n
    v_lshrrev_b32 v21, 4, v{LANE}         ; g
    v_and_b32 v22, 7, v20
    v_lshlrev_b32 v22, 4, v22
    v_lshrrev_b32 v23, 1, v21
    v_lshl_add_u32 v22, v23, 8, v22
    v_and_b32 v23, 1, v21
    v_lshl_add_u32 v22, v23, 3, v22
    """)
    for i in range(4):
        A(f"s_add_u32 s{S_T+4}, s{S_T+1}, {i}" if i < 3 else f"s_mov_b32 s{S_T+4}, s{S_T+2}")
        A(f"""
        s_lshl_b32 s{S_T+4}, s{S_T+4}, 9
        s_add_u32 s{S_T+4}, s{S_T+4}, {MBASE}
        v_add_u32 v{MKA+i}, s{S_T+4}, v22
        """)
    A(f"""
    s_mul_i32 s{S_T+4}, s{S_WAVE}, 6144
    s_add_u32 s{S_T+4}, s{S_T+4}, {SPBASE}
    v_add_u32 v{SPW}, s{S_T+4}, v{LR}
    s_and_b32 s{S_T+5}, s{S_WAVE}, 1
    s_mul_i32 s{S_T+4}, s{S_T+5}, 3072
    s_add_u32 s{S_T+4}, s{S_T+4}, {SPBASE}
    v_add_u32 v{SPR}, s{S_T+4}, v{LR}
    v_lshrrev_b32 v22, 2, v20
    v_lshlrev_b32 v22, 3, v22
    v_and_b32 v23, 3, v20
    v_add_u32 v22, v22, v23
    s_lshl_b32 s{S_T+4}, s{S_T+5}, 2
    v_add_u32 v22, s{S_T+4}, v22
    v_lshlrev_b32 v23, 3, v21
    v_sub_u32 v22, v22, v23
    v_mov_b32 v23, 0xff800000
    """)
    for j in range(8):
        A(f"v_cmp_le_i32 vcc, {j}, v22\nv_cndmask_b32 v{BIAS+j}, v23, 0, vcc" if False else
          f"v_cmp_gt_i32 vcc, {j}, v22\nv_cndmask_b32 v{BIAS+j}, 0, v23, vcc")
    A(f"""
    s_lshl_b32 s{S_T+4}, s{S_HEAD}, 1
    s_add_u32 s{S_T+4}, s{S_T+4}, s{S_T+5}
    s_lshl_b32 s{S_T+4}, s{S_T+4}, 10
    v_add_u32 v{PMA}, s{S_T+4}, v{LR}
    s_and_b32 s{S_T+4}, s{S_HEAD}, 14
    s_add_u32 s{S_T+4}, s{S_T+4}, s{S_T+5}
    s_lshl_b32 s{S_T+4}, s{S_T+4}, 10
    s_and_b32 s{S_T+6}, s{S_HEAD}, 1
    s_lshl_b32 s{S_T+6}, s{S_T+6}, 3
    s_add_u32 s{S_T+4}, s{S_T+4}, s{S_T+6}
    v_add_u32 v{PMM}, s{S_T+4}, v{LR}
    s_lshl_b32 s{S_PO}, s{S_SEG}, 15
    s_lshl_b32 s{S_PM}, s{S_SEG}, 14
    """)
    for x in x_dma(S_NXT): A(x)
    A(f"s_mov_b32 s{S_MS}, 8192")
    for x in m_dma(): A(x)
    A(f"s_mov_b32 s{S_MS}, 0")
    A("s_waitcnt vmcnt(51)\ns_barrier")
    A.label(f"{name}_loop")
    for st in range(2):
        for x in aread(st, XR, st): A(x)
    mf, fill, start = gemm_phases(True, next_prefetch=False)
    def F(i, *ins): fill.setdefault(i, []).extend(ins)
    def cvt_pair(p, nu):
        d = acc(2 * p, nu); e = acc(2 * p + 1, nu)
        return [f"v_cvt_pk_bf16_f32 v{d}, v{d}, v{d+1}", f"v_cvt_pk_bf16_f32 v{d+1}, v{d+2}, v{d+3}",
                f"v_cvt_pk_bf16_f32 v{d+2}, v{e}, v{e+1}", f"v_cvt_pk_bf16_f32 v{d+3}, v{e+2}, v{e+3}"]
    F(start[14] - 1, "s_waitcnt vmcnt(9)")
    k = start[15]
    for p in range(2):
        for nu in range(2):
            for x in cvt_pair(p, nu): F(k, x); k += 1
    stream(A, mf, fill)
    KX = AF
    A(f"v_add_u32 v{TMP}, v{XR}, v{KA}\nv_add_u32 v{TMP+1}, v{XR}, v{KH}")
    for b in range(4):
        for mu in range(2):
            if b < 3: A(f"ds_read_b128 {v(KX+8*b+4*mu,4)}, v{TMP} offset:{(mu*14+b)*1024}")
            else: A(f"ds_read_b128 {v(KX+8*b+4*mu,4)}, v{TMP+1} offset:{mu*14*1024}")
    for nu in range(2):
        for x in cvt_pair(2, nu): A(x)
    for nu in range(2):
        d = acc(6, nu)
        A(f"""
        v_cvt_pk_bf16_f32 v{TMP+2}, v{d}, v{d+1}
        v_cvt_pk_bf16_f32 v{TMP+3}, v{d+2}, v{d+3}
        v_cndmask_b32 v{d}, v{TMP+2}, 0, s[{S_MU}:{S_MU+1}]
        v_cndmask_b32 v{d+1}, v{TMP+3}, 0, s[{S_MU}:{S_MU+1}]
        v_cndmask_b32 v{d+2}, 0, v{TMP+2}, s[{S_MU}:{S_MU+1}]
        v_cndmask_b32 v{d+3}, 0, v{TMP+3}, s[{S_MU}:{S_MU+1}]
        """)
    def TF(b, nu): return v(acc(2 * b, nu), 4)
    SACC = [[acc(1, 0), acc(1, 1)], [acc(3, 0), acc(3, 1)], [acc(5, 0), acc(5, 1)]]
    for b in range(4):
        A(f"s_waitcnt lgkmcnt({6-2*b})")
        for mu in range(2):
            for nu in range(2):
                d = v(SACC[mu][nu], 4)
                A(f"v_mfma_f32_16x16x32_bf16 {d}, {v(KX+8*b+4*mu,4)}, {TF(b,nu)}, {d if b else 0}")
    for b in range(4):
        A(f"ds_read2_b32 {v(KX+4*b,2)}, v{MKA+b} offset0:0 offset1:32")
        A(f"ds_read2_b32 {v(KX+4*b+2,2)}, v{MKA+b} offset0:1 offset1:33")
    for b in range(4):
        A(f"s_waitcnt lgkmcnt({6-2*b})")
        for nu in range(2):
            d = v(SACC[2][nu], 4)
            A(f"v_mfma_f32_16x16x32_bf16 {d}, {v(KX+4*b,4)}, {TF(b,nu)}, {d if b else 0}")
    for nu in range(2):
        for kap in range(3):
            A(f"ds_write_b128 v{SPW}, {v(SACC[kap][nu],4)} offset:{(nu*3+kap)*1024}")
    A("s_waitcnt vmcnt(0) lgkmcnt(0)\ns_barrier")
    for x in x_dma(S_NN): A(x)
    for x in m_dma(): A(x)
    skip = A.uniq(name + "_nosm")
    A(f"s_cmp_ge_u32 s{S_WAVE}, 2\ns_cbranch_scc1 {skip}")
    R = ACC
    for w in range(4):
        for kap in range(3):
            A(f"ds_read_b128 {v(R+12*w+4*kap,4)}, v{SPR} offset:{w*6144+kap*1024}")
    A("s_waitcnt lgkmcnt(6)")
    for i in range(12): A(f"v_add_f32 v{R+i}, v{R+i}, v{R+12+i}")
    A("s_waitcnt lgkmcnt(0)")
    for i in range(12): A(f"v_add_f32 v{R+24+i}, v{R+24+i}, v{R+36+i}")
    for i in range(8): A(f"v_add_f32 v{R+24+i}, v{R+24+i}, v{BIAS+i}")
    for i in range(12): A(f"v_add_f32 v{R+i}, v{R+i}, v{R+24+i}")
    MX = R + 12; T = R + 13; SM = R + 14
    A(f"""
    v_max3_f32 v{MX}, v{R}, v{R+1}, v{R+2}
    v_max3_f32 v{T}, v{R+3}, v{R+4}, v{R+5}
    v_max3_f32 v{MX}, v{MX}, v{R+6}, v{R+7}
    v_max3_f32 v{T}, v{T}, v{R+8}, v{R+9}
    v_max3_f32 v{MX}, v{MX}, v{R+10}, v{R+11}
    v_max_f32 v{MX}, v{MX}, v{T}
    v_mov_b32 v{T}, v{MX}
    v_permlane16_swap_b32 v{MX}, v{T}
    v_max_f32 v{MX}, v{MX}, v{T}
    v_mov_b32 v{T}, v{MX}
    v_permlane32_swap_b32 v{MX}, v{T}
    v_max_f32 v{MX}, v{MX}, v{T}
    """)
    for i in range(12): A(f"v_sub_f32 v{R+i}, v{R+i}, v{MX}")
    for i in range(12): A(f"v_exp_f32 v{R+i}, v{R+i}")
    A(f"""
    v_add_f32 v{SM}, v{R+8}, v{R+9}
    v_add_f32 v{T}, v{R+10}, v{R+11}
    v_add_f32 v{SM}, v{SM}, v{T}
    v_mul_f32 v{SM}, 0.5, v{SM}
    v_add_f32 v{T}, v{R}, v{R+1}
    v_add_f32 v{MX}, v{R+2}, v{R+3}
    v_add_f32 v{SM}, v{SM}, v{T}
    v_add_f32 v{T}, v{R+4}, v{R+5}
    v_add_f32 v{SM}, v{SM}, v{MX}
    v_add_f32 v{MX}, v{R+6}, v{R+7}
    v_add_f32 v{SM}, v{SM}, v{T}
    v_add_f32 v{SM}, v{SM}, v{MX}
    v_mov_b32 v{T}, v{SM}
    v_permlane16_swap_b32 v{SM}, v{T}
    v_add_f32 v{SM}, v{SM}, v{T}
    v_mov_b32 v{T}, v{SM}
    v_permlane32_swap_b32 v{SM}, v{T}
    v_add_f32 v{SM}, v{SM}, v{T}
    v_rcp_f32 v{SM}, v{SM}
    """)
    for i in range(12): A(f"v_mul_f32 v{R+i}, v{R+i}, v{SM}")
    for i in range(6): A(f"v_cvt_pk_bf16_f32 v{R+16+i}, v{R+2*i}, v{R+2*i+1}")
    A(f"""
    buffer_store_dwordx4 {v(R+16,4)}, v{PMA}, s[{S_O}:{S_O+3}], s{S_PO} offen
    buffer_store_dwordx2 {v(R+20,2)}, v{PMM}, s[{S_O2}:{S_O2+3}], s{S_PM} offen
    """)
    A.label(skip)
    ring_rotate(A)
    A(f"""
    s_add_u32 s{S_PO}, s{S_PO}, 32768
    s_add_u32 s{S_PM}, s{S_PM}, 16384
    s_sub_u32 s{S_CNT}, s{S_CNT}, 1
    s_xor_b32 s{S_MS}, s{S_MS}, 8192
    """)
    for i in range(4): A(f"v_add_u32 v{MKA+i}, s{S_DM}, v{MKA+i}")
    A(f"""
    v_add_u32 v{SPW}, s{S_DS}, v{SPW}
    v_add_u32 v{SPR}, s{S_DS}, v{SPR}
    s_sub_u32 s{S_DM}, 0, s{S_DM}
    s_sub_u32 s{S_DS}, 0, s{S_DS}
    s_cmp_lg_u32 s{S_CNT}, 0
    s_cbranch_scc1 {name}_loop
    s_waitcnt vmcnt(0)
    """)
    A.label(f"{name}_end")
    A("s_endpgm")
    return A.L

def sel_ptr(A, r, layer_reg, slot0, off0, off1, size, T):
    if slot0 is not None:
        A(f"s_load_dwordx2 s[{T}:{T+1}], s[0:1], {slot0}\ns_waitcnt lgkmcnt(0)")
    else:
        A(f"s_add_u32 s{T}, s{S_WS}, {off0}\ns_addc_u32 s{T+1}, s{S_WS+1}, 0")
    A(f"""
    s_add_u32 s{r}, s{S_WS}, {off1}
    s_addc_u32 s{r+1}, s{S_WS+1}, 0
    s_cmp_eq_u32 s{layer_reg}, 0
    s_cselect_b32 s{r}, s{T}, s{r}
    s_cselect_b32 s{r+1}, s{T+1}, s{r+1}
    s_mov_b32 s{r+2}, {size}
    s_mov_b32 s{r+3}, 0x20000
    """)

def gen_ko(name):
    A = Asm()
    entry(A, name, 256)
    S_XVS = 16; S_U = 20; S_PX = 24; S_PMM = 28; S_IN = 32; S_OUT = 36
    S_S = 40; S_Q = 41
    srd(A, S_XVS, S_WS, L.XV, L.XV_SZ)
    srd(A, S_U, S_WS, L.UI, L.UI_SZ)
    srd(A, S_PX, S_WS, L.PTX, L.PTX_SZ)
    srd(A, S_PMM, S_WS, L.PTM, L.PTM_SZ)
    sel_ptr(A, S_IN, S_LAYER, 0, None, L.X2, L.XB, S_T)
    sel_ptr(A, S_OUT, S_LAYER, None, L.X1, L.X3, L.XB, S_T)
    LANE = 1; LR = 2; VA = 3; VB = 4; RA = 5; WA = 6; RD = 7
    PX = 16; PMr = 48; AC = 64; RES = 120
    def XVR(hl, t): return a(4 * (hl * 7 + t), 4)
    def UR(t, un): return a(112 + 4 * (2 * t + un), 4)
    A(f"""
    s_lshr_b32 s{S_S}, s2, 2
    s_and_b32 s{S_Q}, s2, 3
    v_and_b32 v{LANE}, 63, v0
    v_lshlrev_b32 v{LR}, 4, v{LANE}
    ; P units
    s_lshl_b32 s{S_T}, s{S_S}, 15
    s_lshl_b32 s{S_T+1}, s{S_WAVE}, 13
    s_add_u32 s{S_T}, s{S_T}, s{S_T+1}
    s_add_u32 s{S_T+1}, s{S_T}, 4096
    """)
    for i in range(8):
        A(f"buffer_load_dwordx4 {v(PX+4*i,4)}, v{LR}, s[{S_PX}:{S_PX+3}], s{S_T+(i>>2)} offen offset:{1024*(i&3)}")
    A(f"""
    s_lshl_b32 s{S_T}, s{S_S}, 14
    s_lshl_b32 s{S_T+1}, s{S_WAVE}, 12
    s_add_u32 s{S_T}, s{S_T}, s{S_T+1}
    """)
    for i in range(4):
        A(f"buffer_load_dwordx4 {v(PMr+4*i,4)}, v{LR}, s[{S_PMM}:{S_PMM+3}], s{S_T} offen offset:{1024*i}")
    A(f"""
    s_mul_i32 s{S_T}, s{S_S}, {16*SEGB}
    s_mul_i32 s{S_T+1}, s{S_WAVE}, {4*SEGB}
    s_add_u32 s{S_T}, s{S_T}, s{S_T+1}
    s_mul_i32 s{S_T+1}, s{S_Q}, 7168
    s_add_u32 s{S_T}, s{S_T}, s{S_T+1}
    """)
    for hl in range(4):
        A(f"s_add_u32 s{S_T+1}, s{S_T}, 4096")
        for t in range(7):
            A(f"buffer_load_dwordx4 {XVR(hl,t)}, v{LR}, s[{S_XVS}:{S_XVS+3}], s{S_T+(t>>2)} offen offset:{1024*(t&3)}")
        A(f"s_add_u32 s{S_T}, s{S_T}, {SEGB}")
    A(f"""
    s_add_u32 s{S_T}, s{S_S}, 1
    s_mul_i32 s{S_T}, s{S_T}, {L.UI_STEP}
    s_mul_i32 s{S_T+1}, s{S_WAVE}, 28
    s_mul_i32 s{S_T+2}, s{S_Q}, 7
    s_add_u32 s{S_T+1}, s{S_T+1}, s{S_T+2}
    s_lshl_b32 s{S_T+1}, s{S_T+1}, 11
    s_add_u32 s{S_T}, s{S_T}, s{S_T+1}
    """)
    for i in range(14):
        if i and i % 4 == 0: A(f"s_add_u32 s{S_T}, s{S_T}, 4096")
        A(f"buffer_load_dwordx4 {UR(i>>1,i&1)}, v{LR}, s[{S_U}:{S_U+3}], s{S_T} offen offset:{1024*(i&3)}")
    A(f"""
    v_and_b32 v8, 15, v{LANE}
    v_lshrrev_b32 v9, 4, v{LANE}
    v_lshrrev_b32 v10, 2, v8
    v_lshlrev_b32 v10, 3, v10
    v_and_b32 v11, 3, v8
    v_add_u32 v10, v10, v11
    s_and_b32 s{S_T}, s{S_WAVE}, 1
    s_lshl_b32 s{S_T}, s{S_T}, 2
    s_lshl_b32 s{S_T+1}, s{S_S}, 5
    s_add_u32 s{S_T}, s{S_T}, s{S_T+1}
    v_add_u32 v10, s{S_T}, v10
    v_mul_u32_u24 v10, 896, v10
    s_mul_i32 s{S_T}, s{S_Q}, 7
    s_lshr_b32 s{S_T+1}, s{S_WAVE}, 1
    s_add_u32 s{S_T}, s{S_T}, s{S_T+1}
    s_lshl_b32 s{S_T}, s{S_T}, 5
    v_lshl_add_u32 v10, v9, 3, v10
    v_add_u32 v{RA}, s{S_T}, v10
    """)
    for j in range(4):
        A(f"buffer_load_dwordx2 {v(RES+2*j,2)}, v{RA}, s[{S_IN}:{S_IN+3}], 0 offen offset:{64*j}")
    A(f"""
    s_mul_i32 s{S_T}, s{S_WAVE}, {14*1024}
    v_add_u32 v{WA}, s{S_T}, v{LR}
    s_lshl_b32 s{S_T}, s{S_WAVE}, 10
    v_add_u32 v{RD}, s{S_T}, v{LR}
    """)
    for hl in range(4):
        A(f"s_waitcnt vmcnt({4+14+7*(3-hl)})")
        for t in range(7):
            for nu in range(2):
                d = v(AC + 8 * t + 4 * nu, 4)
                A(f"v_mfma_f32_16x16x32_bf16 {d}, {XVR(hl,t)}, {v(PX+8*hl+4*nu,4)}, {d if hl else 0}")
    A("s_waitcnt vmcnt(4)")
    for un in range(2):
        for t in range(7):
            for nu in range(2):
                d = v(AC + 8 * t + 4 * nu, 4)
                A(f"v_mfma_f32_16x16x32_bf16 {d}, {UR(t,un)}, {v(PMr+8*un+4*nu,4)}, {d}")
    for t in range(7):
        for nu in range(2):
            A(f"ds_write_b128 v{WA}, {v(AC+8*t+4*nu,4)} offset:{(2*t+nu)*1024}")
    A("s_waitcnt vmcnt(0) lgkmcnt(0)\ns_barrier")
    R = 16
    def tile(j):
        for w in range(4):
            A(f"ds_read_b128 {v(R+16*j+4*w,4)}, v{RD} offset:{w*14*1024+4*j*1024}")
    def fin(j):
        r = R + 16 * j
        for i in range(4): A(f"v_add_f32 v{r+i}, v{r+i}, v{r+4+i}\nv_add_f32 v{r+8+i}, v{r+8+i}, v{r+12+i}")
        A(f"""
        v_lshlrev_b32 v{r+4}, 16, v{RES+2*j}
        v_and_b32 v{r+5}, 0xffff0000, v{RES+2*j}
        v_lshlrev_b32 v{r+6}, 16, v{RES+2*j+1}
        v_and_b32 v{r+7}, 0xffff0000, v{RES+2*j+1}
        """)
        for i in range(4): A(f"v_add_f32 v{r+i}, v{r+i}, v{r+8+i}")
        for i in range(4): A(f"v_add_f32 v{r+i}, v{r+i}, v{r+4+i}")
        A(f"""
        v_cvt_pk_bf16_f32 v{r}, v{r}, v{r+1}
        v_cvt_pk_bf16_f32 v{r+1}, v{r+2}, v{r+3}
        buffer_store_dwordx2 {v(r,2)}, v{RA}, s[{S_OUT}:{S_OUT+3}], 0 offen offset:{64*j}
        """)
    for j in range(3): tile(j)
    l3 = A.uniq(name + "_t3")
    A(f"s_cmp_ge_u32 s{S_WAVE}, 2\ns_cbranch_scc1 {l3}")
    tile(3)
    A("s_waitcnt lgkmcnt(0)")
    fin(3)
    A.label(l3)
    for j in range(3):
        A(f"s_waitcnt lgkmcnt({8-4*j})" if False else "s_waitcnt lgkmcnt(0)")
        fin(j)
    A("s_waitcnt vmcnt(0)")
    A.label(f"{name}_end")
    A("s_endpgm")
    return A.L
```

```python
from asm import *
import layout as L
from ka import entry, srd, sel_ptr, S_WS, S_WAVE, S_LAYER, S_T

def dpp_allred8(A, op, x, t):
    A(f"{op} v{x}, v{x}, v{x} quad_perm:[1,0,3,2] row_mask:0xf bank_mask:0xf")
    A(f"{op} v{x}, v{x}, v{x} quad_perm:[2,3,0,1] row_mask:0xf bank_mask:0xf")
    A(f"{op} v{x}, v{x}, v{x} row_half_mirror row_mask:0xf bank_mask:0xf")

def ln_load(A, S_SRC, s_seg, RAW, VA, LANE):
    A(f"""
    s_lshl_b32 s{S_T}, s{s_seg}, 5
    s_lshl_b32 s{S_T+1}, s{S_WAVE}, 3
    s_add_u32 s{S_T}, s{S_T}, s{S_T+1}
    v_lshrrev_b32 v{VA}, 3, v{LANE}
    v_add_u32 v{VA}, s{S_T}, v{VA}
    v_mul_u32_u24 v{VA}, 896, v{VA}
    v_and_b32 v{VA+1}, 7, v{LANE}
    v_lshl_add_u32 v{VA}, v{VA+1}, 4, v{VA}
    """)
    for j in range(7):
        A(f"buffer_load_dwordx4 {v(RAW+4*j,4)}, v{VA}, s[{S_SRC}:{S_SRC+3}], 0 offen offset:{128*j}")

def ln_to_lds(A, RAW, XF, T, LANE, base):
    for i in range(28):
        A(f"v_lshlrev_b32 v{XF+2*i}, 16, v{RAW+i}\nv_and_b32 v{XF+2*i+1}, 0xffff0000, v{RAW+i}")
    A(f"v_pk_add_f32 {v(T,2)}, {v(XF,2)}, {v(XF+2,2)}\nv_pk_add_f32 {v(T+2,2)}, {v(XF+4,2)}, {v(XF+6,2)}")
    for i in range(4, 28, 2):
        A(f"v_pk_add_f32 {v(T,2)}, {v(T,2)}, {v(XF+2*i,2)}\nv_pk_add_f32 {v(T+2,2)}, {v(T+2,2)}, {v(XF+2*i+2,2)}")
    A(f"v_pk_add_f32 {v(T,2)}, {v(T,2)}, {v(T+2,2)}\nv_add_f32 v{T}, v{T}, v{T+1}")
    dpp_allred8(A, "v_add_f32", T, T + 1)
    A(f"v_mul_f32 v{T}, {hex(np_f(-1.0/448))}, v{T}\nv_mov_b32 v{T+1}, v{T}")
    for i in range(28):
        A(f"v_pk_add_f32 {v(XF+2*i,2)}, {v(XF+2*i,2)}, {v(T,2)}")
    A(f"v_pk_mul_f32 {v(T+2,2)}, {v(XF,2)}, {v(XF,2)}\nv_pk_mul_f32 {v(T+4,2)}, {v(XF+2,2)}, {v(XF+2,2)}")
    for i in range(2, 28, 2):
        A(f"v_pk_fma_f32 {v(T+2,2)}, {v(XF+2*i,2)}, {v(XF+2*i,2)}, {v(T+2,2)}")
        A(f"v_pk_fma_f32 {v(T+4,2)}, {v(XF+2*i+2,2)}, {v(XF+2*i+2,2)}, {v(T+4,2)}")
    A(f"v_pk_add_f32 {v(T+2,2)}, {v(T+2,2)}, {v(T+4,2)}\nv_add_f32 v{T}, v{T+2}, v{T+3}")
    dpp_allred8(A, "v_add_f32", T, T + 1)
    A(f"""
    v_mov_b32 v{T+1}, {hex(np_f(1e-5))}
    v_fmac_f32 v{T+1}, {hex(np_f(1.0/448))}, v{T}
    v_rsq_f32 v{T}, v{T+1}
    s_nop 0
    v_mov_b32 v{T+1}, v{T}
    """)
    for i in range(28):
        A(f"v_pk_mul_f32 {v(XF+2*i,2)}, {v(XF+2*i,2)}, {v(T,2)}")
    for i in range(28):
        A(f"v_cvt_pk_bf16_f32 v{RAW+i}, v{XF+2*i}, v{XF+2*i+1}")
    A(f"""
    v_and_b32 v{T}, 7, v{LANE}                 ; sub
    v_bfe_u32 v{T+1}, v{LANE}, 3, 2            ; i8 & 3
    s_lshl_b32 s{S_T}, s{S_WAVE}, 2
    v_add_u32 v{T+1}, s{S_T}, v{T+1}           ; m
    v_xor_b32 v{T+1}, v{T+1}, v{T}
    v_lshlrev_b32 v{T+1}, 4, v{T+1}
    v_and_b32 v{T+2}, 3, v{T}
    v_lshl_add_u32 v{T+1}, v{T+2}, 8, v{T+1}
    v_lshrrev_b32 v{T+2}, 2, v{T}
    v_lshl_add_u32 v{T+1}, v{T+2}, 10, v{T+1}
    v_lshrrev_b32 v{T+2}, 5, v{LANE}           ; nu
    v_mul_u32_u24 v{T+2}, 14336, v{T+2}
    v_add_u32 v{T+1}, v{T+1}, v{T+2}
    """)
    for j in range(7):
        A(f"ds_write_b128 v{T+1}, {v(RAW+4*j,4)} offset:{base+2048*j}")

def a_addr(A, RA, LANE, T):
    A(f"""
    v_and_b32 v{T}, 15, v{LANE}
    v_lshrrev_b32 v{T+1}, 4, v{LANE}
    v_xor_b32 v{T}, v{T}, v{T+1}
    v_lshlrev_b32 v{T+2}, 4, v{T}
    v_lshl_add_u32 v{RA}, v{T+1}, 8, v{T+2}
    v_xor_b32 v{RA+1}, 64, v{RA}
    """)

import struct
def np_f(x): return struct.unpack("<I", struct.pack("<f", x))[0]

def gen_kb1(name):
    A = Asm()
    entry(A, name, 256)
    S_SRC = 16; S_F = 20; S_O = 24; S_S = 28; S_Q = 29
    sel_ptr(A, S_SRC, S_LAYER, None, L.X1, L.X3, L.XB, S_T)
    srd(A, S_F, S_WS, L.FI, 28 * 14 * 1024)
    srd(A, S_O, S_WS, L.ZF, 448 * 4096)
    LANE = 1; LR = 2; VA = 3; RA = 5; FA = 7; OA = 8; T = 10
    RAW = 16; XF = 44; AF = 100; AC = 116
    def FU(t, kb): return a(4 * (kb * 2 + t), 4)
    A(f"""
    s_lshr_b32 s{S_S}, s2, 2
    s_and_b32 s{S_Q}, s2, 3
    v_and_b32 v{LANE}, 63, v0
    v_lshlrev_b32 v{LR}, 4, v{LANE}
    """)
    ln_load(A, S_SRC, S_S, RAW, VA, LANE)
    A(f"""
    s_mul_i32 s{S_T}, s{S_Q}, 7
    s_lshl_b32 s{S_T+1}, s{S_WAVE}, 1
    s_add_u32 s{S_T}, s{S_T}, s{S_T+1}
    s_mul_i32 s{S_T+1}, s{S_T}, 14336
    v_add_u32 v{FA}, s{S_T+1}, v{LR}
    v_add_u32 v{FA+1}, 14336, v{FA}
    """)
    A(f"""
    v_and_b32 v{T}, 15, v{LANE}
    s_lshl_b32 s{S_T}, s{S_T}, 4
    v_add_u32 v{T}, s{S_T}, v{T}
    v_lshlrev_b32 v{T}, 12, v{T}
    v_lshrrev_b32 v{T+1}, 4, v{LANE}
    v_lshl_add_u32 v{T}, v{T+1}, 4, v{T}
    s_lshl_b32 s{S_T+1}, s{S_S}, 6
    """)
    for kb in range(14):
        if kb % 4 == 0: A(f"s_mov_b32 s{S_T+2}, {kb*1024}")
        for t in range(2):
            A(f"buffer_load_dwordx4 {FU(t,kb)}, v{FA+t}, s[{S_F}:{S_F+3}], s{S_T+2} offen offset:{(kb%4)*1024}")
    A(f"""
    v_add_u32 v{FA}, s{S_T+1}, v{T}
    v_add_u32 v{FA+1}, 65536, v{FA}
    v_mov_b32 v{T}, 0x40000000
    s_cmp_eq_u32 s{S_WAVE}, 3
    s_cselect_b64 vcc, -1, 0
    v_cndmask_b32 v{FA+1}, v{FA+1}, v{T}, vcc
    s_waitcnt vmcnt(28)
    """)
    ln_to_lds(A, RAW, XF, T, LANE, 0)
    a_addr(A, RA, LANE, T)
    A("s_waitcnt lgkmcnt(0)\ns_barrier")
    def rd(kb):
        for nu in range(2):
            A(f"ds_read_b128 {v(AF+8*(kb&1)+4*nu,4)}, v{RA+(kb&1)} offset:{(nu*14+kb)*1024}")
    rd(0); rd(1)
    for kb in range(14):
        A(f"s_waitcnt vmcnt({26-2*kb}) lgkmcnt({2 if kb < 13 else 0})")
        for t in range(2):
            for nu in range(2):
                d = v(AC + 8 * t + 4 * nu, 4)
                A(f"v_mfma_f32_16x16x32_bf16 {d}, {v(AF+8*(kb&1)+4*nu,4)}, {FU(t,kb)}, {d if kb else 0}")
        if kb + 2 < 14: rd(kb + 2)
    for t in range(2):
        d = AC + 8 * t
        A(f"""
        v_cvt_pk_bf16_f32 v{d}, v{d}, v{d+1}
        v_cvt_pk_bf16_f32 v{d+1}, v{d+2}, v{d+3}
        v_cvt_pk_bf16_f32 v{d+2}, v{d+4}, v{d+5}
        v_cvt_pk_bf16_f32 v{d+3}, v{d+6}, v{d+7}
        buffer_store_dwordx4 {v(d,4)}, v{FA+t}, s[{S_O}:{S_O+3}], 0 offen
        """)
    A("s_waitcnt vmcnt(0)")
    A.label(f"{name}_end")
    A("s_endpgm")
    return A.L

def MF(d, a_, b_, c): return f"v_mfma_f32_16x16x32_bf16 {v(d,4)}, {v(a_,4)}, {v(b_,4)}, {v(c,4) if c is not None else 0}"

def trig_frag(A, idx0, step, n, mask, scale, R, I, NI, T):
    for j in range(0, 8, 2):
        for e in range(2):
            A(f"""
            v_and_b32 v{T+e}, {mask}, v{idx0}
            v_add_u32 v{idx0}, v{idx0}, v{step}
            v_cvt_f32_u32 v{T+e}, v{T+e}
            v_mul_f32 v{T+e}, {hex(np_f(scale))}, v{T+e}
            v_cos_f32 v{T+2+e}, v{T+e}
            v_sin_f32 v{T+4+e}, v{T+e}
            """)
        A(f"""
        s_nop 0
        v_cvt_pk_bf16_f32 v{R+j//2}, v{T+2}, v{T+3}
        v_cvt_pk_bf16_f32 v{I+j//2}, -v{T+4}, -v{T+5}
        v_cvt_pk_bf16_f32 v{NI+j//2}, v{T+4}, v{T+5}
        """)

def gen_kb2(name):
    A = Asm()
    entry(A, name, 225)
    S_IN = 16; S_OUT = 20; S_WT = 24
    srd(A, S_IN, S_WS, L.ZF, 448 * 4096)
    srd(A, S_OUT, S_WS, L.ZI, 448 * 4096)
    srd(A, S_WT, S_WS, L.WT, 225 * 8192)
    LANE = 1; LR = 2; VR = 3; VI = 4; TA = 5; XA = 6; N = 7; G = 8; K1 = 9; T = 10
    FR = 16; FI = 24; NF = 32
    GR = 40; GI = 48; NG = 56
    TC = 64; TS = 72
    DA = 80
    DR = 112; DI = 120
    BR = 128; BI = 132
    WT = 136
    LD = 144
    U = 152
    A(f"""
    v_and_b32 v{LANE}, 63, v0
    v_lshlrev_b32 v{LR}, 4, v{LANE}
    s_lshl_b32 s{S_T}, s2, 12
    s_lshl_b32 s{S_T+1}, s{S_WAVE}, 10
    s_add_u32 s{S_T}, s{S_T}, s{S_T+1}
    v_add_u32 v{VR}, s{S_T}, v{LR}
    v_add_u32 v{VI}, {224*4096}, v{VR}
    v_mov_b32 v{T}, 0x40000000
    s_cmp_eq_u32 s2, 0
    s_cselect_b64 vcc, -1, 0
    s_cmp_eq_u32 s2, 224
    s_cselect_b64 s[{S_T+2}:{S_T+3}], -1, 0
    s_or_b64 vcc, vcc, s[{S_T+2}:{S_T+3}]
    v_cndmask_b32 v{VI}, v{VI}, v{T}, vcc
    buffer_load_dwordx4 {v(LD,4)}, v{VR}, s[{S_IN}:{S_IN+3}], 0 offen
    buffer_load_dwordx4 {v(LD+4,4)}, v{VI}, s[{S_IN}:{S_IN+3}], 0 offen
    ; filter
    s_lshl_b32 s{S_T}, s2, 13
    s_lshl_b32 s{S_T+1}, s{S_WAVE}, 11
    s_add_u32 s{S_T}, s{S_T}, s{S_T+1}
    v_lshlrev_b32 v{T}, 5, v{LANE}
    buffer_load_dwordx4 {v(WT,4)}, v{T}, s[{S_WT}:{S_WT+3}], s{S_T} offen
    buffer_load_dwordx4 {v(WT+4,4)}, v{T}, s[{S_WT}:{S_WT+3}], s{S_T} offen offset:16
    v_and_b32 v{N}, 15, v{LANE}
    v_lshrrev_b32 v{G}, 4, v{LANE}
    s_lshl_b32 s{S_T}, s{S_WAVE}, 4
    v_add_u32 v{K1}, s{S_T}, v{N}                 ; k1 = 16 w + n
    v_lshrrev_b32 v{T}, 2, v{N}
    v_lshl_add_u32 v{T}, v{G}, 3, v{T}
    v_lshlrev_b32 v{T}, 6, v{T}
    v_and_b32 v{T+1}, 3, v{N}
    v_lshl_add_u32 v{TA}, v{T+1}, 4, v{T}
    v_lshlrev_b32 v{T}, 6, v{K1}
    v_lshl_add_u32 v{T}, v{G}, 4, v{T}
    v_add_u32 v{XA}, 8192, v{T}
    """)
    A(f"v_lshlrev_b32 v{U}, 3, v{G}\nv_mul_u32_u24 v{U}, v{U}, v{K1}")
    for kap in range(2):
        trig_frag(A, U, K1, 8, 63, 1.0 / 64, FR + 4 * kap, FI + 4 * kap, NF + 4 * kap, T)
        if kap == 0: A(f"v_mul_u32_u24 v{U+1}, 24, v{K1}\nv_add_u32 v{U}, v{U}, v{U+1}")
    A(f"""
    s_lshl_b32 s{S_T}, s{S_WAVE}, 10
    v_add_u32 v{U+2}, s{S_T}, v{LR}
    s_waitcnt vmcnt(2)
    ds_write_b128 v{U+2}, {v(LD,4)}
    ds_write_b128 v{U+2}, {v(LD+4,4)} offset:4096
    """)
    for mu in range(2):
        A(f"""
        v_lshrrev_b32 v{U+1}, 2, v{N}
        v_lshlrev_b32 v{U+1}, 3, v{U+1}
        v_and_b32 v{U}, 3, v{N}
        v_add_u32 v{U+1}, v{U+1}, v{U}
        v_add_u32 v{U+1}, {4*mu}, v{U+1}           ; rho
        v_lshlrev_b32 v{U}, 3, v{G}
        v_mul_u32_u24 v{U}, v{U}, v{U+1}
        """)
        trig_frag(A, U, U + 1, 8, 31, 1.0 / 32, GR + 4 * mu, GI + 4 * mu, NG + 4 * mu, T)
    A("s_waitcnt lgkmcnt(0)\ns_barrier")
    def data_reads(base):
        for c in range(2):
            for mu in range(2):
                for kap in range(2):
                    for jh in range(2):
                        r = DA + 16 * c + 8 * mu + 4 * kap + 2 * jh
                        A(f"ds_read_b64_tr_b16 {v(r,2)}, v{TA} offset:{base+4096*c+2048*kap+256*jh+8*mu}")
    data_reads(0)
    A(f"v_lshlrev_b32 v{U}, 3, v{G}\nv_mul_u32_u24 v{U}, v{U}, v{K1}")
    for j in range(8):
        A(f"""
        v_cvt_f32_u32 v{T}, v{U}
        v_add_u32 v{U}, v{U}, v{K1}
        v_mul_f32 v{T}, {hex(np_f(1.0/2048))}, v{T}
        v_cos_f32 v{TC+j}, v{T}
        v_sin_f32 v{TS+j}, v{T}
        """)
    def da(c, mu, kap): return DA + 16 * c + 8 * mu + 4 * kap
    def stage64(s1, s2, s3, s4):
        for mu in range(2):
            for kap in range(2):
                A(MF(DR + 4 * mu, da(0, mu, kap), s1 + 4 * kap, DR + 4 * mu if kap else None))
                A(MF(DI + 4 * mu, da(0, mu, kap), s3 + 4 * kap, DI + 4 * mu if kap else None))
        for mu in range(2):
            for kap in range(2):
                A(MF(DR + 4 * mu, da(1, mu, kap), s2 + 4 * kap, DR + 4 * mu))
                A(MF(DI + 4 * mu, da(1, mu, kap), s4 + 4 * kap, DI + 4 * mu))
    def cmul(cs, sn, sign):
        for j in range(8):
            r, i_ = DR + j, DI + j
            A(f"v_mul_f32 v{U+j}, v{r}, v{cs(j)}\nv_mul_f32 v{U+8+j}, v{i_}, v{cs(j)}")
        for j in range(8):
            r, i_ = DR + j, DI + j
            if sign > 0: A(f"v_fma_f32 v{U+j}, -v{i_}, v{sn(j)}, v{U+j}\nv_fma_f32 v{U+8+j}, v{r}, v{sn(j)}, v{U+8+j}")
            else:        A(f"v_fma_f32 v{U+j}, v{i_}, v{sn(j)}, v{U+j}\nv_fma_f32 v{U+8+j}, -v{r}, v{sn(j)}, v{U+8+j}")
        for p in range(4):
            A(f"v_cvt_pk_bf16_f32 v{BR+p}, v{U+2*p}, v{U+2*p+1}\nv_cvt_pk_bf16_f32 v{BI+p}, v{U+8+2*p}, v{U+8+2*p+1}")
    def stage32(s1, s2, s3, s4):
        for mu in range(2):
            A(MF(DR + 4 * mu, s1 + 4 * mu, BR, None)); A(MF(DI + 4 * mu, s3 + 4 * mu, BR, None))
        for mu in range(2):
            A(MF(DR + 4 * mu, s2 + 4 * mu, BI, DR + 4 * mu)); A(MF(DI + 4 * mu, s4 + 4 * mu, BI, DI + 4 * mu))
    A("s_waitcnt lgkmcnt(0)")
    stage64(FR, NF, FI, FR)
    cmul(lambda j: TC + j, lambda j: TS + j, -1)
    stage32(GR, NG, GI, GR)
    A("s_waitcnt vmcnt(0)")
    WR = DA; WI = DA + 8
    for j in range(8):
        A(f"v_lshlrev_b32 v{WR+j}, 16, v{WT+j}\nv_and_b32 v{WI+j}, 0xffff0000, v{WT+j}")
    cmul(lambda j: WR + j, lambda j: WI + j, +1)
    stage32(GR, GI, NG, GR)
    cmul(lambda j: TC + j, lambda j: TS + j, +1)
    A(f"""
    ds_write_b128 v{XA}, {v(BR,4)}
    ds_write_b128 v{XA}, {v(BI,4)} offset:4096
    s_waitcnt lgkmcnt(0)
    s_barrier
    """)
    data_reads(8192)
    A("s_waitcnt lgkmcnt(0)")
    stage64(FR, FI, NF, FR)
    A(f"""
    v_lshlrev_b32 v{T}, 6, v{K1}
    v_lshl_add_u32 v{T}, v{G}, 4, v{T}
    s_lshl_b32 s{S_T}, s2, 12
    v_add_u32 v{VR}, s{S_T}, v{T}
    v_add_u32 v{T+1}, {224*4096}, v{VR}
    v_cmp_eq_u32 vcc, 0x40000000, v{VI}
    v_cndmask_b32 v{VI}, v{T+1}, v{VI}, vcc
    """)
    for p in range(4):
        A(f"v_cvt_pk_bf16_f32 v{BR+p}, v{DR+2*p}, v{DR+2*p+1}\nv_cvt_pk_bf16_f32 v{BI+p}, v{DI+2*p}, v{DI+2*p+1}")
    A(f"""
    buffer_store_dwordx4 {v(BR,4)}, v{VR}, s[{S_OUT}:{S_OUT+3}], 0 offen
    buffer_store_dwordx4 {v(BI,4)}, v{VI}, s[{S_OUT}:{S_OUT+3}], 0 offen
    s_waitcnt vmcnt(0)
    """)
    A.label(f"{name}_end")
    A("s_endpgm")
    return A.L

import ka
def allred_g(A, op, x, t):
    A(f"""
    v_mov_b32 v{t}, v{x}
    v_permlane16_swap_b32 v{x}, v{t}
    {op} v{x}, v{x}, v{t}
    v_mov_b32 v{t}, v{x}
    v_permlane32_swap_b32 v{x}, v{t}
    {op} v{x}, v{x}, v{t}
    """)

def gen_kb3(name):
    A = Asm()
    entry(A, name, 64)
    S_G = 16; S_Z = 20; S_IN = 24; S_OUT = 28; S_XI = 32; S_B = 36; S_H = 37; S_MU = 38
    srd(A, S_G, S_WS, L.GI, 28 * 14 * 1024)
    srd(A, S_Z, S_WS, L.ZI, 448 * 4096)
    sel_ptr(A, S_IN, S_LAYER, None, L.X1, L.X3, L.XB, S_T)
    A(f"""
    s_load_dwordx2 s[{S_T}:{S_T+1}], s[0:1], 80
    s_add_u32 s{S_OUT}, s{S_WS}, {L.X2}
    s_addc_u32 s{S_OUT+1}, s{S_WS+1}, 0
    s_waitcnt lgkmcnt(0)
    s_cmp_eq_u32 s{S_LAYER}, 0
    s_cselect_b32 s{S_OUT}, s{S_OUT}, s{S_T}
    s_cselect_b32 s{S_OUT+1}, s{S_OUT+1}, s{S_T+1}
    s_mov_b32 s{S_OUT+2}, {L.XB}
    s_mov_b32 s{S_OUT+3}, 0x20000
    """)
    srd(A, S_XI, S_WS, L.XI + L.LS, L.XB)
    LANE = 1; LR = 2; TA = 3; RA = 4; RH = 6; ZA = 8; N = 9; G = 10; T = 11
    BF = 16; RES = [32, 104]; ACC = ka.ACC; acc = ka.acc; Wu3 = lambda sl, kb: (a(4 * (kb * 7 + sl), 4) if kb * 7 + sl < 64 else v(120 + 4 * (kb * 7 + sl - 64), 4))
    A(f"""
    v_and_b32 v{LANE}, 63, v0
    v_lshlrev_b32 v{LR}, 4, v{LANE}
    v_and_b32 v{N}, 15, v{LANE}
    v_lshrrev_b32 v{G}, 4, v{LANE}
    v_lshrrev_b32 v{T}, 2, v{LANE}
    s_mul_i32 s{S_T}, s{S_WAVE}, 112
    v_add_u32 v{T}, s{S_T}, v{T}
    v_lshlrev_b32 v{T}, 12, v{T}
    v_and_b32 v{T+1}, 3, v{LANE}
    v_lshl_add_u32 v{T}, v{T+1}, 4, v{T}
    s_lshl_b32 s{S_T}, s2, 6
    v_add_u32 v{ZA}, s{S_T}, v{T}
    s_mul_i32 s{S_T}, s{S_WAVE}, 7168
    """)
    for i in range(7):
        A(f"s_mov_b32 m0, s{S_T}\ns_add_u32 s{S_T}, s{S_T}, 1024")
        A(f"buffer_load_dwordx4 v{ZA}, s[{S_Z}:{S_Z+3}], 0 offen lds")
        if i < 6: A(f"v_add_u32 v{ZA}, 65536, v{ZA}")
    A(f"""
    s_mul_i32 s{S_B}, s{S_WAVE}, 7
    s_add_u32 s{S_B}, s{S_B}, 1
    s_lshr_b32 s{S_B}, s{S_B}, 1               ; [0,4,7,11]
    s_lshr_b32 s{S_H}, s{S_WAVE}, 1
    s_mul_i32 s{S_H}, s{S_H}, 7
    s_add_u32 s{S_H}, s{S_H}, 3                ; [3,3,10,10]
    s_and_b32 s{S_T+2}, s{S_WAVE}, 1
    v_lshrrev_b32 v{T}, 2, v{N}
    v_lshlrev_b32 v{T}, 3, v{T}
    v_and_b32 v{T+1}, 3, v{N}
    v_add_u32 v{T}, v{T}, v{T+1}
    s_lshl_b32 s{S_T}, s2, 5
    v_add_u32 v{T}, s{S_T}, v{T}
    v_mul_u32_u24 v{T}, 896, v{T}
    v_lshl_add_u32 v{T}, v{G}, 4, v{T}
    s_lshl_b32 s{S_T}, s{S_B}, 6
    v_add_u32 v{RA}, s{S_T}, v{T}
    v_add_u32 v{RA+1}, {4*896}, v{RA}
    s_lshl_b32 s{S_T}, s{S_H}, 6
    s_lshl_b32 s{S_T+1}, s{S_T+2}, 3
    s_add_u32 s{S_T}, s{S_T}, s{S_T+1}
    v_add_u32 v{RH}, s{S_T}, v{T}
    v_add_u32 v{RH+1}, {4*896}, v{RH}
    """)
    for nu in range(2):
        for b in range(3):
            A(f"buffer_load_dwordx4 {v(RES[nu]+4*b,4)}, v{RA+nu}, s[{S_IN}:{S_IN+3}], 0 offen offset:{64*b}")
        A(f"buffer_load_dwordx2 {v(RES[nu]+12,2)}, v{RH+nu}, s[{S_IN}:{S_IN+3}], 0 offen")
    A(f"""
    s_mul_i32 s{S_T}, s{S_B}, {2*14336}
    s_mul_i32 s{S_T+1}, s{S_H}, 2
    s_add_u32 s{S_T+1}, s{S_T+1}, s{S_T+2}
    s_mul_i32 s{S_T+1}, s{S_T+1}, 14336
    """)
    VA = ACC
    for i in range(6): A(f"s_add_u32 s{S_T+3}, s{S_T}, {i*14336}\nv_add_u32 v{VA+i}, s{S_T+3}, v{LR}")
    A(f"v_add_u32 v{VA+6}, s{S_T+1}, v{LR}")
    for kb in range(14):
        if kb % 4 == 0: A(f"s_mov_b32 s{S_T+4}, {kb*1024}")
        for sl in range(7):
            A(f"buffer_load_dwordx4 {Wu3(sl,kb)}, v{VA+sl}, s[{S_G}:{S_G+3}], s{S_T+4} offen offset:{(kb%4)*1024}")
    A(f"""
    v_lshrrev_b32 v{T}, 2, v{N}
    v_lshl_add_u32 v{T}, v{G}, 3, v{T}
    v_lshlrev_b32 v{T}, 6, v{T}
    v_and_b32 v{T+1}, 3, v{N}
    v_lshl_add_u32 v{TA}, v{T+1}, 4, v{T}
    s_waitcnt vmcnt(63)
    s_barrier
    """)
    def rd(kb):
        for nu in range(2):
            for jh in range(2):
                A(f"ds_read_b64_tr_b16 {v(BF+8*(kb&1)+4*nu+2*jh,2)}, v{TA} offset:{2048*kb+256*jh+8*nu}")
    rd(0); rd(1)
    for kb in range(14):
        left = 98 - 7 * (kb + 1)
        A(f"s_waitcnt vmcnt({min(left,63)}) lgkmcnt({4 if kb < 13 else 0})")
        for sl in range(7):
            for nu in range(2):
                d = v(acc(sl, nu), 4)
                A(f"v_mfma_f32_16x16x32_bf16 {d}, {Wu3(sl,kb)}, {v(BF+8*(kb&1)+4*nu,4)}, {d if kb else 0}")
        if kb + 2 < 14: rd(kb + 2)
    TM = 120
    for nu in range(2):
        for sl in range(7):
            d = acc(sl, nu)
            r = RES[nu] + (4 * (sl >> 1) + 2 * (sl & 1) if sl < 6 else 12)
            A(f"""
            v_lshlrev_b32 v{TM}, 16, v{r}
            v_and_b32 v{TM+1}, 0xffff0000, v{r}
            v_lshlrev_b32 v{TM+2}, 16, v{r+1}
            v_and_b32 v{TM+3}, 0xffff0000, v{r+1}
            v_pk_add_f32 {v(d,2)}, {v(d,2)}, {v(TM,2)}
            v_pk_add_f32 {v(d+2,2)}, {v(d+2,2)}, {v(TM+2,2)}
            v_cvt_pk_bf16_f32 v{r}, v{d}, v{d+1}
            v_cvt_pk_bf16_f32 v{r+1}, v{d+2}, v{d+3}
            """)
        for b in range(3):
            A(f"buffer_store_dwordx4 {v(RES[nu]+4*b,4)}, v{RA+nu}, s[{S_OUT}:{S_OUT+3}], 0 offen offset:{64*b}")
        A(f"buffer_store_dwordx2 {v(RES[nu]+12,2)}, v{RH+nu}, s[{S_OUT}:{S_OUT+3}], 0 offen")
    A(f"s_cmp_lg_u32 s{S_LAYER}, 0\ns_cbranch_scc1 {name}_fin")
    ST = 124
    for nu in range(2):
        for sl in range(7):
            d = acc(sl, nu)
            r = RES[nu] + (4 * (sl >> 1) + 2 * (sl & 1) if sl < 6 else 12)
            A(f"""
            v_lshlrev_b32 v{d}, 16, v{r}
            v_and_b32 v{d+1}, 0xffff0000, v{r}
            v_lshlrev_b32 v{d+2}, 16, v{r+1}
            v_and_b32 v{d+3}, 0xffff0000, v{r+1}
            """)
        pr = [acc(sl, nu) + 2 * h for sl in range(7) for h in range(2)]
        A(f"v_pk_add_f32 {v(TM,2)}, {v(pr[0],2)}, {v(pr[1],2)}")
        for p in pr[2:]: A(f"v_pk_add_f32 {v(TM,2)}, {v(TM,2)}, {v(p,2)}")
        m = ST + 2 * nu
        A(f"v_add_f32 v{m}, v{TM}, v{TM+1}")
        allred_g(A, "v_add_f32", m, TM)
        A(f"v_mul_f32 v{m}, {hex(np_f(1.0/112))}, v{m}\nv_sub_f32 v{TM+2}, 0, v{m}\nv_mov_b32 v{TM+3}, v{TM+2}")
        A(f"v_pk_add_f32 {v(TM+4 if False else TM,2)}, {v(pr[0],2)}, {v(TM+2,2)}\nv_pk_mul_f32 {v(ST+4,2)}, {v(TM,2)}, {v(TM,2)}")
        for p in pr[1:]:
            A(f"v_pk_add_f32 {v(TM,2)}, {v(p,2)}, {v(TM+2,2)}\nv_pk_fma_f32 {v(ST+4,2)}, {v(TM,2)}, {v(TM,2)}, {v(ST+4,2)}")
        A(f"v_add_f32 v{m+1}, v{ST+4}, v{ST+5}")
        allred_g(A, "v_add_f32", m + 1, TM)
    A(f"""
    s_lshl_b32 s{S_T}, s{S_WAVE}, 8
    s_add_u32 s{S_T}, s{S_T}, 32768
    v_lshlrev_b32 v{TM}, 3, v{N}
    v_add_u32 v{TM+1}, s{S_T}, v{TM}
    ds_write_b64 v{TM+1}, {v(ST,2)}
    ds_write_b64 v{TM+1}, {v(ST+2,2)} offset:128
    v_add_u32 v{TM}, 32768, v{TM}
    s_waitcnt lgkmcnt(0)
    s_barrier
    """)
    E = 132
    for nu in range(2):
        for w in range(4):
            A(f"ds_read_b64 {v(E+8*nu+2*w,2)}, v{TM} offset:{256*w+128*nu}")
    A("s_waitcnt lgkmcnt(0)")
    for nu in range(2):
        e = E + 8 * nu; m = ST + 2 * nu
        A(f"""
        v_add_f32 v{TM+2}, v{e}, v{e+2}
        v_add_f32 v{TM+3}, v{e+4}, v{e+6}
        v_add_f32 v{TM+2}, v{TM+2}, v{TM+3}
        v_mul_f32 v{m}, 0.25, v{TM+2}               ; mean
        v_add_f32 v{TM+2}, v{e+1}, v{e+3}
        v_add_f32 v{TM+3}, v{e+5}, v{e+7}
        v_add_f32 v{m+1}, v{TM+2}, v{TM+3}
        v_mov_b32 v{TM+3}, 0
        """)
        for w in range(4):
            A(f"v_sub_f32 v{TM+2}, v{e+2*w}, v{m}\nv_fmac_f32 v{TM+3}, v{TM+2}, v{TM+2}")
        A(f"""
        v_fmac_f32 v{m+1}, {hex(np_f(112.0))}, v{TM+3}
        v_mov_b32 v{TM+2}, {hex(np_f(1e-5))}
        v_fmac_f32 v{TM+2}, {hex(np_f(1.0/448))}, v{m+1}
        v_rsq_f32 v{TM+2}, v{TM+2}
        s_nop 0
        v_mov_b32 v{TM+3}, v{TM+2}
        v_sub_f32 v{TM+4}, 0, v{m}
        v_mov_b32 v{TM+5}, v{TM+4}
        """)
        for sl in range(7):
            d = acc(sl, nu)
            r = RES[nu] + (4 * (sl >> 1) + 2 * (sl & 1) if sl < 6 else 12)
            A(f"""
            v_pk_add_f32 {v(d,2)}, {v(d,2)}, {v(TM+4,2)}
            v_pk_add_f32 {v(d+2,2)}, {v(d+2,2)}, {v(TM+4,2)}
            v_pk_mul_f32 {v(d,2)}, {v(d,2)}, {v(TM+2,2)}
            v_pk_mul_f32 {v(d+2,2)}, {v(d+2,2)}, {v(TM+2,2)}
            v_cvt_pk_bf16_f32 v{r}, v{d}, v{d+1}
            v_cvt_pk_bf16_f32 v{r+1}, v{d+2}, v{d+3}
            """)
    A(f"""
    s_mul_i32 s{S_T}, s2, 28672
    s_lshl_b32 s{S_T+1}, s{S_B}, 10
    s_add_u32 s{S_T+1}, s{S_T+1}, s{S_T}
    v_add_u32 v{TM}, s{S_T+1}, v{LR}
    v_add_u32 v{TM+1}, 14336, v{TM}
    s_lshl_b32 s{S_T+1}, s{S_H}, 10
    s_add_u32 s{S_T+1}, s{S_T+1}, s{S_T}
    s_and_b32 s{S_T+2}, s{S_WAVE}, 1
    s_lshl_b32 s{S_T+2}, s{S_T+2}, 3
    s_add_u32 s{S_T+1}, s{S_T+1}, s{S_T+2}
    v_add_u32 v{TM+2}, s{S_T+1}, v{LR}
    v_add_u32 v{TM+3}, 14336, v{TM+2}
    """)
    for nu in range(2):
        for b in range(3):
            A(f"buffer_store_dwordx4 {v(RES[nu]+4*b,4)}, v{TM+nu}, s[{S_XI}:{S_XI+3}], 0 offen offset:{1024*b}")
        A(f"buffer_store_dwordx2 {v(RES[nu]+12,2)}, v{TM+2+nu}, s[{S_XI}:{S_XI+3}], 0 offen")
    A.label(f"{name}_fin")
    A("s_waitcnt vmcnt(0)")
    A.label(f"{name}_end")
    A("s_endpgm")
    return A.L
```

```python
from asm import *
import layout as L
from ka import entry, srd, S_WS, S_WAVE, S_T
from kb import np_f, dpp_allred8, ln_load
import math

def ptr_srd(A, r, slot, size):
    A(f"s_load_dwordx2 s[{r}:{r+1}], s[0:1], {slot}")
    A(f"s_mov_b32 s{r+2}, {size}\ns_mov_b32 s{r+3}, 0x20000")

def gen_prep(name):
    A = Asm()
    entry(A, name, 256)
    S_L = 16; S_R = 20; S_O = 24; S_A = 28; S_B = 32; S_C = 36
    S_TYPE = 40; S_H = 41; S_KH = 42; S_Q = 43; S_K = 44; S_K2 = 45; S_PT = 46
    LANE = 1; LR = 2; N = 3; G = 4; LA = 5; TA = 7; OA = 8; T = 10
    BF = 16
    AF = 80
    AC = 96
    U = 112
    A(f"""
    v_and_b32 v{LANE}, 63, v0
    v_lshlrev_b32 v{LR}, 4, v{LANE}
    v_and_b32 v{N}, 15, v{LANE}
    v_lshrrev_b32 v{G}, 4, v{LANE}
    s_and_b32 s{S_T}, s2, 7
    s_lshr_b32 s{S_T+1}, s2, 3
    s_lshr_b32 s{S_T+2}, s{S_T+1}, 3
    s_lshl_b32 s{S_T+2}, s{S_T+2}, 3
    s_add_u32 s{S_T}, s{S_T}, s{S_T+2}          ; product 0..31
    s_lshr_b32 s{S_TYPE}, s{S_T}, 4
    s_and_b32 s{S_H}, s{S_T}, 15
    s_bfe_u32 s{S_KH}, s{S_T+1}, 0x10002
    s_and_b32 s{S_Q}, s{S_T+1}, 3
    """)
    A(f"""
    s_load_dwordx2 s[{S_L}:{S_L+1}], s[0:1], 16
    s_load_dwordx2 s[{S_PT}:{S_PT+1}], s[0:1], 32
    s_load_dwordx2 s[{S_R}:{S_R+1}], s[0:1], 24
    s_load_dwordx2 s[{S_PT+2}:{S_PT+3}], s[0:1], 40
    s_waitcnt lgkmcnt(0)
    s_cmp_eq_u32 s{S_TYPE}, 0
    s_cselect_b32 s{S_L}, s{S_L}, s{S_PT}
    s_cselect_b32 s{S_L+1}, s{S_L+1}, s{S_PT+1}
    s_cselect_b32 s{S_R}, s{S_R}, s{S_PT+2}
    s_cselect_b32 s{S_R+1}, s{S_R+1}, s{S_PT+3}
    s_mov_b32 s{S_L+2}, {448*8192}
    s_mov_b32 s{S_L+3}, 0x20000
    s_mov_b32 s{S_R+2}, {448*8192}
    s_mov_b32 s{S_R+3}, 0x20000
    s_mul_i32 s{S_T}, s{S_TYPE}, {L.VI-L.AI}
    s_add_u32 s{S_T}, s{S_T}, {L.AI}
    s_add_u32 s{S_O}, s{S_WS}, s{S_T}
    s_addc_u32 s{S_O+1}, s{S_WS+1}, 0
    s_mov_b32 s{S_O+2}, {L.IMG}
    s_mov_b32 s{S_O+3}, 0x20000
    v_lshrrev_b32 v{T}, 2, v{N}
    v_lshlrev_b32 v{T}, 3, v{T}
    v_and_b32 v{T+1}, 3, v{N}
    v_add_u32 v{T}, v{T}, v{T+1}
    v_lshlrev_b32 v{T}, 13, v{T}
    v_lshl_add_u32 v{T}, v{G}, 4, v{T}
    s_lshl_b32 s{S_T}, s{S_H}, 9
    s_mul_i32 s{S_T+1}, s{S_KH}, {7*32*8192}
    s_add_u32 s{S_T}, s{S_T}, s{S_T+1}
    v_add_u32 v{LA}, s{S_T}, v{T}
    v_add_u32 v{LA+1}, {4*8192}, v{LA}
    """)
    def a_dma(kbs, lds0):
        for kb in kbs:
            for mu in range(2):
                for e2 in range(2):
                    A(f"""
                    s_lshl_b32 s{S_T}, s{S_WAVE}, 1
                    s_add_u32 s{S_T}, s{S_T}, {e2}
                    s_lshl_b32 s{S_T+1}, s{S_T}, 10
                    s_add_u32 s{S_T+1}, s{S_T+1}, {lds0 + ((kb - kbs[0]) * 2 + mu) * 8192}
                    s_mov_b32 m0, s{S_T+1}
                    s_lshl_b32 s{S_T}, s{S_T}, 6
                    s_add_u32 s{S_T}, s{S_T}, {kb*32*8192}
                    buffer_load_dwordx4 v{LA+mu}, s[{S_L}:{S_L+3}], s{S_T} offen lds
                    """)
    lvo = A.uniq(name + "_vo"); lb = A.uniq(name + "_bd")
    A(f"s_cmp_lg_u32 s{S_TYPE}, 0\ns_cbranch_scc1 {lvo}")
    A(f"""
    s_mul_i32 s{S_T}, s{S_Q}, 7
    s_lshl_b32 s{S_T+1}, s{S_WAVE}, 1
    s_add_u32 s{S_T}, s{S_T}, s{S_T+1}
    s_lshl_b32 s{S_T}, s{S_T}, 4
    v_add_u32 v{T}, s{S_T}, v{N}
    v_lshlrev_b32 v{T}, 13, v{T}
    v_lshl_add_u32 v{T}, v{G}, 4, v{T}
    s_lshl_b32 s{S_T}, s{S_H}, 9
    v_add_u32 v{T}, s{S_T}, v{T}
    v_add_u32 v{T+1}, {16*8192}, v{T}
    """)
    for t in range(2):
        for es in range(8):
            A(f"buffer_load_dwordx4 {v(BF+32*t+4*es,4)}, v{T+t}, s[{S_R}:{S_R+3}], 0 offen offset:{64*es}")
    a_dma(list(range(6)), 0)
    A(f"s_branch {lb}")
    A.label(lvo)
    A(f"""
    v_lshrrev_b32 v{T}, 2, v{LANE}
    s_lshl_b32 s{S_T}, s{S_H}, 8
    v_add_u32 v{T}, s{S_T}, v{T}
    v_mul_u32_u24 v{T}, 896, v{T}
    v_and_b32 v{T+1}, 3, v{LANE}
    v_lshl_add_u32 v{T}, v{T+1}, 4, v{T}
    s_mul_i32 s{S_T}, s{S_Q}, 224
    s_lshl_b32 s{S_T+1}, s{S_WAVE}, 6
    s_add_u32 s{S_T}, s{S_T}, s{S_T+1}
    v_add_u32 v{T}, s{S_T}, v{T}
    s_lshl_b32 s{S_T}, s{S_WAVE}, 14
    s_add_u32 s{S_T}, s{S_T}, 98304
    """)
    for i in range(16):
        A(f"s_mov_b32 m0, s{S_T}\ns_add_u32 s{S_T}, s{S_T}, 1024")
        A(f"buffer_load_dwordx4 v{T}, s[{S_R}:{S_R+3}], 0 offen lds")
        if i < 15: A(f"v_add_u32 v{T}, {16*896}, v{T}")
    a_dma(list(range(6)), 0)
    A(f"""
    v_lshrrev_b32 v{T}, 2, v{N}
    v_lshl_add_u32 v{T}, v{G}, 3, v{T}
    v_lshlrev_b32 v{T}, 6, v{T}
    v_and_b32 v{T+1}, 3, v{N}
    v_lshl_add_u32 v{T}, v{T+1}, 3, v{T}
    s_lshl_b32 s{S_T}, s{S_WAVE}, 14
    s_add_u32 s{S_T}, s{S_T}, 98304
    v_add_u32 v{TA}, s{S_T}, v{T}
    s_waitcnt vmcnt(24)
    """)
    for t in range(2):
        for es in range(8):
            for jh in range(2):
                A(f"ds_read_b64_tr_b16 {v(BF+32*t+4*es+2*jh,2)}, v{TA} offset:{2048*es+256*jh+32*t}")
    A("s_waitcnt lgkmcnt(0)")
    A.label(lb)
    A("s_barrier")
    a_dma([6], 98304)

    ltab = A.uniq(name + "_tabend"); lg = A.uniq(name + "_tabg"); lst = A.uniq(name + "_tabst")
    srd(A, S_A, S_WS, L.FI, 2 * 392 * 1024)
    assert L.GI == L.FI + 392 * 1024
    RH = U; DD = U + 8; V = U + 16; W = U + 24
    A(f"""
    s_lshl_b32 s{S_K}, s2, 2
    s_add_u32 s{S_K}, s{S_K}, s{S_WAVE}
    s_cmp_ge_u32 s{S_K}, 784
    s_cbranch_scc1 {ltab}
    s_cmp_ge_u32 s{S_K}, 392
    s_cselect_b32 s{S_T}, 392, 0
    s_sub_u32 s{S_T}, s{S_K}, s{S_T}
    s_mul_i32 s{S_T+1}, s{S_T}, 4682
    s_lshr_b32 s{S_T+1}, s{S_T+1}, 16            ; tile = u / 14
    s_mul_i32 s{S_T+2}, s{S_T+1}, 14
    s_sub_u32 s{S_T+2}, s{S_T}, s{S_T+2}         ; kb
    s_lshl_b32 s{S_T+2}, s{S_T+2}, 5
    v_lshlrev_b32 v{T}, 3, v{G}
    v_add_u32 v{T}, s{S_T+2}, v{T}               ; k = 32 kb + 8 g
    s_cmp_ge_u32 s{S_K}, 392
    s_cbranch_scc1 {lg}
    s_lshl_b32 s{S_T+1}, s{S_T+1}, 4
    v_add_u32 v{T+1}, s{S_T+1}, v{N}
    """)
    for j in range(8): A(f"v_mov_b32 v{RH+j}, v{T+1}\nv_add_u32 v{DD+j}, {j}, v{T}")
    A(f"s_mov_b32 s{S_K2}, 0\ns_branch {lst}")
    A.label(lg)
    A(f"""
    ; G: d = 32 (T>>1) + 8 (m>>2) + 4 (T&1) + (m&3) , rho = k + j
    s_lshr_b32 s{S_T+2}, s{S_T+1}, 1
    s_lshl_b32 s{S_T+2}, s{S_T+2}, 5
    s_and_b32 s{S_T+1}, s{S_T+1}, 1
    s_lshl_b32 s{S_T+1}, s{S_T+1}, 2
    s_add_u32 s{S_T+1}, s{S_T+1}, s{S_T+2}
    v_lshrrev_b32 v{T+1}, 2, v{N}
    v_lshlrev_b32 v{T+1}, 3, v{T+1}
    v_and_b32 v{T+2}, 3, v{N}
    v_add_u32 v{T+1}, v{T+1}, v{T+2}
    v_add_u32 v{T+1}, s{S_T+1}, v{T+1}
    """)
    for j in range(8): A(f"v_mov_b32 v{DD+j}, v{T+1}\nv_add_u32 v{RH+j}, {j}, v{T}")
    A(f"s_mov_b32 s{S_K2}, 1")
    A.label(lst)
    A(f"""
    s_cmp_eq_u32 s{S_K2}, 0
    s_cselect_b32 s{S_T}, {hex(np_f(1.0))}, {hex(np_f(2.0/448))}
    s_cselect_b32 s{S_T+1}, {hex(np_f(1.0))}, {hex(np_f(1.0/448))}
    s_mov_b32 s{S_T+2}, {hex(np_f(1.0/448))}
    s_mov_b32 s{S_T+3}, {hex(np_f(-448.0))}
    s_movk_i32 s{S_T+4}, 224
    """)
    for j in range(8):
        A(f"""
        v_cmp_lt_u32 vcc, s{S_T+4}, v{RH+j}
        v_subrev_u32 v{T}, s{S_T+4}, v{RH+j}
        v_cndmask_b32 v{T}, v{RH+j}, v{T}, vcc          ; bin
        v_mov_b32 v{T+1}, 0x3e800000
        v_cndmask_b32 v{T+1}, 0, v{T+1}, vcc            ; phase
        v_mul_u32_u24 v{T+2}, v{T}, v{DD+j}
        v_cvt_f32_u32 v{T+2}, v{T+2}
        v_mul_f32 v{T+3}, s{S_T+2}, v{T+2}
        v_floor_f32 v{T+3}, v{T+3}
        v_fma_f32 v{T+2}, v{T+3}, s{S_T+3}, v{T+2}
        v_fma_f32 v{T+2}, v{T+2}, s{S_T+2}, v{T+1}
        v_cos_f32 v{V+j}, v{T+2}
        v_cmp_eq_u32 vcc, 0, v{RH+j}
        v_cmp_eq_u32 s[{S_PT}:{S_PT+1}], s{S_T+4}, v{RH+j}
        s_or_b64 vcc, vcc, s[{S_PT}:{S_PT+1}]
        v_mov_b32 v{T+4}, s{S_T}
        v_mov_b32 v{T+5}, s{S_T+1}
        v_cndmask_b32 v{T+4}, v{T+4}, v{T+5}, vcc
        v_mul_f32 v{V+j}, v{V+j}, v{T+4}
        """)
    for p in range(4): A(f"v_cvt_pk_bf16_f32 v{W+p}, v{V+2*p}, v{V+2*p+1}")
    A(f"""
    s_lshl_b32 s{S_T}, s{S_K}, 10
    buffer_store_dwordx4 {v(W,4)}, v{LR}, s[{S_A}:{S_A+3}], s{S_T} offen
    """)
    A.label(ltab)

    for l in range(2):
        for (base, size) in ((L.MI[l] + L.MB, 64 * L.MB), (L.PBUF[l], L.PB_SZ)):
            srd(A, S_B, S_WS, base, size)
            per = size // 256
            assert per % 16 == 0 and per // 16 <= 256
            A(f"""
            s_mul_i32 s{S_T}, s2, {per}
            v_lshlrev_b32 v{T}, 4, v0
            v_add_u32 v{T}, s{S_T}, v{T}
            v_mov_b32 v{T+1}, 0x40000000
            v_cmp_gt_u32 vcc, {per//16}, v0
            v_cndmask_b32 v{T}, v{T+1}, v{T}, vcc
            v_mov_b32 v{W}, -1
            v_mov_b32 v{W+1}, -1
            v_mov_b32 v{W+2}, -1
            v_mov_b32 v{W+3}, -1
            buffer_store_dwordx4 {v(W,4)}, v{T}, s[{S_B}:{S_B+3}], 0 offen
            """)
    lct = A.uniq(name + "_ct")
    A(f"""
    s_sub_u32 s{S_T}, s2, 64
    s_cmp_ge_u32 s{S_T}, 2
    s_cbranch_scc1 {lct}
    s_mul_i32 s{S_T}, s{S_T}, {L.CT[1]-L.CT[0]}
    s_add_u32 s{S_T}, s{S_T}, {L.CT[0]}
    s_add_u32 s{S_B}, s{S_WS}, s{S_T}
    s_addc_u32 s{S_B+1}, s{S_WS+1}, 0
    s_mov_b32 s{S_B+2}, 16384
    s_mov_b32 s{S_B+3}, 0x20000
    v_lshlrev_b32 v{T}, 6, v0
    v_mov_b32 v{W}, 0
    v_mov_b32 v{W+1}, 0
    v_mov_b32 v{W+2}, 0
    v_mov_b32 v{W+3}, 0
    """)
    for i in range(4): A(f"buffer_store_dwordx4 {v(W,4)}, v{T}, s[{S_B}:{S_B+3}], 0 offen offset:{16*i}")
    A.label(lct)
    lm0 = A.uniq(name + "_m0")
    A(f"""
    s_sub_u32 s{S_T}, s2, 66
    s_cmp_ge_u32 s{S_T}, 2
    s_cbranch_scc1 {lm0}
    s_mul_i32 s{S_T}, s{S_T}, {L.MI[1]-L.MI[0]}
    s_add_u32 s{S_T}, s{S_T}, {L.MI[0]}
    s_add_u32 s{S_B}, s{S_WS}, s{S_T}
    s_addc_u32 s{S_B+1}, s{S_WS+1}, 0
    s_mov_b32 s{S_B+2}, {L.MB}
    s_mov_b32 s{S_B+3}, 0x20000
    """)
    ptr_srd(A, S_C, 8, 7168)
    A("s_waitcnt lgkmcnt(0)")
    for i in range(2):
        A(f"""
        v_add_u32 v{T}, {256*i}, v0
        v_lshrrev_b32 v{T+1}, 6, v{T}
        v_lshlrev_b32 v{T+1}, 7, v{T+1}
        v_bfe_u32 v{T+2}, v{T}, 4, 2
        v_lshl_add_u32 v{T+1}, v{T+2}, 5, v{T+1}
        v_bfe_u32 v{T+2}, v{T}, 3, 1
        v_lshl_add_u32 v{T+1}, v{T+2}, 2, v{T+1}
        v_and_b32 v{T+2}, 7, v{T}
        v_mul_u32_u24 v{T+2}, 896, v{T+2}
        v_add_u32 v{T+1}, v{T+1}, v{T+2}
        v_mov_b32 v{T+3}, 0x40000000
        v_cmp_gt_u32 vcc, 448, v{T}
        v_cndmask_b32 v{T+1}, v{T+3}, v{T+1}, vcc
        v_lshlrev_b32 v{T+2}, 4, v{T}
        v_cndmask_b32 v{T+2}, v{T+3}, v{T+2}, vcc
        """)
        for p in range(4): A(f"buffer_load_dword v{W+p}, v{T+1}, s[{S_C}:{S_C+3}], 0 offen offset:{8*p}")
        A(f"s_waitcnt vmcnt(0)\nbuffer_store_dwordx4 {v(W,4)}, v{T+2}, s[{S_B}:{S_B+3}], 0 offen")
    A.label(lm0)

    ptr_srd(A, S_A, 64, 2048 * 450)
    ptr_srd(A, S_B, 72, 2048 * 450)
    srd(A, S_C, S_WS, L.WT, 225 * 8192)
    A(f"""
    s_waitcnt lgkmcnt(0)
    s_lshr_b32 s{S_T}, s2, 2                     ; k1
    s_and_b32 s{S_T+1}, s2, 3                    ; g
    s_lshl_b32 s{S_T+2}, s{S_T+1}, 9             ; 64 * 8 g
    s_add_u32 s{S_T+2}, s{S_T+2}, s{S_T}
    s_mul_i32 s{S_T+2}, s{S_T+2}, 450
    v_lshlrev_b32 v{T}, 1, v0
    v_mov_b32 v{T+1}, 0x40000000
    v_cmp_gt_u32 vcc, 225, v0
    v_cndmask_b32 v{T}, v{T+1}, v{T}, vcc
    ; destination: b * 8192 + (k1 >> 4) * 2048 + ((k1 & 15) + 16 g) * 32
    s_lshr_b32 s{S_T+3}, s{S_T}, 4
    s_lshl_b32 s{S_T+3}, s{S_T+3}, 11
    s_and_b32 s{S_T+4}, s{S_T}, 15
    s_lshl_b32 s{S_T+5}, s{S_T+1}, 4
    s_add_u32 s{S_T+4}, s{S_T+4}, s{S_T+5}
    s_lshl_b32 s{S_T+4}, s{S_T+4}, 5
    s_add_u32 s{S_T+3}, s{S_T+3}, s{S_T+4}
    v_lshlrev_b32 v{T+2}, 13, v0
    v_add_u32 v{T+2}, s{S_T+3}, v{T+2}
    v_cndmask_b32 v{T+2}, v{T+1}, v{T+2}, vcc
    """)
    for j in range(8):
        A(f"buffer_load_ushort v{RH+j}, v{T}, s[{S_A}:{S_A+3}], s{S_T+2} offen")
        A(f"buffer_load_ushort v{DD+j}, v{T}, s[{S_B}:{S_B+3}], s{S_T+2} offen")
        A(f"s_add_u32 s{S_T+2}, s{S_T+2}, {64*450}")
    A("s_waitcnt vmcnt(0)")
    for j in range(8):
        A(f"""
        v_lshlrev_b32 v{RH+j}, 16, v{RH+j}
        v_lshlrev_b32 v{DD+j}, 16, v{DD+j}
        v_mul_f32 v{RH+j}, {hex(np_f(2.0**-11))}, v{RH+j}
        v_mul_f32 v{DD+j}, {hex(np_f(2.0**-11))}, v{DD+j}
        v_cvt_pk_bf16_f32 v{V+j}, v{RH+j}, v{DD+j}
        """)
    A(f"""
    buffer_store_dwordx4 {v(V,4)}, v{T+2}, s[{S_C}:{S_C+3}], 0 offen
    buffer_store_dwordx4 {v(V+4,4)}, v{T+2}, s[{S_C}:{S_C+3}], 0 offen offset:16
    """)

    lln = A.uniq(name + "_ln")
    A(f"s_cmp_ge_u32 s2, 64\ns_cbranch_scc1 {lln}")
    ptr_srd(A, S_A, 0, L.XB)
    srd(A, S_B, S_WS, L.XI, L.XB)
    A(f"s_waitcnt lgkmcnt(0)\ns_mov_b32 s{S_K}, s2")
    RAW = U; XF = U + 28; TT = U + 84
    ln_load(A, S_A, S_K, RAW, TT, LANE)
    A("s_waitcnt vmcnt(0)")
    ln_regs(A, RAW, XF, TT)
    A(f"""
    v_and_b32 v{TT}, 7, v{LANE}
    v_bfe_u32 v{TT+1}, v{LANE}, 3, 2
    s_lshl_b32 s{S_T}, s{S_WAVE}, 2
    v_add_u32 v{TT+1}, s{S_T}, v{TT+1}
    v_lshlrev_b32 v{TT+1}, 4, v{TT+1}
    v_and_b32 v{TT+2}, 3, v{TT}
    v_lshl_add_u32 v{TT+1}, v{TT+2}, 8, v{TT+1}
    v_lshrrev_b32 v{TT+2}, 2, v{TT}
    v_lshl_add_u32 v{TT+1}, v{TT+2}, 10, v{TT+1}
    v_lshrrev_b32 v{TT+2}, 5, v{LANE}
    v_mul_u32_u24 v{TT+2}, 14336, v{TT+2}
    v_add_u32 v{TT+1}, v{TT+1}, v{TT+2}
    s_mul_i32 s{S_T}, s2, 28672
    v_add_u32 v{TT+1}, s{S_T}, v{TT+1}
    v_add_u32 v{TT+2}, 4096, v{TT+1}
    v_add_u32 v{TT+3}, 8192, v{TT+1}
    v_add_u32 v{TT+4}, 12288, v{TT+1}
    """)
    for j in range(7):
        A(f"buffer_store_dwordx4 {v(RAW+4*j,4)}, v{TT+1+(j>>1)}, s[{S_B}:{S_B+3}], 0 offen offset:{2048*(j&1)}")
    A.label(lln)

    A(f"""
    s_waitcnt vmcnt(0)
    s_barrier
    s_mul_i32 s{S_T}, s{S_H}, 28
    s_mul_i32 s{S_T+1}, s{S_Q}, 7
    s_add_u32 s{S_T}, s{S_T}, s{S_T+1}
    s_lshl_b32 s{S_T+1}, s{S_WAVE}, 1
    s_add_u32 s{S_T}, s{S_T}, s{S_T+1}
    s_mul_i32 s{S_T}, s{S_T}, 14
    s_mul_i32 s{S_T+1}, s{S_KH}, 7
    s_add_u32 s{S_T}, s{S_T}, s{S_T+1}
    s_lshl_b32 s{S_T}, s{S_T}, 10
    v_add_u32 v{OA}, s{S_T}, v{LR}
    v_add_u32 v{OA+1}, 14336, v{OA}
    v_mov_b32 v{T}, 0x40000000
    s_cmp_eq_u32 s{S_WAVE}, 3
    s_cselect_b64 vcc, -1, 0
    v_cndmask_b32 v{OA+1}, v{OA+1}, v{T}, vcc
    s_cmp_eq_u32 s{S_TYPE}, 0
    s_cselect_b32 s{S_K}, {hex(np_f(math.log2(math.e)/16))}, {hex(np_f(1.0))}
    s_mov_b32 s{S_K2}, 0
    v_add_u32 v{TA}, 65536, v{LR}
    """)
    def rd(i):
        kb, r = divmod(i, 16)
        off = (kb * 16 + r) * 1024
        if off < 65536: return f"ds_read_b128 {v(AF+4*(i%4),4)}, v{LR} offset:{off}"
        return f"ds_read_b128 {v(AF+4*(i%4),4)}, v{TA} offset:{off-65536}"
    NS = 7 * 16
    for i in range(3): A(rd(i))
    EP = U
    for i in range(NS):
        kb, r = divmod(i, 16); mu, es = divmod(r, 8)
        A(f"s_waitcnt lgkmcnt({min(2, NS-1-i)})")
        for t in range(2):
            d = v(AC + 8 * t + 4 * mu, 4)
            A(f"v_mfma_f32_16x16x32_bf16 {d}, {v(AF+4*(i%4),4)}, {v(BF+32*t+4*es,4)}, {d if es else 0}")
        if i + 3 < NS: A(rd(i + 3))
        if r == 15:
            A("s_nop 6")
            for t in range(2):
                d = AC + 8 * t; e = EP + 8 * t
                for x in range(8): A(f"v_mul_f32 v{e+x}, s{S_K}, v{d+x}")
                A(f"""
                v_cvt_pk_bf16_f32 v{e}, v{e}, v{e+1}
                v_cvt_pk_bf16_f32 v{e+1}, v{e+2}, v{e+3}
                v_cvt_pk_bf16_f32 v{e+2}, v{e+4}, v{e+5}
                v_cvt_pk_bf16_f32 v{e+3}, v{e+6}, v{e+7}
                buffer_store_dwordx4 {v(e,4)}, v{OA+t}, s[{S_O}:{S_O+3}], s{S_K2} offen
                """)
            A(f"s_add_u32 s{S_K2}, s{S_K2}, 1024")
    A("s_waitcnt vmcnt(0)")
    A.label(f"{name}_end")
    A("s_endpgm")
    return A.L

def ln_regs(A, RAW, XF, T):
    for i in range(28):
        A(f"v_lshlrev_b32 v{XF+2*i}, 16, v{RAW+i}\nv_and_b32 v{XF+2*i+1}, 0xffff0000, v{RAW+i}")
    A(f"v_pk_add_f32 {v(T,2)}, {v(XF,2)}, {v(XF+2,2)}\nv_pk_add_f32 {v(T+2,2)}, {v(XF+4,2)}, {v(XF+6,2)}")
    for i in range(4, 28, 2):
        A(f"v_pk_add_f32 {v(T,2)}, {v(T,2)}, {v(XF+2*i,2)}\nv_pk_add_f32 {v(T+2,2)}, {v(T+2,2)}, {v(XF+2*i+2,2)}")
    A(f"v_pk_add_f32 {v(T,2)}, {v(T,2)}, {v(T+2,2)}\nv_add_f32 v{T}, v{T}, v{T+1}")
    dpp_allred8(A, "v_add_f32", T, T + 1)
    A(f"v_mul_f32 v{T}, {hex(np_f(-1.0/448))}, v{T}\nv_mov_b32 v{T+1}, v{T}")
    for i in range(28):
        A(f"v_pk_add_f32 {v(XF+2*i,2)}, {v(XF+2*i,2)}, {v(T,2)}")
    A(f"v_pk_mul_f32 {v(T+2,2)}, {v(XF,2)}, {v(XF,2)}\nv_pk_mul_f32 {v(T+4,2)}, {v(XF+2,2)}, {v(XF+2,2)}")
    for i in range(2, 28, 2):
        A(f"v_pk_fma_f32 {v(T+2,2)}, {v(XF+2*i,2)}, {v(XF+2*i,2)}, {v(T+2,2)}")
        A(f"v_pk_fma_f32 {v(T+4,2)}, {v(XF+2*i+2,2)}, {v(XF+2*i+2,2)}, {v(T+4,2)}")
    A(f"v_pk_add_f32 {v(T+2,2)}, {v(T+2,2)}, {v(T+4,2)}\nv_add_f32 v{T}, v{T+2}, v{T+3}")
    dpp_allred8(A, "v_add_f32", T, T + 1)
    A(f"""
    v_mov_b32 v{T+1}, {hex(np_f(1e-5))}
    v_fmac_f32 v{T+1}, {hex(np_f(1.0/448))}, v{T}
    v_rsq_f32 v{T}, v{T+1}
    s_nop 0
    v_mov_b32 v{T+1}, v{T}
    """)
    for i in range(28):
        A(f"v_pk_mul_f32 {v(XF+2*i,2)}, {v(XF+2*i,2)}, {v(T,2)}")
    for i in range(28):
        A(f"v_cvt_pk_bf16_f32 v{RAW+i}, v{XF+2*i}, v{XF+2*i+1}")
```

```python
from asm import *
import layout as L

WS_SLOT = 96; DBG_SLOT = 88
SPIN_MAX = 400000
TEAM = 30

def srd(A, r, base_lo, base_hi, off, size):
    A(f"s_add_u32 s{r}, s{base_lo}, {off}")
    A(f"s_addc_u32 s{r+1}, s{base_hi}, 0")
    A(f"s_mov_b32 s{r+2}, {size}")
    A(f"s_mov_b32 s{r+3}, 0x20000")

S_WS = 4
S_W = 8
S_M = 12
S_P = 16
S_X = 20
S_U = 24
S_STEP = 30; S_MOFF = 31; S_POFF = 32; S_XOFF = 33; S_SPIN = 34; S_ROLE = 35; S_WAVE = 36; S_SLOW = 37
S_T = 38
S_MNEXT = 48; S_UOFF = 49
S_XV = 50
S_MASK = 54
S_T0 = 56
S_CT = 60
S_KB = 62; S_KT = 63

NSTAMP = 8
S_ST = 64
def stamp(A, prof, i):
    if prof == 2:
        A(f"""
        s_memtime s[72:73]
        s_waitcnt lgkmcnt(0)
        s_sub_u32 s73, s72, s74
        s_mov_b32 s74, s72
        s_add_u32 s{S_ST+i}, s{S_ST+i}, s73
        """)
    if prof == 3:
        A(f"""
        s_mov_b32 m0, s{S_STEP}
        s_memrealtime s[72:73]
        s_waitcnt lgkmcnt(0)
        v_writelane_b32 v{248+i}, s72, m0
        """)
def stamp_init(A, prof):
    if prof != 2: return
    for i in range(NSTAMP): A(f"s_mov_b32 s{S_ST+i}, 0")
    A("s_memtime s[72:73]\ns_waitcnt lgkmcnt(0)\ns_mov_b32 s74, s72")

def stream(A, mf, fill):
    for x in fill.get(-1, []): A(x)
    for i, m in enumerate(mf):
        A(m)
        for x in fill.get(i, []): A(x)

def store_handoff(A, name, ins):
    l1 = A.uniq(name + "_slow"); l2 = A.uniq(name + "_sd")
    A(f"s_cmp_lg_u32 s{S_SLOW}, 0")
    A(f"s_cbranch_scc1 {l1}")
    A(ins)
    A(f"s_branch {l2}")
    A.label(l1)
    A(ins + " sc1")
    A.label(l2)

def team_formation(A, name, layer):
    A(f"""
    s_getreg_b32 s{S_T}, hwreg(HW_REG_XCC_ID, 0, 4)
    s_add_u32 s{S_CT}, s{S_WS}, {L.CT[layer]}
    s_addc_u32 s{S_CT+1}, s{S_WS+1}, 0
    s_mov_b32 s{S_ROLE}, 99
    s_mov_b32 s{S_SLOW}, 0
    s_cmp_eq_u32 s{S_WAVE}, 0
    s_cbranch_scc0 {name}_tf_wait
    s_and_b32 s{S_T}, s{S_T}, 15
    s_lshl_b32 s{S_T+1}, s{S_T}, 8
    v_mov_b32 v3, s{S_T+1}
    v_mov_b32 v4, 1
    s_mov_b64 exec, 1
    global_atomic_add v5, v3, v4, s[{S_CT}:{S_CT+1}] sc0
    s_waitcnt vmcnt(0)
    v_readfirstlane_b32 s{S_T+2}, v5
    s_cmp_lt_u32 s{S_T+2}, {TEAM}
    s_cbranch_scc0 {name}_tf_pub
    v_mov_b32 v3, 4096
    s_cmp_eq_u32 s{S_T+2}, {TEAM-1}
    s_cbranch_scc0 {name}_tf_spin0
    s_add_u32 s{S_T+3}, s{S_T}, 1
    v_mov_b32 v6, s{S_T+3}
    v_mov_b32 v7, 0
    global_atomic_cmpswap v5, v3, v[6:7], s[{S_CT}:{S_CT+1}] sc0 sc1
    s_waitcnt vmcnt(0)
    {name}_tf_spin0:
    s_mov_b32 s{S_T+4}, 0
    {name}_tf_spin:
    global_load_dword v5, v3, s[{S_CT}:{S_CT+1}] sc0 sc1
    s_waitcnt vmcnt(0)
    v_readfirstlane_b32 s{S_T+3}, v5
    s_cmp_lg_u32 s{S_T+3}, 0
    s_cbranch_scc1 {name}_tf_got
    s_add_u32 s{S_T+4}, s{S_T+4}, 1
    s_cmp_lt_u32 s{S_T+4}, 2000
    s_cbranch_scc1 {name}_tf_spin
    v_mov_b32 v6, 100
    v_mov_b32 v7, 0
    global_atomic_cmpswap v5, v3, v[6:7], s[{S_CT}:{S_CT+1}] sc0 sc1
    s_waitcnt vmcnt(0)
    v_readfirstlane_b32 s{S_T+3}, v5
    s_cmp_eq_u32 s{S_T+3}, 0
    s_cselect_b32 s{S_T+3}, 100, s{S_T+3}
    {name}_tf_got:
    s_cmp_eq_u32 s{S_T+3}, 100
    s_cbranch_scc1 {name}_tf_glob
    s_sub_u32 s{S_T+3}, s{S_T+3}, 1
    s_cmp_eq_u32 s{S_T+3}, s{S_T}
    s_cbranch_scc0 {name}_tf_pub
    s_mov_b32 s{S_ROLE}, s{S_T+2}
    s_branch {name}_tf_pub
    {name}_tf_glob:
    v_mov_b32 v3, 4352
    v_mov_b32 v4, 1
    global_atomic_add v5, v3, v4, s[{S_CT}:{S_CT+1}] sc0 sc1
    s_waitcnt vmcnt(0)
    v_readfirstlane_b32 s{S_T+2}, v5
    s_cmp_lt_u32 s{S_T+2}, {TEAM}
    s_cbranch_scc0 {name}_tf_pub
    s_add_u32 s{S_ROLE}, s{S_T+2}, 256
    {name}_tf_pub:
    v_mov_b32 v3, 0
    v_mov_b32 v4, s{S_ROLE}
    ds_write_b32 v3, v4
    s_waitcnt lgkmcnt(0)
    s_mov_b64 exec, -1
    {name}_tf_wait:
    s_barrier
    v_mov_b32 v3, 0
    ds_read_b32 v4, v3
    s_waitcnt lgkmcnt(0)
    v_readfirstlane_b32 s{S_ROLE}, v4
    s_barrier
    s_lshr_b32 s{S_SLOW}, s{S_ROLE}, 8
    s_and_b32 s{S_ROLE}, s{S_ROLE}, 255
    s_cmp_lt_u32 s{S_ROLE}, {TEAM}
    s_cbranch_scc0 {name}_end
    """)

import os
OPT = dict(ms=int(os.environ.get("MS", "2")), md=int(os.environ.get("MD", "0")),
           vs=int(os.environ.get("VS", "1")), vd=int(os.environ.get("VD", "0")),
           ps=int(os.environ.get("PS", "2")), pd=int(os.environ.get("PD", "0")),
           noxk=0, noxv=0, nous=0, nopt=0)
def delay(A, n):
    while n > 0:
        k = min(n, 16); A(f"s_nop {k-1}"); n -= k

def poll(A, name, slots, issue, regs, tmp, success, dly, join):
    nl = len(issue(0))
    lp = A.uniq(name + "_pl")
    oks = [A.uniq(name + "_ok") for _ in range(slots)]
    for i in range(slots):
        for x in issue(i): A(x)
        if i + 1 < slots: delay(A, dly)
    A.label(lp)
    for i in range(slots):
        A(f"s_waitcnt vmcnt({nl*(slots-1)})")
        r = list(regs(i)); k = 0; cur = []
        lvl = r; t_ = tmp
        while len(lvl) > 1:
            nxt = []
            while len(lvl) >= 3:
                A(f"v_max3_u32 v{t_}, v{lvl[0]}, v{lvl[1]}, v{lvl[2]}"); nxt.append(t_); t_ += 1; lvl = lvl[3:]
            if len(lvl) == 2 and not nxt:
                A(f"v_max_u32 v{t_}, v{lvl[0]}, v{lvl[1]}"); nxt.append(t_); t_ += 1; lvl = []
            lvl = nxt + lvl
        A(f"v_cmp_eq_u32 vcc, -1, v{lvl[0]}")
        A(f"s_cbranch_vccz {oks[i]}")
        for x in issue(i): A(x)
        if i == slots - 1:
            A(f"""
            s_add_u32 s{S_SPIN}, s{S_SPIN}, 1
            s_cmp_lt_u32 s{S_SPIN}, {SPIN_MAX}
            s_cbranch_scc0 {name}_end
            """)
        delay(A, dly)
    A(f"s_branch {lp}")
    for i in range(slots):
        A.label(oks[i])
        success(i)
        if i + 1 < slots: A(f"s_branch {join}")
    A.label(join)

def poll_m(A, name, slotregs, tmp, vMP0, vMP1, slots, dly, prof=0):
    def issue(i):
        return [f"buffer_load_dwordx4 {v(slotregs[i],4)}, v{vMP0}, s[{S_M}:{S_M+3}], s{S_MOFF} offen sc1",
                f"buffer_load_dwordx4 {v(slotregs[i]+4,4)}, v{vMP1}, s[{S_M}:{S_M+3}], s{S_MOFF} offen sc1"]
    def success(i):
        A(f"ds_write_b128 v{vMP0}, {v(slotregs[i],4)}")
        A(f"ds_write_b128 v{vMP1}, {v(slotregs[i]+4,4)}")
    poll(A, name, slots, issue, lambda i: range(slotregs[i], slotregs[i] + 8), tmp, success, dly, A.uniq(name + "_mj"))
    stamp(A, prof, 0)
    A("s_waitcnt lgkmcnt(0)\ns_barrier")
    stamp(A, prof, 1)

def common_addr(A, vLANE, vMP0, vMP1, vLR, vIDX):
    A(f"""
    v_and_b32 v{vLANE}, 63, v0
    v_lshlrev_b32 v{vLR}, 4, v{vLANE}
    s_lshl_b32 s{S_T}, s{S_WAVE}, 10
    v_add_u32 v{vMP0}, s{S_T}, v{vLR}
    s_add_u32 s{S_T+1}, s{S_T}, 4096
    s_cmp_eq_u32 s{S_WAVE}, 3
    s_cselect_b32 s{S_T}, s{S_T}, s{S_T+1}
    v_add_u32 v{vMP1}, s{S_T}, v{vLR}
    v_and_b32 v{vIDX}, 8, v{vLANE}
    v_cmp_eq_u32 vcc, 0, v{vIDX}
    v_mov_b32 v{vIDX}, 0xeeee
    v_mov_b32 v19, 0x4444
    v_cndmask_b32 v{vIDX}, v{vIDX}, v19, vcc
    """)

def qk_role(A, name, layer, prof):
    LANE = 1; MP0 = 2; MP1 = 3; LR = 4; IDX = 5; TW = 6; TR = 7; MKA = 8
    XK0 = 12; XK1 = 13; SW = 14; SR = 15; PS = 16; TA_ = 17; TB_ = 18; T0 = 19
    MF = 20
    DD = 48
    XK = 56
    MK = 88
    TF = 104
    SA = 108
    WV = 120
    def W(nt, k):
        g = nt * 7 + k
        return a(8 * g, 8) if g < 32 else v(WV + 8 * (g - 32), 8)
    def Wq(nt, k, half):
        g = nt * 7 + k
        return a(8 * g + 4 * half, 4) if g < 32 else v(WV + 8 * (g - 32) + 4 * half, 4)
    TBASE = 8192; TWAVE = 3072; SBASE = TBASE + 4 * TWAVE; RS = 56; KBASE = 32768; KBUF = 8192
    A.label(f"{name}_qk")
    srd(A, S_W, S_WS, S_WS + 1, L.AI, L.IMG)
    srd(A, S_X, S_WS, S_WS + 1, L.XI, L.XB)
    A(f"""
    v_and_b32 v{LANE}, 63, v0
    v_lshlrev_b32 v{LR}, 4, v{LANE}
    s_mul_i32 s{S_T}, s{S_ROLE}, {28*14*1024}
    s_mul_i32 s{S_T+1}, s{S_WAVE}, {7*14*1024}
    s_add_u32 s{S_T}, s{S_T}, s{S_T+1}
    """)
    for nt in range(7):
        for k in range(7):
            for hf in range(2):
                A(f"buffer_load_dwordx4 {Wq(nt,k,hf)}, v{LR}, s[{S_W}:{S_W+3}], s{S_T} offen offset:{1024*hf}")
            A(f"s_add_u32 s{S_T}, s{S_T}, 2048")
            if nt * 7 + k >= 24: A("s_waitcnt vmcnt(48)")
    common_addr(A, LANE, MP0, MP1, LR, IDX)
    A(f"""
    v_and_b32 v20, 15, v{LANE}            ; n
    v_lshrrev_b32 v21, 4, v{LANE}         ; g
    s_mul_i32 s{S_T}, s{S_WAVE}, {TWAVE}
    s_add_u32 s{S_T}, s{S_T}, {TBASE}
    v_and_b32 v22, 1, v21
    v_lshlrev_b32 v22, 1, v22
    v_lshrrev_b32 v23, 1, v21
    v_or_b32 v22, v22, v23
    v_lshlrev_b32 v22, 2, v22
    v_lshl_add_u32 v22, v20, 4, v22
    v_add_u32 v{TW}, s{S_T}, v22
    v_lshrrev_b32 v22, 3, v20             ; i>>1
    v_lshlrev_b32 v22, 2, v22
    v_and_b32 v23, 2, v20                 ; 2*half
    v_add_u32 v22, v22, v23
    v_bfe_u32 v23, v20, 2, 1              ; i&1
    v_add_u32 v22, v22, v23
    v_lshlrev_b32 v22, 4, v22
    v_and_b32 v23, 1, v20
    v_lshl_add_u32 v22, v23, 3, v22
    v_mul_u32_u24 v23, 384, v21
    v_add_u32 v22, v22, v23
    v_add_u32 v{TR}, s{S_T}, v22
    s_mul_i32 s{S_T+1}, s{S_WAVE}, 112
    """)
    for kp in range(2):
        for b in range(2):
            A(f"""
            v_lshlrev_b32 v22, 3, v21
            v_add_u32 v22, s{S_T+1}, v22
            v_add_u32 v22, {64*kp+32*b}, v22
            v_min_u32 v22, 440, v22
            v_lshrrev_b32 v23, 6, v22
            v_lshlrev_b32 v23, 10, v23
            v_bfe_u32 v24, v22, 4, 2
            v_lshl_add_u32 v23, v24, 8, v23
            v_bfe_u32 v24, v22, 2, 2
            v_lshl_add_u32 v23, v24, 2, v23
            v_and_b32 v24, 7, v20
            v_lshl_add_u32 v{MKA+2*kp+b}, v24, 4, v23
            """)
    A(f"""
    s_mul_i32 s{S_T+1}, s{S_WAVE}, 14
    v_add_u32 v22, s{S_T+1}, v21
    v_lshrrev_b32 v23, 2, v22
    v_lshlrev_b32 v23, 10, v23
    v_and_b32 v22, 3, v22
    v_lshl_add_u32 v23, v22, 8, v23
    v_lshl_add_u32 v{XK0}, v20, 4, v23
    s_lshl_b32 s{S_T+1}, s{S_ROLE}, 2
    s_add_u32 s{S_T+1}, s{S_T+1}, s{S_WAVE}
    s_lshl_b32 s{S_T+1}, s{S_T+1}, 2
    v_add_u32 v22, s{S_T+1}, v{LANE}
    v_lshlrev_b32 v22, 7, v22
    v_add_u32 v22, {28*1024}, v22
    v_mov_b32 v23, 0x40000000
    v_cmp_gt_u32 vcc, 4, v{LANE}
    v_cndmask_b32 v{XK1}, v23, v22, vcc
    v_and_b32 v22, 1, v21
    v_lshlrev_b32 v22, 2, v22
    v_and_b32 v23, 2, v21
    v_or_b32 v22, v22, v23
    v_mul_u32_u24 v22, {RS*4}, v22
    v_lshl_add_u32 v22, v20, 2, v22
    s_mul_i32 s{S_T+1}, s{S_WAVE}, {8*RS*4}
    s_add_u32 s{S_T+1}, s{S_T+1}, {SBASE}
    v_add_u32 v{SW}, s{S_T+1}, v22
    v_and_b32 v22, 1, v21
    s_lshl_b32 s{S_T+1}, s{S_WAVE}, 1
    v_add_u32 v22, s{S_T+1}, v22          ; row
    v_mul_u32_u24 v23, {RS*4}, v22
    v_lshlrev_b32 v24, 3, v20
    v_and_b32 v25, 3, v20
    v_lshlrev_b32 v25, 3, v25
    v_add_u32 v25, 128, v25
    v_cmp_gt_u32 vcc, 2, v21
    v_cndmask_b32 v24, v25, v24, vcc
    v_add_u32 v23, v23, v24
    v_add_u32 v{SR}, {SBASE}, v23
    s_and_b32 s{S_T}, s{S_ROLE}, 1
    s_lshr_b32 s{S_T+1}, s{S_ROLE}, 1
    s_lshl_b32 s{S_T+2}, s{S_T+1}, 10
    s_lshl_b32 s{S_T+3}, s{S_T}, 9
    s_add_u32 s{S_T+2}, s{S_T+2}, s{S_T+3}          ; X base
    v_bfe_u32 v23, v20, 2, 1                         ; key>>4
    v_lshlrev_b32 v23, 8, v23
    v_and_b32 v24, 1, v20                            ; hf
    v_lshl_add_u32 v23, v24, 7, v23
    v_bfe_u32 v24, v20, 1, 1
    v_lshl_add_u32 v23, v24, 3, v23
    v_bfe_u32 v24, v20, 3, 1
    v_lshl_add_u32 v23, v24, 2, v23
    v_lshl_add_u32 v23, v22, 4, v23
    v_add_u32 v23, s{S_T+2}, v23
    s_lshr_b32 s{S_T+2}, s{S_ROLE}, 2
    s_lshl_b32 s{S_T+2}, s{S_T+2}, 9
    s_and_b32 s{S_T+3}, s{S_T+1}, 1
    s_lshl_b32 s{S_T+3}, s{S_T+3}, 8
    s_add_u32 s{S_T+2}, s{S_T+2}, s{S_T+3}
    s_lshl_b32 s{S_T+3}, s{S_T}, 2
    s_add_u32 s{S_T+2}, s{S_T+2}, s{S_T+3}
    s_add_u32 s{S_T+2}, s{S_T+2}, 8192
    v_and_b32 v24, 1, v20                            ; cp&1
    v_lshlrev_b32 v24, 7, v24
    v_bfe_u32 v25, v20, 1, 1                         ; cp>>1
    v_lshl_add_u32 v24, v25, 3, v24
    v_lshl_add_u32 v24, v22, 4, v24
    v_add_u32 v24, s{S_T+2}, v24
    v_cmp_gt_u32 vcc, 2, v21
    v_cndmask_b32 v{PS}, v24, v23, vcc
    v_cmp_gt_u32 s[{S_T+4}:{S_T+5}], 4, v20
    s_or_b64 s[{S_MASK}:{S_MASK+1}], vcc, s[{S_T+4}:{S_T+5}]
    v_mov_b32 v24, 0x40000000
    v_cndmask_b32 v{PS}, v24, v{PS}, s[{S_MASK}:{S_MASK+1}]
    v_mov_b32 v24, 0
    ds_write_b32 v{TW}, v24 offset:{7*384}
    s_mov_b32 s{S_XOFF}, 0
    s_mov_b32 s{S_XOFF}, 0
    """)
    def xk_loads():
        l = []
        for tau in range(2):
            l.append(f"s_add_u32 s{S_KT}, s{S_XOFF}, {tau*14*1024}")
            for kp in range(2):
                for b in range(2):
                    l.append(f"buffer_load_dwordx4 {v(XK+16*kp+8*tau+4*b,4)}, v{XK0}, s[{S_X}:{S_X+3}], s{S_KT} offen offset:{2048*kp+1024*b}")
        return l
    for x in xk_loads(): A(x)
    A("s_waitcnt vmcnt(0) lgkmcnt(0)")
    if prof: A(f"s_memtime s[{S_T0}:{S_T0+1}]\ns_waitcnt lgkmcnt(0)")
    stamp_init(A, prof)
    A.label(f"{name}_qk_loop")
    poll_m(A, name, [MK, MK + 8, SA], DD, MP0, MP1, OPT['ms'], OPT['md'], prof)
    for k in range(7):
        A(f"ds_read_b128 {v(MF+4*k,4)}, v{LR} offset:{1024*k}")
    A(f"v_mov_b64 {v(DD,2)}, 0\nv_mov_b64 {v(DD+2,2)}, 0")
    mf = []; fill = {}
    def F(i, *ins): fill.setdefault(i, []).extend(ins)
    for nt in range(7):
        d = DD + 4 * (nt & 1)
        for k in range(7):
            mf.append(f"v_smfmac_f32_16x16x64_bf16 {v(d,4)}, {v(MF+4*k,4)}, {W(nt,k)}, v{IDX}")
    def epi(nt, pos):
        d = DD + 4 * (nt & 1)
        ins = [f"v_permlane32_swap_b32 v{d}, v{d+2}", f"v_permlane32_swap_b32 v{d+1}, v{d+3}",
               f"v_add_f32 v{TA_}, v{d}, v{d+2}", f"v_add_f32 v{TB_}, v{d+1}, v{d+3}",
               f"v_mov_b64 {v(d,2)}, 0", f"v_mov_b64 {v(d+2,2)}, 0",
               f"v_cvt_pk_bf16_f32 v{TA_}, v{TA_}, v{TB_}", f"ds_write_b32 v{TW}, v{TA_} offset:{384*nt}"]
        for p_, i_ in zip(pos, ins): F(p_, i_)
    pre = []
    mk = []
    for kp in range(2):
        for b in range(2):
            mk.append(f"ds_read2_b32 {v(MK+8*kp+4*b,2)}, v{MKA+2*kp+b} offset0:0 offset1:32")
            mk.append(f"ds_read2_b32 {v(MK+8*kp+4*b+2,2)}, v{MKA+2*kp+b} offset0:1 offset1:33")
    A("s_waitcnt lgkmcnt(6)")
    for k in range(6):
        F(k, f"s_waitcnt lgkmcnt({5-k})")
    F(0, f"v_mov_b64 {v(DD+4,2)}, 0"); F(1, f"v_mov_b64 {v(DD+6,2)}, 0")
    if OPT['ms'] > 1: F(6, "s_waitcnt vmcnt(0)")
    for i_, x in enumerate(mk): F(7 + i_ // 2, x) if i_ < 4 else F(14 + (i_ - 4) // 2, x)
    if not OPT['nopt']: F(8, f"buffer_load_dword v{T0}, v{XK1}, s[{S_X}:{S_X+3}], s{S_XOFF} offen")
    for i_ in range(6): F(21 + i_ // 2 if i_ < 4 else 28 + (i_ - 4) // 2, f"v_mov_b64 {v(SA+2*i_,2)}, 0")
    for nt in range(6):
        b = 7 * (nt + 1)
        epi(nt, [b + 2, b + 3, b + 3, b + 4, b + 4, b + 5, b + 5, b + 6])
    F(35, f"ds_read_b64_tr_b16 {v(TF,2)}, v{TR} offset:0", f"ds_read_b64_tr_b16 {v(TF+2,2)}, v{TR} offset:128")
    stream(A, mf, fill)
    stamp(A, prof, 2)
    def smf_s(kp, tau):
        b_ = v(XK + 16 * kp + 8 * tau, 8) if tau < 2 else v(MK + 8 * kp, 8)
        return f"v_smfmac_f32_16x16x64_bf16 {v(SA+4*tau,4)}, {v(TF,4)}, {b_}, v{IDX}"
    d = DD
    A(f"""
    s_waitcnt lgkmcnt(2)
    {smf_s(0,0)}
    {smf_s(0,1)}
    {smf_s(0,2)}
    s_nop 4
    v_permlane32_swap_b32 v{d}, v{d+2}
    v_permlane32_swap_b32 v{d+1}, v{d+3}
    v_add_f32 v{TA_}, v{d}, v{d+2}
    v_add_f32 v{TB_}, v{d+1}, v{d+3}
    v_cvt_pk_bf16_f32 v{TA_}, v{TA_}, v{TB_}
    ds_write_b32 v{TW}, v{TA_} offset:{384*6}
    ds_read_b64_tr_b16 {v(TF,2)}, v{TR} offset:{1536}
    ds_read_b64_tr_b16 {v(TF+2,2)}, v{TR} offset:{1536+128}
    s_waitcnt lgkmcnt(0)
    {smf_s(1,0)}
    {smf_s(1,1)}
    {smf_s(1,2)}
    """)
    stamp(A, prof, 3)
    for tau in range(3):
        d = SA + 4 * tau
        A(f"""
        v_permlane32_swap_b32 v{d}, v{d+2}
        v_permlane32_swap_b32 v{d+1}, v{d+3}
        v_add_f32 v{d}, v{d}, v{d+2}
        v_add_f32 v{d+1}, v{d+1}, v{d+3}
        ds_write2_b32 v{SW}, v{d}, v{d+1} offset0:{16*tau} offset1:{16*tau+RS}
        """)
    A("s_waitcnt lgkmcnt(0)\ns_barrier")
    stamp(A, prof, 4)
    R = MF
    for w in range(4):
        A(f"ds_read_b64 {v(R+2*w,2)}, v{SR} offset:{w*8*RS*4}")
    X0 = R + 8; X1 = R + 9; MX = R + 10; T = R + 11
    A(f"""
    s_waitcnt lgkmcnt(2)
    v_add_f32 v{R}, v{R}, v{R+2}
    v_add_f32 v{R+1}, v{R+1}, v{R+3}
    s_waitcnt lgkmcnt(0)
    v_add_f32 v{R+4}, v{R+4}, v{R+6}
    v_add_f32 v{R+5}, v{R+5}, v{R+7}
    v_add_f32 v{X0}, v{R}, v{R+4}
    v_add_f32 v{X1}, v{R+1}, v{R+5}
    v_mov_b32 v{T}, 0xff800000
    v_cndmask_b32 v{X0}, v{T}, v{X0}, s[{S_MASK}:{S_MASK+1}]
    v_cndmask_b32 v{X1}, v{T}, v{X1}, s[{S_MASK}:{S_MASK+1}]
    v_max_f32 v{MX}, v{X0}, v{X1}
    v_max_f32 v{MX}, v{MX}, v{MX} row_ror:8 row_mask:0xf bank_mask:0xf
    v_max_f32 v{MX}, v{MX}, v{MX} row_ror:4 row_mask:0xf bank_mask:0xf
    v_max_f32 v{MX}, v{MX}, v{MX} row_ror:2 row_mask:0xf bank_mask:0xf
    v_max_f32 v{MX}, v{MX}, v{MX} row_ror:1 row_mask:0xf bank_mask:0xf
    v_mov_b32 v{T}, v{MX}
    v_permlane32_swap_b32 v{MX}, v{T}
    v_max_f32 v{MX}, v{MX}, v{T}
    v_sub_f32 v{X0}, v{X0}, v{MX}
    v_sub_f32 v{X1}, v{X1}, v{MX}
    v_exp_f32 v{X0}, v{X0}
    v_exp_f32 v{X1}, v{X1}
    v_add_f32 v{MX}, v{X0}, v{X1}
    v_add_f32 v{MX}, v{MX}, v{MX} row_ror:8 row_mask:0xf bank_mask:0xf
    v_add_f32 v{MX}, v{MX}, v{MX} row_ror:4 row_mask:0xf bank_mask:0xf
    v_add_f32 v{MX}, v{MX}, v{MX} row_ror:2 row_mask:0xf bank_mask:0xf
    v_add_f32 v{MX}, v{MX}, v{MX} row_ror:1 row_mask:0xf bank_mask:0xf
    v_mov_b32 v{T}, v{MX}
    v_permlane32_swap_b32 v{MX}, v{T}
    v_add_f32 v{MX}, v{MX}, v{T}
    v_rcp_f32 v{MX}, v{MX}
    v_mul_f32 v{X0}, v{X0}, v{MX}
    v_mul_f32 v{X1}, v{X1}, v{MX}
    v_cvt_pk_bf16_f32 v{X0}, v{X0}, v{X1}
    v_min_u32 v{X0}, -2, v{X0}
    """)
    store_handoff(A, name, f"buffer_store_dword v{X0}, v{PS}, s[{S_P}:{S_P+3}], s{S_POFF} offen")
    stamp(A, prof, 5)
    A(f"s_add_u32 s{S_XOFF}, s{S_XOFF}, {28*1024}")
    if not OPT['noxk']:
        for x in xk_loads(): A(x)
    A(f"""
    s_add_u32 s{S_MOFF}, s{S_MOFF}, {L.MB}
    s_add_u32 s{S_POFF}, s{S_POFF}, {L.PB}
    s_add_u32 s{S_STEP}, s{S_STEP}, 1
    s_cmp_lt_u32 s{S_STEP}, 63
    s_cbranch_scc1 {name}_qk_loop
    """)
    if prof: prof_out(A, name, layer, prof)
    A(f"s_branch {name}_end")

def prof_out(A, name, layer, prof):
    A(f"""
    s_memtime s[{S_T0+2}:{S_T0+3}]
    s_waitcnt lgkmcnt(0)
    s_sub_u32 s{S_T0+2}, s{S_T0+2}, s{S_T0}
    s_lshl_b32 s{S_T}, s{S_ROLE}, 2
    s_add_u32 s{S_T}, s{S_T}, s{S_WAVE}
    s_lshl_b32 s{S_T}, s{S_T}, 3
    s_add_u32 s{S_T}, s{S_T}, 8192
    v_mov_b32 v1, s{S_T}
    v_mov_b32 v2, s{S_T0+2}
    v_mov_b32 v3, s{S_SPIN}
    s_mov_b64 exec, 1
    global_store_dwordx2 v1, v[2:3], s[{S_CT}:{S_CT+1}]
    s_waitcnt vmcnt(0)
    """)
    if prof == 3:
        A(f"s_sub_u32 s{S_T}, s{S_T}, 8192\ns_lshl_b32 s{S_T}, s{S_T}, 8\ns_mov_b64 exec, -1\nv_mbcnt_lo_u32_b32 v1, -1, 0\nv_mbcnt_hi_u32_b32 v1, -1, v1\nv_lshlrev_b32 v1, 2, v1\nv_add_u32 v1, s{S_T}, v1")
        A(f"s_add_u32 s{S_T+2}, s{S_WS}, {L.TB}\ns_addc_u32 s{S_T+3}, s{S_WS+1}, 0")
        for i in range(8): A(f"global_store_dword v1, v{248+i}, s[{S_T+2}:{S_T+3}] offset:{256*i}")
        A("s_waitcnt vmcnt(0)")
    if prof == 2:
        A(f"s_sub_u32 s{S_T}, s{S_T}, 8192\ns_lshl_b32 s{S_T}, s{S_T}, 2\ns_add_u32 s{S_T}, s{S_T}, 10240\nv_mov_b32 v1, s{S_T}")
        for i in range(NSTAMP): A(f"v_mov_b32 v{2+i}, s{S_ST+i}")
        A(f"global_store_dwordx4 v1, v[2:5], s[{S_CT}:{S_CT+1}]\nglobal_store_dwordx4 v1, v[6:9], s[{S_CT}:{S_CT+1}] offset:16\ns_waitcnt vmcnt(0)")
    A("s_mov_b64 exec, -1")

def vo_role(A, name, layer, prof):
    LANE = 1; MP0 = 2; MP1 = 3; LR = 4; IDX = 5; PX = 6; PM = 7; XVA = 8; US = 9; OW = 10; OR = 11; MS = 12; WL = 13; XT = 14; T0 = 15
    MF = 16
    UD = 44
    UB = 52
    XV = 68
    PR = 100
    OA = 112
    WT = 120
    MP = 136
    WV = 160
    WBASE = 16384; OBASE = 8192; OWS = 1280
    ldsg = []
    for c in range(8):
        if c & 1: ldsg.append((c, 3))
        ldsg.append((c, 6))
    idx = {}; n = 0
    for c in range(8):
        for k in range(7):
            if (c, k) not in ldsg:
                idx[(c, k)] = n; n += 1
    assert n == 44
    def Wr(c, k, hf=None):
        g = idx[(c, k)]
        o = 8 * g + (0 if hf is None else 4 * hf); nn = 8 if hf is None else 4
        return a(o, nn) if g < 32 else v(WV + o - 256, nn)
    A.label(f"{name}_vo")
    srd(A, S_W, S_WS, S_WS + 1, L.VI, L.IMG)
    srd(A, S_X, S_WS, S_WS + 1, L.XV, L.XV_SZ)
    srd(A, S_U, S_WS, S_WS + 1, L.UI, L.UI_SZ)
    A(f"""
    s_sub_u32 s{S_ROLE}, s{S_ROLE}, 16          ; c
    v_and_b32 v{LANE}, 63, v0
    v_lshlrev_b32 v{LR}, 4, v{LANE}
    s_mul_i32 s{S_T+2}, s{S_WAVE}, {24*1024}
    s_add_u32 s{S_T+2}, s{S_T+2}, {WBASE}
    v_add_u32 v{WL}, s{S_T+2}, v{LR}
    """)
    nload = 0
    for c in range(8):
        hl, t = c >> 1, c & 1
        A(f"""
        s_lshl_b32 s{S_T}, s{S_WAVE}, 2
        s_add_u32 s{S_T}, s{S_T}, {hl}
        s_mul_i32 s{S_T}, s{S_T}, 28
        s_lshl_b32 s{S_T+1}, s{S_ROLE}, 1
        s_add_u32 s{S_T}, s{S_T}, s{S_T+1}
        s_add_u32 s{S_T}, s{S_T}, {t}
        s_mul_i32 s{S_T}, s{S_T}, {14*1024}
        """)
        for k in range(7):
            if (c, k) in ldsg:
                j = ldsg.index((c, k))
                A(f"""
                buffer_load_dwordx4 {v(MF,4)}, v{LR}, s[{S_W}:{S_W+3}], s{S_T} offen
                buffer_load_dwordx4 {v(MF+4,4)}, v{LR}, s[{S_W}:{S_W+3}], s{S_T} offen offset:1024
                s_waitcnt vmcnt(0)
                ds_write_b128 v{WL}, {v(MF,4)} offset:{2048*j}
                ds_write_b128 v{WL}, {v(MF+4,4)} offset:{2048*j+1024}
                s_waitcnt lgkmcnt(0)
                """)
            else:
                for hf in range(2):
                    A(f"buffer_load_dwordx4 {Wr(c,k,hf)}, v{LR}, s[{S_W}:{S_W+3}], s{S_T} offen offset:{1024*hf}")
            A(f"s_add_u32 s{S_T}, s{S_T}, 2048")
    common_addr(A, LANE, MP0, MP1, LR, IDX)
    A(f"""
    v_and_b32 v20, 15, v{LANE}            ; n
    v_lshrrev_b32 v21, 4, v{LANE}         ; g
    s_lshl_b32 s{S_T}, s{S_WAVE}, 11
    v_add_u32 v{PX}, s{S_T}, v{LR}
    v_lshrrev_b32 v22, 1, v21
    v_lshlrev_b32 v22, 8, v22
    v_lshl_add_u32 v22, v20, 4, v22
    s_lshl_b32 s{S_T}, s{S_WAVE}, 9
    s_add_u32 s{S_T}, s{S_T}, 8192
    v_add_u32 v{PM}, s{S_T}, v22
    s_mul_i32 s{S_T}, s{S_WAVE}, {4*28}
    s_lshl_b32 s{S_T+1}, s{S_ROLE}, 1
    s_add_u32 s{S_T}, s{S_T}, s{S_T+1}
    s_lshl_b32 s{S_T}, s{S_T}, 10
    v_add_u32 v{XVA}, s{S_T}, v{LR}
    v_lshrrev_b32 v22, 4, v0
    v_mul_u32_u24 v22, {28*1024}, v22
    v_and_b32 v23, 15, v0
    v_lshl_add_u32 v22, v23, 7, v22
    s_lshl_b32 s{S_T}, s{S_ROLE}, 11
    s_add_u32 s{S_T}, s{S_T}, {16*28*1024}
    v_add_u32 v{XT}, s{S_T}, v22
    s_mul_i32 s{S_T}, s{S_WAVE}, 28
    s_add_u32 s{S_T}, s{S_T}, s{S_T+1}
    s_lshl_b32 s{S_T}, s{S_T}, 11
    v_add_u32 v{US}, s{S_T}, v{LR}
    s_mul_i32 s{S_T}, s{S_WAVE}, {OWS}
    s_add_u32 s{S_T}, s{S_T}, {OBASE}
    v_lshlrev_b32 v22, 2, v{LANE}
    v_add_u32 v{OW}, s{S_T}, v22
    v_bfe_u32 v22, v{LANE}, 2, 3          ; r
    v_and_b32 v23, 3, v{LANE}             ; p
    v_and_b32 v24, 1, v22
    v_lshlrev_b32 v24, 1, v24             ; 2*(i&1)
    v_bfe_u32 v25, v22, 1, 1              ; i>>1
    v_lshl_add_u32 v24, v25, 5, v24
    v_and_b32 v25, 3, v22
    v_lshl_add_u32 v24, v25, 6, v24       ; OFF(i) = 64 i + 2 (i&1) + 32 (i>>1)
    v_lshrrev_b32 v25, 2, v22             ; g1
    v_lshl_add_u32 v24, v25, 4, v24
    v_lshl_add_u32 v24, v23, 2, v24
    s_lshr_b32 s{S_T}, s{S_WAVE}, 1
    s_lshl_b32 s{S_T}, s{S_T}, 5
    s_and_b32 s{S_T+1}, s{S_WAVE}, 1
    s_lshl_b32 s{S_T+1}, s{S_T+1}, 1
    s_add_u32 s{S_T}, s{S_T}, s{S_T+1}
    v_add_u32 v24, s{S_T}, v24
    v_lshlrev_b32 v24, 2, v24
    v_add_u32 v{OR}, {OBASE}, v24
    s_lshl_b32 s{S_T}, s{S_ROLE}, 9
    s_lshl_b32 s{S_T+1}, s{S_WAVE}, 7
    s_add_u32 s{S_T}, s{S_T}, s{S_T+1}
    v_lshlrev_b32 v22, 2, v{LANE}
    v_add_u32 v22, s{S_T}, v22
    v_mov_b32 v23, 0x40000000
    v_cmp_gt_u32 vcc, 32, v{LANE}
    v_cndmask_b32 v{MS}, v23, v22, vcc
    s_mov_b32 s{S_UOFF}, 0
    s_mov_b32 s{S_XV}, 0
    s_mov_b32 s{S_XV+1}, {28*1024}
    s_mov_b32 s{S_XV+2}, {2*28*1024}
    s_mov_b32 s{S_XV+3}, {3*28*1024}
    s_waitcnt vmcnt(0) lgkmcnt(0)
    """)
    if prof: A(f"s_memtime s[{S_T0}:{S_T0+1}]\ns_waitcnt lgkmcnt(0)")
    stamp_init(A, prof)
    A.label(f"{name}_vo_loop")
    def wrd(j):
        b = WT + 8 * (j & 1)
        return [f"ds_read_b128 {v(b,4)}, v{WL} offset:{2048*j}", f"ds_read_b128 {v(b+4,4)}, v{WL} offset:{2048*j+1024}"]
    poll_m(A, name, [PR, WT, WT + 8], MP, MP0, MP1, OPT['vs'], OPT['vd'], prof)
    if OPT['vs'] > 1: A('s_waitcnt vmcnt(0)')
    for k in range(7):
        A(f"ds_read_b128 {v(MF+4*k,4)}, v{LR} offset:{1024*k}")
    for x in wrd(0) + wrd(1): A(x)
    A(f"v_mov_b64 {v(UD,2)}, 0\nv_mov_b64 {v(UD+2,2)}, 0")
    mf = []; fill = {}
    def F(i, *ins): fill.setdefault(i, []).extend(ins)
    pos = {}
    for c in range(8):
        d = UD + 4 * (c & 1)
        for k in range(7):
            if (c, k) in ldsg:
                j = ldsg.index((c, k)); b = v(WT + 8 * (j & 1), 8); pos[j] = len(mf)
            else:
                b = Wr(c, k)
            mf.append(f"v_smfmac_f32_16x16x64_bf16 {v(d,4)}, {v(MF+4*k,4)}, {b}, v{IDX}")
    A("s_waitcnt lgkmcnt(10)")
    for k in range(6): F(k, f"s_waitcnt lgkmcnt({9-k})")
    for j in range(12):
        F(pos[j] - 1, f"s_waitcnt lgkmcnt({2 if j < 11 else 0})")
        if j + 2 < 12: F(pos[j], *wrd(j + 2))
    F(0, f"v_mov_b64 {v(UD+4,2)}, 0"); F(1, f"v_mov_b64 {v(UD+6,2)}, 0")
    def epi_u(c):
        d = UD + 4 * (c & 1); hl, t = c >> 1, c & 1
        return [f"v_cvt_pk_bf16_f32 v{UB+8*t+2*hl}, v{d}, v{d+1}", f"v_cvt_pk_bf16_f32 v{UB+8*t+2*hl+1}, v{d+2}, v{d+3}",
                f"v_mov_b64 {v(d,2)}, 0", f"v_mov_b64 {v(d+2,2)}, 0"]
    for c in range(7):
        b = 7 * (c + 1)
        e = epi_u(c)
        F(b + 3, e[0], e[1]); F(b + 4, e[2], e[3])
    xl = []
    for hl in range(4):
        for t in range(2):
            xl.append(f"buffer_load_dwordx4 {v(XV+16*t+4*hl,4)}, v{XVA}, s[{S_X}:{S_X+3}], s{S_XV+hl} offen offset:{1024*t}")
    pl = [f"buffer_load_dwordx4 {v(PR,4)}, v{PX}, s[{S_P}:{S_P+3}], s{S_POFF} offen sc1",
          f"buffer_load_dwordx4 {v(PR+4,4)}, v{PX}, s[{S_P}:{S_P+3}], s{S_POFF} offen offset:1024 sc1",
          f"buffer_load_dwordx4 {v(PR+8,4)}, v{PM}, s[{S_P}:{S_P+3}], s{S_POFF} offen sc1"]
    if OPT['noxv']: xl = []
    pl0 = [] if OPT['nopt'] else pl
    us = []
    for t_ in range(0 if OPT['nous'] else 2):
        for un in range(2):
            us.append(f"buffer_store_dwordx4 {v(UB+8*t_+4*un,4)}, v{US}, s[{S_U}:{S_U+3}], s{S_UOFF} offen offset:{2048*t_+1024*un}")
    for i_, x in enumerate(us): F(1 + i_, x)
    F(6, f"s_add_u32 s{S_UOFF}, s{S_UOFF}, {4*28*2048}")
    for i_, x in enumerate(pl0 + xl): F(12 + 2 * i_, x)
    if not OPT['nopt']: F(36, f"buffer_load_dword v{T0}, v{XT}, s[{S_X}:{S_X+3}], s{S_XV} offen")
    F(2, f"v_mov_b64 {v(OA,2)}, 0", f"v_mov_b64 {v(OA+2,2)}, 0")
    F(3, f"v_mov_b64 {v(OA+4,2)}, 0", f"v_mov_b64 {v(OA+6,2)}, 0")
    stream(A, mf, fill)
    stamp(A, prof, 2)
    e = epi_u(7)
    A("s_nop 7")
    A(e[0]); A(e[1])
    def u_stores():
        for t in range(0 if OPT['nous'] else 2):
            for un in range(2):
                A(f"buffer_store_dwordx4 {v(UB+8*t+4*un,4)}, v{US}, s[{S_U}:{S_U+3}], s{S_UOFF} offen offset:{2048*t+1024*un}")
        A(f"s_add_u32 s{S_UOFF}, s{S_UOFF}, {4*28*2048}")
    A(f"""
    s_cmp_eq_u32 s{S_STEP}, 63
    s_cbranch_scc1 {name}_vo_done
    """)
    pslot = [PR, MF, MF + 12]
    def pissue(i):
        b = pslot[i]
        return [f"buffer_load_dwordx4 {v(b,4)}, v{PX}, s[{S_P}:{S_P+3}], s{S_POFF} offen sc1",
                f"buffer_load_dwordx4 {v(b+4,4)}, v{PX}, s[{S_P}:{S_P+3}], s{S_POFF} offen offset:1024 sc1",
                f"buffer_load_dwordx4 {v(b+8,4)}, v{PM}, s[{S_P}:{S_P+3}], s{S_POFF} offen sc1"]
    def psucc(i):
        stamp(A, prof, 3)
        b = pslot[i]
        for pair in range(2):
            for t in range(2):
                A(f"v_smfmac_f32_16x16x64_bf16 {v(OA+4*t,4)}, {v(b+4*pair,4)}, {v(XV+16*t+8*pair,8)}, v{IDX}")
        for t in range(2):
            A(f"v_smfmac_f32_16x16x64_bf16 {v(OA+4*t,4)}, {v(b+8,4)}, {v(UB+8*t,8)}, v{IDX}")
    poll(A, name, OPT['ps'], pissue, lambda i: range(pslot[i], pslot[i] + 12), MP, psucc, OPT['pd'], A.uniq(name + "_pj"))
    OFF = [0, 66, 160, 226]
    for i in range(4):
        A(f"v_permlane32_swap_b32 v{OA+i}, v{OA+4+i}")
    for i in range(4):
        A(f"v_add_f32 v{OA+i}, v{OA+i}, v{OA+4+i}")
        A(f"ds_write_b32 v{OW}, v{OA+i} offset:{4*OFF[i]}")
    A("s_waitcnt lgkmcnt(0)\ns_barrier")
    stamp(A, prof, 4)
    R = MP
    for w in range(4):
        A(f"ds_read_b64 {v(R+2*w,2)}, v{OR} offset:{w*OWS}")
    A(f"""
    s_add_u32 s{S_MNEXT}, s{S_MOFF}, {L.MB}
    s_waitcnt lgkmcnt(2)
    v_add_f32 v{R}, v{R}, v{R+2}
    v_add_f32 v{R+1}, v{R+1}, v{R+3}
    s_waitcnt lgkmcnt(0)
    v_add_f32 v{R+4}, v{R+4}, v{R+6}
    v_add_f32 v{R+5}, v{R+5}, v{R+7}
    v_add_f32 v{R}, v{R}, v{R+4}
    v_add_f32 v{R+1}, v{R+1}, v{R+5}
    v_cvt_pk_bf16_f32 v{R}, v{R}, v{R+1}
    v_min_u32 v{R}, -2, v{R}
    """)
    store_handoff(A, name, f"buffer_store_dword v{R}, v{MS}, s[{S_M}:{S_M+3}], s{S_MNEXT} offen")
    stamp(A, prof, 5)
    A(f"""
    s_mov_b32 s{S_MOFF}, s{S_MNEXT}
    s_add_u32 s{S_POFF}, s{S_POFF}, {L.PB}
    s_add_u32 s{S_XV}, s{S_XV}, {16*28*1024}
    s_add_u32 s{S_XV+1}, s{S_XV+1}, {16*28*1024}
    s_add_u32 s{S_XV+2}, s{S_XV+2}, {16*28*1024}
    s_add_u32 s{S_XV+3}, s{S_XV+3}, {16*28*1024}
    s_add_u32 s{S_STEP}, s{S_STEP}, 1
    s_branch {name}_vo_loop
    {name}_vo_done:
    """)
    u_stores()
    if prof:
        A(f"s_add_u32 s{S_ROLE}, s{S_ROLE}, 16")
        prof_out(A, name, layer, prof)
    A(f"s_branch {name}_end")

def gen_kr(name, layer, prof=False):
    A = Asm()
    A(f"""
    s_cmp_ge_u32 s2, 256
    s_cbranch_scc1 {name}_end
    s_load_dwordx2 s[{S_WS}:{S_WS+1}], s[0:1], {WS_SLOT}
    v_lshrrev_b32 v1, 6, v0
    s_nop 0
    v_readfirstlane_b32 s{S_WAVE}, v1
    s_waitcnt lgkmcnt(0)
    """)
    team_formation(A, name, layer)
    srd(A, S_M, S_WS, S_WS + 1, L.MI[layer], L.MI_SZ)
    srd(A, S_P, S_WS, S_WS + 1, L.PBUF[layer], L.PB_SZ)
    A(f"""
    s_mov_b32 s{S_STEP}, 0
    s_mov_b32 s{S_MOFF}, 0
    s_mov_b32 s{S_POFF}, 0
    s_mov_b32 s{S_SPIN}, 0
    s_cmp_lt_u32 s{S_ROLE}, 16
    s_cbranch_scc0 {name}_vo
    """)
    qk_role(A, name, layer, prof)
    vo_role(A, name, layer, prof)
    A.label(f"{name}_end")
    A("s_endpgm")
    return A.L
```

```python
D = 448; S = 2048; H = 16; SEG = 32; NSEG = 64; M = 8
NT = 28; KB = 14
UNIT = 1024
IMG = H * NT * KB * UNIT
ROWB = D * 2
XB = S * ROWB
MB = 7168
PB = 10240
off = 0
def alloc(n, align=4096):
    global off
    off = (off + align - 1) // align * align
    o = off; off += n
    return o
AI = alloc(IMG)
VI = alloc(IMG)
FI = alloc(NT * KB * UNIT)
GI = alloc(NT * KB * UNIT)
XN = alloc(XB + 4096)
XI = alloc(XB + 4096)
X1 = alloc(XB)
X2 = alloc(XB)
X3 = alloc(XB)
XV_SZ = NSEG * H * NT * UNIT
XV = alloc(XV_SZ)
MI_SZ = (NSEG + 1) * MB
PB_SZ = NSEG * PB
MI = [alloc(MI_SZ), alloc(MI_SZ)]
PBUF = [alloc(PB_SZ), alloc(PB_SZ)]
UI_STEP = 4 * NT * 2048
UI_SZ = (NSEG + 1) * UI_STEP
UI = alloc(UI_SZ)
PTX_SZ = NSEG * H * 2 * UNIT
PTX = alloc(PTX_SZ)
PTM_SZ = NSEG * 8 * 2 * UNIT
PTM = alloc(PTM_SZ)
ZF = alloc(450 * S * 2 + 4096)
ZI = alloc(450 * S * 2 + 4096)
WT = alloc(225 * S * 8)
TB = alloc(1 << 20)
CT = [alloc(16384), alloc(16384)]
WS_END = off
if __name__ == "__main__":
    for k, val in list(globals().items()):
        if k.isupper(): print(k, val if not isinstance(val, int) else hex(val))
```

```python
import sys, re
from asm import *
from build import HDR
import layout as L, ka, kb, kp, kr
MAIN = "interleave_layers__memory_aug_recurrent_mem_tr__spectral_gfnet__prompt_kernel"
PATH = "interleave_layers__memory_aug_recurrent_mem_tr__spectral_gfnet__prompt.s"
def two(name, lines, vg, ag):
    return [(f"{name}0_kernel", ["  s_mov_b32 s3, 0", f"  s_branch {name}_common"], vg, ag),
            (f"{name}1_kernel", ["  s_mov_b32 s3, 1", f"{name}_common:"] + lines, vg, ag)]
def kernels():
    K = [(MAIN, kp.gen_prep("prep"), 256, 0)]
    K += [("kx_kernel", ka.gen_kx("kx"), 256, 256)]
    K += [("kr0_kernel", kr.gen_kr("kr0", 0), 256, 256), ("kr1_kernel", kr.gen_kr("kr1", 1), 256, 256)]
    K += two("kt", ka.gen_kt("kt"), 256, 256)
    K += two("ko", ka.gen_ko("ko"), 128, 168)
    K += two("kba", kb.gen_kb1("kba"), 132, 112)
    K += [("kbb_kernel", kb.gen_kb2("kbb"), 168, 0)]
    K += two("kbc", kb.gen_kb3("kbc"), 256, 256)
    return K
G = 160 * 1024
LAUNCH = [(MAIN, 256, G)]
for l in range(2):
    LAUNCH += [("kx_kernel", 256, G), (f"kr{l}_kernel", 256, G), (f"kt{l}_kernel", 256, G), (f"ko{l}_kernel", 256, 57344),
               (f"kba{l}_kernel", 256, 28672), ("kbb_kernel", 225, 16384), (f"kbc{l}_kernel", 64, 36864)]
def build_text(K, launch):
    ref = open(PATH + ".ref").read().split("\n")
    hdr = [x for x in ref if x.startswith(";") and "@launch" not in x and "Override" not in x and "grid=ceil" not in x]
    hdr = hdr[:hdr.index(next(x for x in hdr if "d_ws " in x)) + 1]
    txt = "\n".join(hdr) + "\n"
    for k, g, lds in launch: txt += f"; @launch kernel={k} grid=({g},1,1) block=(256,1,1) lds={lds}\n"
    txt += HDR
    desc = '.section .rodata,"a"\n'
    for name, lines, vg, ag in K:
        t, n = kernel_text(name, lines)
        t = "\n".join(x.split(";")[0].rstrip() if not x.lstrip().startswith(".") else x for x in t.split("\n") if x.strip())
        t = re.sub(r"^ +", " ", t, flags=re.M)
        txt += t + "\n"
        desc += ".p2align 6\n" + kernel_desc(name, vg, ag)
    return txt + desc
if __name__ == "__main__":
    kr.OPT.update(ms=1, ps=1, nopt=1)
    txt = build_text(kernels(), LAUNCH)
    open(PATH, "w").write(txt)
    print(len(txt), "bytes")
```

```python
from asm import *
import layout as L
import kr, ka
from ka import srd, stream, gemm_phases, load_weights, aread, acc, afrag, Wu, sel_ptr
from ka import (LANE, LR, XR, XRN, XG, ST, ST2, KA, KH, MKA, SPW, SPR, AF, ACC, TMP, PMA, PMM, MG, BIAS, WV, SEGB)
from ka import (S_WS, S_WAVE, S_LAYER, S_T, S_W, S_X, S_O, S_M, S_O2, S_HEAD, S_SEG, S_CNT, S_CUR, S_NXT, S_NN, S_XO, S_XP, S_4K,
                S_MO, S_PO, S_PM, S_MU)
S_WL = kr.S_WL
S_FL = 56
S_FP = 60; S_SPN = 61
SPIN_MAX = kr.SPIN_MAX
OOB = 0x40000000
GSTR = 4

PROF = [0]
OPT = dict(steal=0)
TRACE2 = L.TB + (1 << 18)
def wst(A):
    if PROF[0] != 3: return
    A("""
    s_memrealtime s[98:99]
    s_waitcnt lgkmcnt(0)
    s_mov_b32 m0, s97
    s_nop 0
    s_movreld_b32 s64, s98
    s_add_u32 s97, s97, 1
    s_cmp_eq_u32 s97, 12
    s_cselect_b32 s97, 14, s97
    s_min_u32 s97, s97, 32
    """)
def wdump(A):
    if PROF[0] != 3: return
    l = A.uniq("wd")
    A(f"""
    v_mov_b32 v2, 0
    """)
    for i in range(33):
        if i not in (12, 13): A(f"v_writelane_b32 v2, s{64+i}, {i if i < 12 else i - 2}")
    A(f"""
    v_and_b32 v1, 63, v0
    v_lshlrev_b32 v1, 2, v1
    s_lshl_b32 s98, s101, 8
    s_add_u32 s98, s98, {TRACE2}
    v_add_u32 v1, s98, v1
    s_cmp_eq_u32 s{S_WAVE}, 0
    s_cbranch_scc0 {l}
    global_store_dword v1, v2, s[{S_WS}:{S_WS+1}]
    s_waitcnt vmcnt(0)
    {l}:
    """)
NEED = [32, 23, 23, 23, 23, 23, 23, 22]
STEAL_AFTER = 48
def prologue(A, name):
    dbg = OPT['steal']
    A(f"""
    s_cmp_ge_u32 s2, 256
    s_cbranch_scc1 {name}_end
    s_load_dwordx2 s[{S_WS}:{S_WS+1}], s[0:1], 96
    v_lshrrev_b32 v1, 6, v0
    s_getreg_b32 s8, hwreg(HW_REG_XCC_ID, 0, 4)
    v_readfirstlane_b32 s{S_WAVE}, v1
    s_mul_i32 s9, s{S_LAYER}, {L.LS}
    s_and_b32 s8, s8, 7
    s_waitcnt lgkmcnt(0)
    s_add_u32 s{S_WL}, s{S_WS}, s9
    s_addc_u32 s{S_WL+1}, s{S_WS+1}, 0
    s_cmp_eq_u32 s{S_WAVE}, 0
    s_cbranch_scc0 {name}_tk_wait
    s_add_u32 s10, s{S_WL}, {L.CT}
    s_addc_u32 s11, s{S_WL+1}, 0
    s_lshl_b32 s9, s8, 8
    v_mov_b32 v3, s9
    v_mov_b32 v4, 1
    s_mov_b64 exec, 1
    """)
    if dbg: A(f"s_cmp_eq_u32 s8, 0\ns_cbranch_scc1 {name}_rs")
    A(f"""
    global_atomic_add v5, v3, v4, s[10:11] sc0 sc1
    s_mov_b32 s12, 23
    s_cmp_eq_u32 s8, 0
    s_cselect_b32 s12, 32, s12
    s_cmp_eq_u32 s8, 7
    s_cselect_b32 s12, 22, s12
    s_waitcnt vmcnt(0)
    v_readfirstlane_b32 s7, v5
    s_and_b32 s7, s7, 0xffff
    s_cmp_lt_u32 s7, s12
    s_cbranch_scc1 {name}_tk_pub
    {name}_rs:
    s_mov_b64 exec, 0xff
    v_and_b32 v7, 63, v0
    v_lshlrev_b32 v6, 8, v7
    v_cmp_eq_u32 vcc, 7, v7
    v_mov_b32 v8, 23
    v_cndmask_b32 v8, v8, 22, vcc
    v_cmp_eq_u32 vcc, 0, v7
    v_cndmask_b32 v7, v8, 32, vcc
    s_mov_b32 s13, 0
    s_sleep 32
    {name}_rl:
    global_load_dword v5, v6, s[10:11] sc0 sc1
    s_waitcnt vmcnt(0)
    v_and_b32 v8, 0xffff, v5
    v_cmp_lt_u32 vcc, v8, v7
    s_nop 1
    s_and_b64 vcc, vcc, exec
    s_cbranch_scc0 {name}_rx
    s_add_u32 s13, s13, 1
    s_cmp_ge_u32 s13, {SPIN_MAX}
    s_cbranch_scc1 {name}_rx
    s_cmp_ge_u32 s13, {2 if dbg else STEAL_AFTER}
    s_cbranch_scc1 {name}_st
    s_sleep 8
    s_branch {name}_rl
    {name}_st:
    s_ff1_i32_b64 s14, vcc
    s_nop 0
    v_readlane_b32 s15, v5, s14
    s_add_u32 s12, s15, 1
    s_cmp_eq_u32 s14, 0
    s_cbranch_scc0 {name}_st1
    s_cmp_eq_u32 s8, 0
    s_cbranch_scc1 {name}_st1
    s_add_u32 s12, s12, 0x10000
    {name}_st1:
    s_mov_b64 exec, 1
    s_lshl_b32 s9, s14, 8
    v_mov_b32 v3, s9
    v_mov_b32 v4, s12
    v_mov_b32 v5, s15
    global_atomic_cmpswap v9, v3, v[4:5], s[10:11] sc0 sc1
    s_waitcnt vmcnt(0)
    v_readfirstlane_b32 s12, v9
    s_mov_b64 exec, 0xff
    s_cmp_eq_u32 s12, s15
    s_cbranch_scc0 {name}_rl
    s_mov_b32 s8, s14
    s_and_b32 s7, s15, 0xffff
    s_branch {name}_tk_pub
    {name}_rx:
    s_mov_b32 s8, 255
    s_mov_b32 s7, 255
    {name}_tk_pub:
    s_mov_b64 exec, 1
    s_lshl_b32 s9, s8, 8
    s_or_b32 s9, s9, s7
    v_mov_b32 v3, 0
    v_mov_b32 v5, s9
    ds_write_b32 v3, v5
    s_waitcnt lgkmcnt(0)
    s_mov_b64 exec, -1
    {name}_tk_wait:
    s_barrier
    v_mov_b32 v3, 0
    ds_read_b32 v4, v3
    s_waitcnt lgkmcnt(0)
    v_readfirstlane_b32 s7, v4
    s_barrier
    s_lshr_b32 s8, s7, 8
    s_and_b32 s7, s7, 255
    """)

def dispatch(A, name):
    A(f"""
    s_cmp_ge_u32 s7, 32
    s_cbranch_scc1 {name}_end
    s_cmp_eq_u32 s8, 0
    s_cbranch_scc0 {name}_wk
    s_cmp_ge_u32 s7, {kr.TEAM}
    s_cbranch_scc1 {name}_pf
    s_mov_b32 s{kr.S_ROLE}, s7
    s_mov_b32 s{kr.S_WAVE}, s{S_WAVE}
    s_branch {name}_team
    {name}_wk:
    """)
    if PROF[0] == 3:
        A("s_lshl_b32 s101, s8, 5\ns_add_u32 s101, s101, s7\ns_mov_b32 s97, 0")
        for i in range(33):
            if i not in (12, 13): A(f"s_mov_b32 s{64+i}, 0")
        wst(A)
    A(f"""
    s_sub_u32 s9, s8, 1
    s_cmp_lt_u32 s7, 16
    s_cbranch_scc0 {name}_wk_hi
    s_lshr_b32 s10, s7, 3
    s_bfe_u32 s11, s7, 0x10002
    s_mul_i32 s11, s11, 7
    s_add_u32 s{S_HEAD}, s11, s9
    s_and_b32 s{S_SEG}, s7, 3
    s_branch {name}_wk_xt
    {name}_wk_hi:
    s_sub_u32 s10, s7, 16
    s_mul_i32 s10, s10, 7
    s_add_u32 s9, s10, s9               ; e = 0..111
    s_cmp_lt_u32 s9, 16
    s_cbranch_scc0 {name}_wk_o
    s_lshr_b32 s10, s9, 3
    s_bfe_u32 s11, s9, 0x10002
    s_add_u32 s{S_HEAD}, s11, 14
    s_and_b32 s{S_SEG}, s9, 3
    {name}_wk_xt:
    s_cmp_eq_u32 s10, 0
    s_cbranch_scc1 {name}_gx
    s_branch {name}_gt
    {name}_wk_o:
    s_sub_u32 s9, s9, 16
    s_cmp_lt_u32 s9, 32
    s_cbranch_scc0 {name}_end
    s_lshr_b32 s40, s9, 2               ; group
    s_and_b32 s41, s9, 3                ; quarter
    s_branch {name}_go
    """)

def fl_srd(A):
    srd(A, S_FL, S_WL, L.FL - 256, L.CT_SZ - 4096 + 256)

def x_dma(slot_s):
    l = [f"s_mul_i32 s{S_T}, s{S_WAVE}, 7168", f"s_add_u32 s{S_T}, s{S_T}, s{slot_s}", f"s_mov_b32 m0, s{S_T}"]
    for i in range(4): l.append(f"buffer_load_dwordx4 v{XG}, s[{S_X}:{S_X+3}], 0 offen offset:{1024*i} lds")
    l += [f"s_add_u32 s{S_T}, s{S_T}, 4096", f"s_mov_b32 m0, s{S_T}"]
    for i in range(3): l.append(f"buffer_load_dwordx4 v{XG}, s[{S_X}:{S_X+3}], s{S_4K} offen offset:{1024*i} lds")
    l.append(f"v_add_u32 v{XG}, {GSTR*SEGB}, v{XG}")
    return l

def ring_init(A, base):
    A(f"""
    s_mov_b32 s{S_CUR}, {base}
    s_mov_b32 s{S_NXT}, {base+SEGB}
    s_mov_b32 s{S_NN}, {base+2*SEGB}
    s_mov_b32 s{S_4K}, 4096
    v_add_u32 v{XR}, {base}, v{LR}
    v_add_u32 v{XRN}, {base+SEGB}, v{LR}
    s_mul_i32 s{S_T}, s{S_SEG}, {SEGB}
    s_mul_i32 s{S_T+1}, s{S_WAVE}, 7168
    s_add_u32 s{S_T}, s{S_T}, s{S_T+1}
    v_add_u32 v{XG}, s{S_T}, v{LR}
    """)

def gx_role(A, name):
    ST2R = 8; FA = 9; ONE = 10
    A.label(f"{name}_gx")
    srd(A, S_W, S_WS, L.VI, L.IMG)
    srd(A, S_X, S_WL, L.XI, L.XB)
    srd(A, S_O, S_WL, L.XV, L.XV_SZ)
    fl_srd(A)
    A(f"v_and_b32 v{LANE}, 63, v0\nv_lshlrev_b32 v{LR}, 4, v{LANE}\ns_mov_b32 s{S_CNT}, {64//GSTR}")
    ring_init(A, 0)
    for x in x_dma(S_CUR): A(x)
    load_weights(A, False)
    for x in x_dma(S_NXT): A(x)
    A(f"""
    s_mul_i32 s{S_T}, s{S_HEAD}, 28
    s_mul_i32 s{S_T+1}, s{S_WAVE}, 7
    s_add_u32 s{S_T}, s{S_T}, s{S_T+1}
    s_lshl_b32 s{S_T}, s{S_T}, 10
    v_add_u32 v{ST}, s{S_T}, v{LR}
    v_add_u32 v{ST2R}, 4096, v{ST}
    v_mov_b32 v{ST2}, {OOB}
    s_lshl_b32 s{S_T}, s{S_HEAD}, 2
    s_add_u32 s{S_T}, s{S_T}, {L.FL_XV}
    v_mov_b32 v{FA}, s{S_T}
    v_cmp_eq_u32 vcc, 0, v0
    v_cndmask_b32 v{FA}, v{ST2}, v{FA}, vcc
    v_mov_b32 v{ONE}, 1
    s_mov_b32 s{S_FP}, 0
    s_mul_i32 s{S_XO}, s{S_SEG}, {16*SEGB}
    s_mov_b32 s{S_XP}, s{S_XO}
    s_waitcnt vmcnt(49)
    s_barrier
    """)
    wst(A)
    for st in range(2):
        for x in aread(st, XR, st): A(x)
    A.label(f"{name}_gx_loop")
    mf, fill, start = gemm_phases(False)
    def F(i, *ins): fill.setdefault(i, []).extend(ins)
    def epi(tau, t, vst, soff, off):
        return [f"v_cvt_pk_bf16_f32 v{t}, v{acc(tau,0)}, v{acc(tau,0)+1}",
                f"v_cvt_pk_bf16_f32 v{t+1}, v{acc(tau,0)+2}, v{acc(tau,0)+3}",
                f"v_cvt_pk_bf16_f32 v{t+2}, v{acc(tau,1)}, v{acc(tau,1)+1}",
                f"v_cvt_pk_bf16_f32 v{t+3}, v{acc(tau,1)+2}, v{acc(tau,1)+3}",
                f"buffer_store_dwordx4 {v(t,4)}, v{vst}, s[{S_O}:{S_O+3}], s{soff} offen offset:{off} sc1"]
    for j, tau in enumerate(range(4, 7)):
        e = epi(tau, TMP + 4 * (j & 1), ST2, S_XP, 1024 * j)
        p = start[1 + 2 * j]
        for i_, x in enumerate(e): F(p + 1 + i_, x)
    F(start[14] - 1, "s_waitcnt vmcnt(0)", "s_barrier",
      f"buffer_store_dword v{ONE}, v{FA}, s[{S_FL}:{S_FL+3}], s{S_FP} offen sc1")
    for tau in range(4):
        e = epi(tau, TMP + 4 * (tau & 1), ST, S_XO, 1024 * tau)
        p = start[15 + 2 * tau]
        for i_, x in enumerate(e): F(p + 1 + i_, x)
    F(start[26], *aread(28, XRN, 0))
    F(start[27], *aread(29, XRN, 1))
    dm = x_dma(S_NN)
    for i_, x in enumerate(dm): F(start[24] + 1 + i_ * 20 // len(dm), x)
    stream(A, mf, fill)
    ka.ring_rotate(A)
    A(f"""
    v_mov_b32 v{ST2}, v{ST2R}
    s_mov_b32 s{S_XP}, s{S_XO}
    s_add_u32 s{S_XO}, s{S_XO}, {GSTR*16*SEGB}
    s_add_u32 s{S_FP}, s{S_SEG}, 1
    s_lshl_b32 s{S_FP}, s{S_FP}, 8
    s_add_u32 s{S_SEG}, s{S_SEG}, {GSTR}
    s_sub_u32 s{S_CNT}, s{S_CNT}, 1
    s_cmp_lg_u32 s{S_CNT}, 0
    s_cbranch_scc1 {name}_gx_loop
    """)
    A("s_nop 7")
    for j, tau in enumerate(range(4, 7)):
        for x in epi(tau, TMP + 4 * (j & 1), ST2, S_XP, 1024 * j): A(x)
    A(f"""
    s_waitcnt vmcnt(0)
    s_barrier
    buffer_store_dword v{ONE}, v{FA}, s[{S_FL}:{S_FL+3}], s{S_FP} offen sc1
    """)
    wst(A)
    MP0 = XR; MP1 = XRN; UA = ST; UA2 = ST2; MD = AF
    MK = [ACC + 8 * i + 4 for i in range(7)]
    srd(A, S_M, S_WL, L.MX, L.MI_SZ)
    srd(A, S_O, S_WL, L.UI, L.UI_SZ)
    A(f"""
    s_sub_u32 s{S_SEG}, s{S_SEG}, 64
    s_mov_b32 s{S_CNT}, {64//GSTR}
    s_mov_b32 s{S_SPN}, 0
    s_lshl_b32 s{S_T+4}, s{S_WAVE}, 10
    v_add_u32 v{MP0}, s{S_T+4}, v{LR}
    s_add_u32 s{S_T+5}, s{S_T+4}, 4096
    s_cmp_eq_u32 s{S_WAVE}, 3
    s_cselect_b32 s{S_T+4}, s{S_T+4}, s{S_T+5}
    v_add_u32 v{MP1}, s{S_T+4}, v{LR}
    v_and_b32 v20, 15, v{LANE}            ; n
    v_lshrrev_b32 v21, 4, v{LANE}         ; g
    v_and_b32 v22, 7, v20
    v_lshlrev_b32 v22, 4, v22
    v_lshrrev_b32 v23, 1, v21
    v_lshl_add_u32 v22, v23, 8, v22
    v_and_b32 v23, 1, v21
    v_lshl_add_u32 v22, v23, 3, v22
    """)
    for i in range(7): A(f"v_add_u32 v{MK[i]}, {1024*i}, v22")
    A(f"""
    s_lshr_b32 s{S_T}, s{S_HEAD}, 2
    s_mul_i32 s{S_T}, s{S_T}, 28
    s_mul_i32 s{S_T+1}, s{S_WAVE}, 7
    s_add_u32 s{S_T}, s{S_T}, s{S_T+1}
    s_lshl_b32 s{S_T}, s{S_T}, 10
    s_and_b32 s{S_T+1}, s{S_HEAD}, 3
    s_lshl_b32 s{S_T+1}, s{S_T+1}, 8
    s_add_u32 s{S_T}, s{S_T}, s{S_T+1}
    v_lshlrev_b32 v22, 4, v20
    v_lshl_add_u32 v22, v21, 3, v22
    v_add_u32 v22, s{S_T}, v22
    v_mov_b32 v23, {OOB}
    v_cmp_gt_u32 vcc, 2, v21
    v_cndmask_b32 v{UA}, v23, v22, vcc
    v_add_u32 v{UA2}, 4096, v{UA}
    v_add_u32 v{FA}, {L.FL_U - L.FL_XV}, v{FA}
    s_mul_i32 s{S_MO}, s{S_SEG}, {L.MB}
    s_mul_i32 s{S_XO}, s{S_SEG}, {L.UI_STEP}
    s_add_u32 s{S_FP}, s{S_SEG}, 1
    s_lshl_b32 s{S_FP}, s{S_FP}, 8
    """)
    A.label(f"{name}_gu_loop")
    poll_mx(A, name, MD, MP0, MP1)
    def rd(kb):
        o = 128 * (kb & 1); r = AF + 4 * (kb % 4)
        A(f"ds_read2_b32 {v(r,2)}, v{MK[kb>>1]} offset0:{o} offset1:{o+32}")
        A(f"ds_read2_b32 {v(r+2,2)}, v{MK[kb>>1]} offset0:{o+1} offset1:{o+33}")
    for kb in range(4): rd(kb)
    for kb in range(14):
        A(f"s_waitcnt lgkmcnt({2*min(3, 13-kb)})")
        for tau in range(7):
            d = v(acc(tau, 0), 4)
            A(f"v_mfma_f32_16x16x32_bf16 {d}, {v(AF+4*(kb%4),4)}, {Wu(tau,kb)}, {d if kb else 0}")
        if kb + 4 < 14: rd(kb + 4)
    for tau in range(7):
        d = acc(tau, 0)
        A(f"""
        v_cvt_pk_bf16_f32 v{d}, v{d}, v{d+1}
        v_cvt_pk_bf16_f32 v{d+1}, v{d+2}, v{d+3}
        buffer_store_dwordx2 {v(d,2)}, v{UA if tau < 4 else UA2}, s[{S_O}:{S_O+3}], s{S_XO} offen offset:{1024*(tau&3)} sc1
        """)
    A(f"""
    s_waitcnt vmcnt(0)
    s_barrier
    buffer_store_dword v{ONE}, v{FA}, s[{S_FL}:{S_FL+3}], s{S_FP} offen sc1
    """)
    wst(A)
    A(f"""
    s_add_u32 s{S_MO}, s{S_MO}, {GSTR*L.MB}
    s_add_u32 s{S_XO}, s{S_XO}, {GSTR*L.UI_STEP}
    s_add_u32 s{S_FP}, s{S_FP}, {GSTR*256}
    s_sub_u32 s{S_CNT}, s{S_CNT}, 1
    s_cmp_lg_u32 s{S_CNT}, 0
    s_cbranch_scc1 {name}_gu_loop
    s_waitcnt vmcnt(0)
    """)
    wdump(A)
    A(f"s_branch {name}_end")

def poll_mx(A, name, MD, MP0, MP1):
    lp = A.uniq(name + "_mp"); ok = A.uniq(name + "_mok")
    A(f"""
    {lp}:
    buffer_load_dwordx4 {v(MD,4)}, v{MP0}, s[{S_M}:{S_M+3}], s{S_MO} offen sc0 sc1
    buffer_load_dwordx4 {v(MD+4,4)}, v{MP1}, s[{S_M}:{S_M+3}], s{S_MO} offen sc0 sc1
    s_waitcnt vmcnt(0)
    v_max3_u32 v{TMP}, v{MD}, v{MD+1}, v{MD+2}
    v_max3_u32 v{TMP+1}, v{MD+3}, v{MD+4}, v{MD+5}
    v_max3_u32 v{TMP}, v{TMP}, v{MD+6}, v{MD+7}
    v_max_u32 v{TMP}, v{TMP}, v{TMP+1}
    v_cmp_eq_u32 vcc, -1, v{TMP}
    s_cbranch_vccz {ok}
    s_add_u32 s{S_SPN}, s{S_SPN}, 1
    s_cmp_lt_u32 s{S_SPN}, {SPIN_MAX}
    s_cbranch_scc1 {lp}
    s_branch {name}_end
    {ok}:
    ds_write_b128 v{MP0}, {v(MD,4)}
    ds_write_b128 v{MP1}, {v(MD+4,4)}
    s_waitcnt lgkmcnt(0)
    s_barrier
    """)

RING = 8192; SPBASE = RING + 3 * SEGB
def gt_role(A, name):
    MP0 = MG; MP1 = 111; MD = AF + 16; PF = 6
    A.label(f"{name}_gt")
    srd(A, S_W, S_WS, L.AI, L.IMG)
    srd(A, S_X, S_WL, L.XI, L.XB)
    srd(A, S_O, S_WL, L.PTX, L.PTX_SZ)
    srd(A, S_O2, S_WL, L.PTM, L.PTM_SZ)
    srd(A, S_M, S_WL, L.MX, L.MI_SZ)
    fl_srd(A)
    A(f"v_and_b32 v{LANE}, 63, v0\nv_lshlrev_b32 v{LR}, 4, v{LANE}\ns_mov_b32 s{S_CNT}, {64//GSTR}\ns_mov_b32 s{S_SPN}, 0")
    ring_init(A, RING)
    for x in x_dma(S_CUR): A(x)
    load_weights(A, True)
    A(f"""
    s_cmp_lg_u32 s{S_T+3}, 0
    s_cselect_b64 s[{S_MU}:{S_MU+1}], -1, 0
    s_lshl_b32 s{S_T+4}, s{S_T+1}, 10
    s_lshl_b32 s{S_T+5}, s{S_T+2}, 10
    v_mov_b32 v{KA}, s{S_T+4}
    v_mov_b32 v{KH}, s{S_T+5}
    v_and_b32 v20, 15, v{LANE}            ; n
    v_lshrrev_b32 v21, 4, v{LANE}         ; g
    v_and_b32 v22, 7, v20
    v_lshlrev_b32 v22, 4, v22
    v_lshrrev_b32 v23, 1, v21
    v_lshl_add_u32 v22, v23, 8, v22
    v_and_b32 v23, 1, v21
    v_lshl_add_u32 v22, v23, 3, v22
    """)
    for i in range(4):
        A(f"s_add_u32 s{S_T+4}, s{S_T+1}, {i}" if i < 3 else f"s_mov_b32 s{S_T+4}, s{S_T+2}")
        A(f"s_lshl_b32 s{S_T+4}, s{S_T+4}, 9\nv_add_u32 v{MKA+i}, s{S_T+4}, v22")
    A(f"""
    s_mul_i32 s{S_T+4}, s{S_WAVE}, 6144
    s_add_u32 s{S_T+4}, s{S_T+4}, {SPBASE}
    v_add_u32 v{SPW}, s{S_T+4}, v{LR}
    s_and_b32 s{S_T+5}, s{S_WAVE}, 1
    s_mul_i32 s{S_T+4}, s{S_T+5}, 3072
    s_add_u32 s{S_T+4}, s{S_T+4}, {SPBASE}
    v_add_u32 v{SPR}, s{S_T+4}, v{LR}
    v_lshrrev_b32 v22, 2, v20
    v_lshlrev_b32 v22, 3, v22
    v_and_b32 v23, 3, v20
    v_add_u32 v22, v22, v23
    s_lshl_b32 s{S_T+4}, s{S_T+5}, 2
    v_add_u32 v22, s{S_T+4}, v22
    v_lshlrev_b32 v23, 3, v21
    v_sub_u32 v22, v22, v23
    v_mov_b32 v23, 0xff800000
    """)
    for j in range(8):
        A(f"v_cmp_gt_i32 vcc, {j}, v22\nv_cndmask_b32 v{BIAS+j}, 0, v23, vcc")
    A(f"""
    s_lshl_b32 s{S_T+4}, s{S_HEAD}, 1
    s_add_u32 s{S_T+4}, s{S_T+4}, s{S_T+5}
    s_lshl_b32 s{S_T+6}, s{S_T+4}, 2
    s_add_u32 s{S_T+6}, s{S_T+6}, {L.FL_PT}
    v_mov_b32 v22, s{S_T+6}
    v_mov_b32 v23, {OOB}
    v_cmp_eq_u32 vcc, 0, v{LANE}
    v_cndmask_b32 v{PF}, v23, v22, vcc
    s_lshl_b32 s{S_T+4}, s{S_T+4}, 10
    v_add_u32 v{PMA}, s{S_T+4}, v{LR}
    s_lshr_b32 s{S_T+4}, s{S_HEAD}, 2
    s_lshl_b32 s{S_T+4}, s{S_T+4}, 1
    s_add_u32 s{S_T+4}, s{S_T+4}, s{S_T+5}
    s_lshl_b32 s{S_T+4}, s{S_T+4}, 10
    s_and_b32 s{S_T+6}, s{S_HEAD}, 3
    s_lshl_b32 s{S_T+6}, s{S_T+6}, 8
    s_add_u32 s{S_T+4}, s{S_T+4}, s{S_T+6}
    v_lshlrev_b32 v22, 4, v20
    v_lshl_add_u32 v22, v21, 3, v22
    v_add_u32 v22, s{S_T+4}, v22
    v_cmp_gt_u32 vcc, 2, v21
    v_cndmask_b32 v{PMM}, v23, v22, vcc
    s_lshl_b32 s{S_PO}, s{S_SEG}, 15
    s_lshl_b32 s{S_PM}, s{S_SEG}, 13
    s_mul_i32 s{S_MO}, s{S_SEG}, {L.MB}
    s_add_u32 s{S_FP}, s{S_SEG}, 1
    s_lshl_b32 s{S_FP}, s{S_FP}, 8
    s_lshl_b32 s{S_T+4}, s{S_WAVE}, 10
    v_add_u32 v{MP0}, s{S_T+4}, v{LR}
    s_add_u32 s{S_T+5}, s{S_T+4}, 4096
    s_cmp_eq_u32 s{S_WAVE}, 3
    s_cselect_b32 s{S_T+4}, s{S_T+4}, s{S_T+5}
    v_add_u32 v{MP1}, s{S_T+4}, v{LR}
    """)
    for x in x_dma(S_NXT): A(x)
    A("s_waitcnt vmcnt(49)\ns_barrier")
    A.label(f"{name}_gt_loop")
    for st in range(2):
        for x in aread(st, XR, st): A(x)
    mf, fill, start = gemm_phases(True, next_prefetch=False)
    def F(i, *ins): fill.setdefault(i, []).extend(ins)
    def cvt_pair(p, nu):
        d = acc(2 * p, nu); e = acc(2 * p + 1, nu)
        return [f"v_cvt_pk_bf16_f32 v{d}, v{d}, v{d+1}", f"v_cvt_pk_bf16_f32 v{d+1}, v{d+2}, v{d+3}",
                f"v_cvt_pk_bf16_f32 v{d+2}, v{e}, v{e+1}", f"v_cvt_pk_bf16_f32 v{d+3}, v{e+2}, v{e+3}"]
    F(start[14] - 1, "s_waitcnt vmcnt(7)")
    k = start[15]
    for p in range(2):
        for nu in range(2):
            for x in cvt_pair(p, nu): F(k, x); k += 1
    stream(A, mf, fill)
    KX = AF
    A(f"v_add_u32 v{TMP}, v{XR}, v{KA}\nv_add_u32 v{TMP+1}, v{XR}, v{KH}")
    for b in range(4):
        for mu in range(2):
            if b < 3: A(f"ds_read_b128 {v(KX+8*b+4*mu,4)}, v{TMP} offset:{(mu*14+b)*1024}")
            else: A(f"ds_read_b128 {v(KX+8*b+4*mu,4)}, v{TMP+1} offset:{mu*14*1024}")
    for nu in range(2):
        for x in cvt_pair(2, nu): A(x)
    for nu in range(2):
        d = acc(6, nu)
        A(f"""
        v_cvt_pk_bf16_f32 v{TMP+2}, v{d}, v{d+1}
        v_cvt_pk_bf16_f32 v{TMP+3}, v{d+2}, v{d+3}
        v_cndmask_b32 v{d}, v{TMP+2}, 0, s[{S_MU}:{S_MU+1}]
        v_cndmask_b32 v{d+1}, v{TMP+3}, 0, s[{S_MU}:{S_MU+1}]
        v_cndmask_b32 v{d+2}, 0, v{TMP+2}, s[{S_MU}:{S_MU+1}]
        v_cndmask_b32 v{d+3}, 0, v{TMP+3}, s[{S_MU}:{S_MU+1}]
        """)
    def TF(b, nu): return v(acc(2 * b, nu), 4)
    SACC = [[acc(1, 0), acc(1, 1)], [acc(3, 0), acc(3, 1)], [acc(5, 0), acc(5, 1)]]
    for b in range(4):
        A(f"s_waitcnt lgkmcnt({6-2*b})")
        for mu in range(2):
            for nu in range(2):
                d = v(SACC[mu][nu], 4)
                A(f"v_mfma_f32_16x16x32_bf16 {d}, {v(KX+8*b+4*mu,4)}, {TF(b,nu)}, {d if b else 0}")
    A("s_nop 7")
    poll_mx(A, name, MD, MP0, MP1)
    wst(A)
    for b in range(4):
        A(f"ds_read2_b32 {v(KX+4*b,2)}, v{MKA+b} offset0:0 offset1:32")
        A(f"ds_read2_b32 {v(KX+4*b+2,2)}, v{MKA+b} offset0:1 offset1:33")
    for b in range(4):
        A(f"s_waitcnt lgkmcnt({6-2*b})")
        for nu in range(2):
            d = v(SACC[2][nu], 4)
            A(f"v_mfma_f32_16x16x32_bf16 {d}, {v(KX+4*b,4)}, {TF(b,nu)}, {d if b else 0}")
    for nu in range(2):
        for kap in range(3):
            A(f"ds_write_b128 v{SPW}, {v(SACC[kap][nu],4)} offset:{(nu*3+kap)*1024}")
    A("s_waitcnt lgkmcnt(0)\ns_barrier")
    skip = A.uniq(name + "_nosm")
    A(f"s_cmp_ge_u32 s{S_WAVE}, 2\ns_cbranch_scc1 {skip}")
    R = ACC
    for w in range(4):
        for kap in range(3):
            A(f"ds_read_b128 {v(R+12*w+4*kap,4)}, v{SPR} offset:{w*6144+kap*1024}")
    A("s_waitcnt lgkmcnt(6)")
    for i in range(12): A(f"v_add_f32 v{R+i}, v{R+i}, v{R+12+i}")
    A("s_waitcnt lgkmcnt(0)")
    for i in range(12): A(f"v_add_f32 v{R+24+i}, v{R+24+i}, v{R+36+i}")
    for i in range(8): A(f"v_add_f32 v{R+24+i}, v{R+24+i}, v{BIAS+i}")
    for i in range(12): A(f"v_add_f32 v{R+i}, v{R+i}, v{R+24+i}")
    MX = R + 12; T = R + 13; SM = R + 14
    A(f"""
    v_max3_f32 v{MX}, v{R}, v{R+1}, v{R+2}
    v_max3_f32 v{T}, v{R+3}, v{R+4}, v{R+5}
    v_max3_f32 v{MX}, v{MX}, v{R+6}, v{R+7}
    v_max3_f32 v{T}, v{T}, v{R+8}, v{R+9}
    v_max3_f32 v{MX}, v{MX}, v{R+10}, v{R+11}
    v_max_f32 v{MX}, v{MX}, v{T}
    v_mov_b32 v{T}, v{MX}
    v_permlane16_swap_b32 v{MX}, v{T}
    v_max_f32 v{MX}, v{MX}, v{T}
    v_mov_b32 v{T}, v{MX}
    v_permlane32_swap_b32 v{MX}, v{T}
    v_max_f32 v{MX}, v{MX}, v{T}
    """)
    for i in range(12): A(f"v_sub_f32 v{R+i}, v{R+i}, v{MX}")
    for i in range(12): A(f"v_exp_f32 v{R+i}, v{R+i}")
    A(f"""
    v_add_f32 v{SM}, v{R+8}, v{R+9}
    v_add_f32 v{T}, v{R+10}, v{R+11}
    v_add_f32 v{SM}, v{SM}, v{T}
    v_mul_f32 v{SM}, 0.5, v{SM}
    v_add_f32 v{T}, v{R}, v{R+1}
    v_add_f32 v{MX}, v{R+2}, v{R+3}
    v_add_f32 v{SM}, v{SM}, v{T}
    v_add_f32 v{T}, v{R+4}, v{R+5}
    v_add_f32 v{SM}, v{SM}, v{MX}
    v_add_f32 v{MX}, v{R+6}, v{R+7}
    v_add_f32 v{SM}, v{SM}, v{T}
    v_add_f32 v{SM}, v{SM}, v{MX}
    v_mov_b32 v{T}, v{SM}
    v_permlane16_swap_b32 v{SM}, v{T}
    v_add_f32 v{SM}, v{SM}, v{T}
    v_mov_b32 v{T}, v{SM}
    v_permlane32_swap_b32 v{SM}, v{T}
    v_add_f32 v{SM}, v{SM}, v{T}
    v_rcp_f32 v{SM}, v{SM}
    """)
    for i in range(12): A(f"v_mul_f32 v{R+i}, v{R+i}, v{SM}")
    for i in range(6): A(f"v_cvt_pk_bf16_f32 v{R+16+i}, v{R+2*i}, v{R+2*i+1}")
    A(f"""
    buffer_store_dwordx4 {v(R+16,4)}, v{PMA}, s[{S_O}:{S_O+3}], s{S_PO} offen sc1
    buffer_store_dwordx2 {v(R+20,2)}, v{PMM}, s[{S_O2}:{S_O2+3}], s{S_PM} offen sc1
    v_mov_b32 v{T}, 1
    s_waitcnt vmcnt(0)
    buffer_store_dword v{T}, v{PF}, s[{S_FL}:{S_FL+3}], s{S_FP} offen sc1
    """)
    wst(A)
    A.label(skip)
    for x in x_dma(S_NN): A(x)
    ka.ring_rotate(A)
    A(f"""
    s_add_u32 s{S_PO}, s{S_PO}, {GSTR*32768}
    s_add_u32 s{S_PM}, s{S_PM}, {GSTR*8192}
    s_add_u32 s{S_MO}, s{S_MO}, {GSTR*L.MB}
    s_add_u32 s{S_FP}, s{S_FP}, {GSTR*256}
    s_sub_u32 s{S_CNT}, s{S_CNT}, 1
    s_cmp_lg_u32 s{S_CNT}, 0
    s_cbranch_scc1 {name}_gt_loop
    s_waitcnt vmcnt(0)
    """)
    wdump(A)
    A(f"s_branch {name}_end")

def wait_flags(A, name, vd, va, soff, mask, spn):
    lp = A.uniq(name + "_fw"); ok = A.uniq(name + "_fok")
    A(f"""
    {lp}:
    buffer_load_dword v{vd}, v{va}, s[{S_FL}:{S_FL+3}], s{soff} offen sc0 sc1
    s_waitcnt vmcnt(0)
    v_cmp_eq_u32 vcc, 0, v{vd}
    s_nop 1
    s_and_b64 vcc, vcc, s[{mask}:{mask+1}]
    s_cbranch_scc0 {ok}
    s_add_u32 s{spn}, s{spn}, 1
    s_cmp_lt_u32 s{spn}, {SPIN_MAX}
    s_cbranch_scc1 {lp}
    s_branch {name}_end
    {ok}:
    """)

def go_role(A, name):
    S_XVS = 16; S_U = 20; S_PX = 24; S_PMM = 28; S_IN = 32; S_OUT = 36
    S_S = 40; S_Q = 41; S_N = 42; S_MK1 = 44; S_MK2 = 46
    A.label(f"{name}_go")
    srd(A, S_XVS, S_WL, L.XV, L.XV_SZ)
    srd(A, S_U, S_WL, L.UI, L.UI_SZ)
    srd(A, S_PX, S_WL, L.PTX, L.PTX_SZ)
    srd(A, S_PMM, S_WL, L.PTM, L.PTM_SZ)
    sel_ptr(A, S_IN, S_LAYER, 0, None, L.X2, L.XB, S_T)
    sel_ptr(A, S_OUT, S_LAYER, None, L.X1, L.X3, L.XB, S_T)
    fl_srd(A)
    LANE = 1; LR = 2; FA = 3; FD = 4; RA = 5; WA = 6; RD = 7
    PX = 16; PMr = 48; AC = 64; RES = 120
    def XVR(hl, t): return a(4 * (hl * 7 + t), 4)
    def UR(t): return a(112 + 4 * t, 4)
    A(f"""
    v_and_b32 v{LANE}, 63, v0
    v_lshlrev_b32 v{LR}, 4, v{LANE}
    v_lshlrev_b32 v{FA}, 2, v{LANE}
    s_mov_b32 s{S_N}, 8
    s_mov_b32 s{S_SPN}, 0
    s_mov_b32 s{S_MK1}, 0xffff
    s_mov_b32 s{S_MK1+1}, 0
    s_mov_b32 s{S_MK2}, 0xffff0000
    s_mov_b32 s{S_MK2+1}, -1
    s_mul_i32 s{S_T}, s{S_WAVE}, {14*1024}
    v_add_u32 v{WA}, s{S_T}, v{LR}
    s_lshl_b32 s{S_T}, s{S_WAVE}, 10
    v_add_u32 v{RD}, s{S_T}, v{LR}
    """)
    A.label(f"{name}_go_loop")
    A(f"s_add_u32 s{S_FP}, s{S_S}, 1\ns_lshl_b32 s{S_FP}, s{S_FP}, 8")
    wait_flags(A, name, FD, FA, S_FP, S_MK1, S_SPN)
    A(f"""
    s_mul_i32 s{S_T}, s{S_S}, {16*SEGB}
    s_mul_i32 s{S_T+1}, s{S_WAVE}, {4*SEGB}
    s_add_u32 s{S_T}, s{S_T}, s{S_T+1}
    s_mul_i32 s{S_T+1}, s{S_Q}, 7168
    s_add_u32 s{S_T}, s{S_T}, s{S_T+1}
    """)
    for hl in range(4):
        A(f"s_add_u32 s{S_T+1}, s{S_T}, 4096")
        for t in range(7):
            A(f"buffer_load_dwordx4 {XVR(hl,t)}, v{LR}, s[{S_XVS}:{S_XVS+3}], s{S_T+(t>>2)} offen offset:{1024*(t&3)}")
        A(f"s_add_u32 s{S_T}, s{S_T}, {SEGB}")
    A(f"""
    v_and_b32 v8, 15, v{LANE}
    v_lshrrev_b32 v9, 4, v{LANE}
    v_lshrrev_b32 v10, 2, v8
    v_lshlrev_b32 v10, 3, v10
    v_and_b32 v11, 3, v8
    v_add_u32 v10, v10, v11
    s_and_b32 s{S_T}, s{S_WAVE}, 1
    s_lshl_b32 s{S_T}, s{S_T}, 2
    s_lshl_b32 s{S_T+1}, s{S_S}, 5
    s_add_u32 s{S_T}, s{S_T}, s{S_T+1}
    v_add_u32 v10, s{S_T}, v10
    v_mul_u32_u24 v10, 896, v10
    s_mul_i32 s{S_T}, s{S_Q}, 7
    s_lshr_b32 s{S_T+1}, s{S_WAVE}, 1
    s_add_u32 s{S_T}, s{S_T}, s{S_T+1}
    s_lshl_b32 s{S_T}, s{S_T}, 5
    v_lshl_add_u32 v10, v9, 3, v10
    v_add_u32 v{RA}, s{S_T}, v10
    """)
    for j in range(4):
        A(f"buffer_load_dwordx2 {v(RES+2*j,2)}, v{RA}, s[{S_IN}:{S_IN+3}], 0 offen offset:{64*j}")
    wait_flags(A, name, FD, FA, S_FP, S_MK2, S_SPN)
    wst(A)
    A(f"""
    s_lshl_b32 s{S_T}, s{S_S}, 15
    s_lshl_b32 s{S_T+1}, s{S_WAVE}, 13
    s_add_u32 s{S_T}, s{S_T}, s{S_T+1}
    s_add_u32 s{S_T+1}, s{S_T}, 4096
    """)
    for i in range(8):
        A(f"buffer_load_dwordx4 {v(PX+4*i,4)}, v{LR}, s[{S_PX}:{S_PX+3}], s{S_T+(i>>2)} offen offset:{1024*(i&3)}")
    A(f"""
    s_lshl_b32 s{S_T}, s{S_S}, 13
    s_lshl_b32 s{S_T+1}, s{S_WAVE}, 11
    s_add_u32 s{S_T}, s{S_T}, s{S_T+1}
    """)
    for i in range(2):
        A(f"buffer_load_dwordx4 {v(PMr+4*i,4)}, v{LR}, s[{S_PMM}:{S_PMM+3}], s{S_T} offen offset:{1024*i}")
    A(f"""
    s_mul_i32 s{S_T}, s{S_S}, {L.UI_STEP}
    s_mul_i32 s{S_T+1}, s{S_WAVE}, 28
    s_mul_i32 s{S_T+2}, s{S_Q}, 7
    s_add_u32 s{S_T+1}, s{S_T+1}, s{S_T+2}
    s_lshl_b32 s{S_T+1}, s{S_T+1}, 10
    s_add_u32 s{S_T}, s{S_T}, s{S_T+1}
    """)
    for i in range(7):
        if i and i % 4 == 0: A(f"s_add_u32 s{S_T}, s{S_T}, 4096")
        A(f"buffer_load_dwordx4 {UR(i)}, v{LR}, s[{S_U}:{S_U+3}], s{S_T} offen offset:{1024*(i&3)}")
    for hl in range(4):
        A(f"s_waitcnt vmcnt({7+2+2*(3-hl)})")
        for t in range(7):
            for nu in range(2):
                d = v(AC + 8 * t + 4 * nu, 4)
                A(f"v_mfma_f32_16x16x32_bf16 {d}, {XVR(hl,t)}, {v(PX+8*hl+4*nu,4)}, {d if hl else 0}")
    A("s_waitcnt vmcnt(0)")
    for t in range(7):
        for nu in range(2):
            d = v(AC + 8 * t + 4 * nu, 4)
            A(f"v_mfma_f32_16x16x32_bf16 {d}, {UR(t)}, {v(PMr+4*nu,4)}, {d}")
    for t in range(7):
        for nu in range(2):
            A(f"ds_write_b128 v{WA}, {v(AC+8*t+4*nu,4)} offset:{(2*t+nu)*1024}")
    A("s_waitcnt lgkmcnt(0)\ns_barrier")
    R = 16
    def tile(j):
        for w in range(4):
            A(f"ds_read_b128 {v(R+16*j+4*w,4)}, v{RD} offset:{w*14*1024+4*j*1024}")
    def fin(j):
        r = R + 16 * j
        for i in range(4): A(f"v_add_f32 v{r+i}, v{r+i}, v{r+4+i}\nv_add_f32 v{r+8+i}, v{r+8+i}, v{r+12+i}")
        A(f"""
        v_lshlrev_b32 v{r+4}, 16, v{RES+2*j}
        v_and_b32 v{r+5}, 0xffff0000, v{RES+2*j}
        v_lshlrev_b32 v{r+6}, 16, v{RES+2*j+1}
        v_and_b32 v{r+7}, 0xffff0000, v{RES+2*j+1}
        """)
        for i in range(4): A(f"v_add_f32 v{r+i}, v{r+i}, v{r+8+i}")
        for i in range(4): A(f"v_add_f32 v{r+i}, v{r+i}, v{r+4+i}")
        A(f"""
        v_cvt_pk_bf16_f32 v{r}, v{r}, v{r+1}
        v_cvt_pk_bf16_f32 v{r+1}, v{r+2}, v{r+3}
        buffer_store_dwordx2 {v(r,2)}, v{RA}, s[{S_OUT}:{S_OUT+3}], 0 offen offset:{64*j}
        """)
    for j in range(3): tile(j)
    l3 = A.uniq(name + "_t3")
    A(f"s_cmp_ge_u32 s{S_WAVE}, 2\ns_cbranch_scc1 {l3}")
    tile(3)
    A("s_waitcnt lgkmcnt(0)")
    fin(3)
    A.label(l3)
    A("s_waitcnt lgkmcnt(0)")
    for j in range(3): fin(j)
    wst(A)
    A(f"""
    s_barrier
    s_add_u32 s{S_S}, s{S_S}, 8
    s_sub_u32 s{S_N}, s{S_N}, 1
    s_cmp_lg_u32 s{S_N}, 0
    s_cbranch_scc1 {name}_go_loop
    s_waitcnt vmcnt(0)
    """)
    wst(A)
    wdump(A)
    A(f"s_branch {name}_end")

def pf_role(A, name):
    S_S = 40; S_K = 41; S_MXS = 44
    VE = 5; FD = 12; D = 16
    A.label(f"{name}_pf")
    srd(A, S_M, S_WL, L.MI, L.MI_SZ)
    srd(A, S_MXS, S_WL, L.MX, L.MI_SZ)
    lp = A.uniq(name + "_pfm"); ok = A.uniq(name + "_pfk")
    A(f"""
    s_sub_u32 s{S_K}, s7, {kr.TEAM}
    s_lshl_b32 s{S_K}, s{S_K}, 2
    s_add_u32 s{S_K}, s{S_K}, s{S_WAVE}
    s_cmp_ge_u32 s{S_K}, 7
    s_cbranch_scc1 {name}_end
    v_and_b32 v1, 63, v0
    v_lshlrev_b32 v1, 4, v1
    s_lshl_b32 s{S_T}, s{S_K}, 10
    v_add_u32 v{VE}, s{S_T}, v1
    s_mov_b32 s{S_SPN}, 0
    s_mov_b32 s{S_S}, 1
    s_mov_b32 s{S_T}, {L.MB}
    {lp}:
    buffer_load_dwordx4 {v(D,4)}, v{VE}, s[{S_M}:{S_M+3}], s{S_T} offen sc0 sc1
    s_waitcnt vmcnt(0)
    v_max3_u32 v{FD}, v{D}, v{D+1}, v{D+2}
    v_max_u32 v{FD}, v{FD}, v{D+3}
    v_cmp_eq_u32 vcc, -1, v{FD}
    s_cbranch_vccz {ok}
    s_add_u32 s{S_SPN}, s{S_SPN}, 1
    s_cmp_lt_u32 s{S_SPN}, {SPIN_MAX}
    s_cbranch_scc1 {lp}
    s_branch {name}_end
    {ok}:
    buffer_store_dwordx4 {v(D,4)}, v{VE}, s[{S_MXS}:{S_MXS+3}], s{S_T} offen sc1
    s_add_u32 s{S_T}, s{S_T}, {L.MB}
    s_add_u32 s{S_S}, s{S_S}, 1
    s_cmp_lt_u32 s{S_S}, 64
    s_cbranch_scc1 {lp}
    s_waitcnt vmcnt(0)
    s_branch {name}_end
    """)

def gen_ka(name, prof=False):
    A = Asm(); PROF[0] = prof
    prologue(A, name)
    dispatch(A, name)
    gx_role(A, name)
    gt_role(A, name)
    go_role(A, name)
    pf_role(A, name)
    A.label(f"{name}_team")
    kr.team_code(A, name, prof)
    A.label(f"{name}_end")
    A("s_endpgm")
    return A.L
```

```python
from asm import *
import layout as L
from ka import entry, srd, S_WS, S_WAVE, S_T
from kb import np_f, dpp_allred8, ln_load
import math

def ptr_srd(A, r, slot, size):
    A(f"s_load_dwordx2 s[{r}:{r+1}], s[0:1], {slot}")
    A(f"s_mov_b32 s{r+2}, {size}\ns_mov_b32 s{r+3}, 0x20000")

def gen_prep(name):
    A = Asm()
    entry(A, name, 256)
    S_L = 16; S_R = 20; S_O = 24; S_A = 28; S_B = 32; S_C = 36
    S_TYPE = 40; S_H = 41; S_KH = 42; S_Q = 43; S_K = 44; S_K2 = 45; S_PT = 46
    LANE = 1; LR = 2; N = 3; G = 4; LA = 5; TA = 7; OA = 8; T = 10
    BF = 16
    AF = 80
    AC = 96
    U = 112
    A(f"""
    v_and_b32 v{LANE}, 63, v0
    v_lshlrev_b32 v{LR}, 4, v{LANE}
    v_and_b32 v{N}, 15, v{LANE}
    v_lshrrev_b32 v{G}, 4, v{LANE}
    s_and_b32 s{S_T}, s2, 7
    s_lshr_b32 s{S_T+1}, s2, 3
    s_lshr_b32 s{S_T+2}, s{S_T+1}, 3
    s_lshl_b32 s{S_T+2}, s{S_T+2}, 3
    s_add_u32 s{S_T}, s{S_T}, s{S_T+2}          ; product 0..31
    s_lshr_b32 s{S_TYPE}, s{S_T}, 4
    s_and_b32 s{S_H}, s{S_T}, 15
    s_bfe_u32 s{S_KH}, s{S_T+1}, 0x10002
    s_and_b32 s{S_Q}, s{S_T+1}, 3
    """)
    A(f"""
    s_load_dwordx2 s[{S_L}:{S_L+1}], s[0:1], 16
    s_load_dwordx2 s[{S_PT}:{S_PT+1}], s[0:1], 32
    s_load_dwordx2 s[{S_R}:{S_R+1}], s[0:1], 24
    s_load_dwordx2 s[{S_PT+2}:{S_PT+3}], s[0:1], 40
    s_waitcnt lgkmcnt(0)
    s_cmp_eq_u32 s{S_TYPE}, 0
    s_cselect_b32 s{S_L}, s{S_L}, s{S_PT}
    s_cselect_b32 s{S_L+1}, s{S_L+1}, s{S_PT+1}
    s_cselect_b32 s{S_R}, s{S_R}, s{S_PT+2}
    s_cselect_b32 s{S_R+1}, s{S_R+1}, s{S_PT+3}
    s_mov_b32 s{S_L+2}, {448*8192}
    s_mov_b32 s{S_L+3}, 0x20000
    s_mov_b32 s{S_R+2}, {448*8192}
    s_mov_b32 s{S_R+3}, 0x20000
    s_mul_i32 s{S_T}, s{S_TYPE}, {L.VI-L.AI}
    s_add_u32 s{S_T}, s{S_T}, {L.AI}
    s_add_u32 s{S_O}, s{S_WS}, s{S_T}
    s_addc_u32 s{S_O+1}, s{S_WS+1}, 0
    s_mov_b32 s{S_O+2}, {L.IMG}
    s_mov_b32 s{S_O+3}, 0x20000
    v_lshrrev_b32 v{T}, 2, v{N}
    v_lshlrev_b32 v{T}, 3, v{T}
    v_and_b32 v{T+1}, 3, v{N}
    v_add_u32 v{T}, v{T}, v{T+1}
    v_lshlrev_b32 v{T}, 13, v{T}
    v_lshl_add_u32 v{T}, v{G}, 4, v{T}
    s_lshl_b32 s{S_T}, s{S_H}, 9
    s_mul_i32 s{S_T+1}, s{S_KH}, {7*32*8192}
    s_add_u32 s{S_T}, s{S_T}, s{S_T+1}
    v_add_u32 v{LA}, s{S_T}, v{T}
    v_add_u32 v{LA+1}, {4*8192}, v{LA}
    """)
    def a_dma(kbs, lds0):
        for kb in kbs:
            for mu in range(2):
                for e2 in range(2):
                    A(f"""
                    s_lshl_b32 s{S_T}, s{S_WAVE}, 1
                    s_add_u32 s{S_T}, s{S_T}, {e2}
                    s_lshl_b32 s{S_T+1}, s{S_T}, 10
                    s_add_u32 s{S_T+1}, s{S_T+1}, {lds0 + ((kb - kbs[0]) * 2 + mu) * 8192}
                    s_mov_b32 m0, s{S_T+1}
                    s_lshl_b32 s{S_T}, s{S_T}, 6
                    s_add_u32 s{S_T}, s{S_T}, {kb*32*8192}
                    buffer_load_dwordx4 v{LA+mu}, s[{S_L}:{S_L+3}], s{S_T} offen lds
                    """)
    lvo = A.uniq(name + "_vo"); lb = A.uniq(name + "_bd")
    A(f"s_cmp_lg_u32 s{S_TYPE}, 0\ns_cbranch_scc1 {lvo}")
    A(f"""
    s_mul_i32 s{S_T}, s{S_Q}, 7
    s_lshl_b32 s{S_T+1}, s{S_WAVE}, 1
    s_add_u32 s{S_T}, s{S_T}, s{S_T+1}
    s_lshl_b32 s{S_T}, s{S_T}, 4
    v_add_u32 v{T}, s{S_T}, v{N}
    v_lshlrev_b32 v{T}, 13, v{T}
    v_lshl_add_u32 v{T}, v{G}, 4, v{T}
    s_lshl_b32 s{S_T}, s{S_H}, 9
    v_add_u32 v{T}, s{S_T}, v{T}
    v_add_u32 v{T+1}, {16*8192}, v{T}
    """)
    for t in range(2):
        for es in range(8):
            A(f"buffer_load_dwordx4 {v(BF+32*t+4*es,4)}, v{T+t}, s[{S_R}:{S_R+3}], 0 offen offset:{64*es}")
    a_dma(list(range(6)), 0)
    A(f"s_branch {lb}")
    A.label(lvo)
    A(f"""
    v_lshrrev_b32 v{T}, 2, v{LANE}
    s_lshl_b32 s{S_T}, s{S_H}, 8
    v_add_u32 v{T}, s{S_T}, v{T}
    v_mul_u32_u24 v{T}, 896, v{T}
    v_and_b32 v{T+1}, 3, v{LANE}
    v_lshl_add_u32 v{T}, v{T+1}, 4, v{T}
    s_mul_i32 s{S_T}, s{S_Q}, 224
    s_lshl_b32 s{S_T+1}, s{S_WAVE}, 6
    s_add_u32 s{S_T}, s{S_T}, s{S_T+1}
    v_add_u32 v{T}, s{S_T}, v{T}
    s_lshl_b32 s{S_T}, s{S_WAVE}, 14
    s_add_u32 s{S_T}, s{S_T}, 98304
    """)
    for i in range(16):
        A(f"s_mov_b32 m0, s{S_T}\ns_add_u32 s{S_T}, s{S_T}, 1024")
        A(f"buffer_load_dwordx4 v{T}, s[{S_R}:{S_R+3}], 0 offen lds")
        if i < 15: A(f"v_add_u32 v{T}, {16*896}, v{T}")
    a_dma(list(range(6)), 0)
    A(f"""
    v_lshrrev_b32 v{T}, 2, v{N}
    v_lshl_add_u32 v{T}, v{G}, 3, v{T}
    v_lshlrev_b32 v{T}, 6, v{T}
    v_and_b32 v{T+1}, 3, v{N}
    v_lshl_add_u32 v{T}, v{T+1}, 3, v{T}
    s_lshl_b32 s{S_T}, s{S_WAVE}, 14
    s_add_u32 s{S_T}, s{S_T}, 98304
    v_add_u32 v{TA}, s{S_T}, v{T}
    s_waitcnt vmcnt(24)
    """)
    for t in range(2):
        for es in range(8):
            for jh in range(2):
                A(f"ds_read_b64_tr_b16 {v(BF+32*t+4*es+2*jh,2)}, v{TA} offset:{2048*es+256*jh+32*t}")
    A("s_waitcnt lgkmcnt(0)")
    A.label(lb)
    A("s_barrier")
    a_dma([6], 98304)

    ltab = A.uniq(name + "_tabend"); lg = A.uniq(name + "_tabg"); lst = A.uniq(name + "_tabst")
    srd(A, S_A, S_WS, L.FI, 2 * 392 * 1024)
    assert L.GI == L.FI + 392 * 1024
    RH = U; DD = U + 8; V = U + 16; W = U + 24
    A(f"""
    s_lshl_b32 s{S_K}, s2, 2
    s_add_u32 s{S_K}, s{S_K}, s{S_WAVE}
    s_cmp_ge_u32 s{S_K}, 784
    s_cbranch_scc1 {ltab}
    s_cmp_ge_u32 s{S_K}, 392
    s_cselect_b32 s{S_T}, 392, 0
    s_sub_u32 s{S_T}, s{S_K}, s{S_T}
    s_mul_i32 s{S_T+1}, s{S_T}, 4682
    s_lshr_b32 s{S_T+1}, s{S_T+1}, 16            ; tile = u / 14
    s_mul_i32 s{S_T+2}, s{S_T+1}, 14
    s_sub_u32 s{S_T+2}, s{S_T}, s{S_T+2}         ; kb
    s_lshl_b32 s{S_T+2}, s{S_T+2}, 5
    v_lshlrev_b32 v{T}, 3, v{G}
    v_add_u32 v{T}, s{S_T+2}, v{T}               ; k = 32 kb + 8 g
    s_cmp_ge_u32 s{S_K}, 392
    s_cbranch_scc1 {lg}
    s_lshl_b32 s{S_T+1}, s{S_T+1}, 4
    v_add_u32 v{T+1}, s{S_T+1}, v{N}
    """)
    for j in range(8): A(f"v_mov_b32 v{RH+j}, v{T+1}\nv_add_u32 v{DD+j}, {j}, v{T}")
    A(f"s_mov_b32 s{S_K2}, 0\ns_branch {lst}")
    A.label(lg)
    A(f"""
    ; G: d = 32 (T>>1) + 8 (m>>2) + 4 (T&1) + (m&3) , rho = k + j
    s_lshr_b32 s{S_T+2}, s{S_T+1}, 1
    s_lshl_b32 s{S_T+2}, s{S_T+2}, 5
    s_and_b32 s{S_T+1}, s{S_T+1}, 1
    s_lshl_b32 s{S_T+1}, s{S_T+1}, 2
    s_add_u32 s{S_T+1}, s{S_T+1}, s{S_T+2}
    v_lshrrev_b32 v{T+1}, 2, v{N}
    v_lshlrev_b32 v{T+1}, 3, v{T+1}
    v_and_b32 v{T+2}, 3, v{N}
    v_add_u32 v{T+1}, v{T+1}, v{T+2}
    v_add_u32 v{T+1}, s{S_T+1}, v{T+1}
    """)
    for j in range(8): A(f"v_mov_b32 v{DD+j}, v{T+1}\nv_add_u32 v{RH+j}, {j}, v{T}")
    A(f"s_mov_b32 s{S_K2}, 1")
    A.label(lst)
    A(f"""
    s_cmp_eq_u32 s{S_K2}, 0
    s_cselect_b32 s{S_T}, {hex(np_f(1.0))}, {hex(np_f(2.0/448))}
    s_cselect_b32 s{S_T+1}, {hex(np_f(1.0))}, {hex(np_f(1.0/448))}
    s_mov_b32 s{S_T+2}, {hex(np_f(1.0/448))}
    s_mov_b32 s{S_T+3}, {hex(np_f(-448.0))}
    s_movk_i32 s{S_T+4}, 224
    """)
    for j in range(8):
        A(f"""
        v_cmp_lt_u32 vcc, s{S_T+4}, v{RH+j}
        v_subrev_u32 v{T}, s{S_T+4}, v{RH+j}
        v_cndmask_b32 v{T}, v{RH+j}, v{T}, vcc          ; bin
        v_mov_b32 v{T+1}, 0x3e800000
        v_cndmask_b32 v{T+1}, 0, v{T+1}, vcc            ; phase
        v_mul_u32_u24 v{T+2}, v{T}, v{DD+j}
        v_cvt_f32_u32 v{T+2}, v{T+2}
        v_mul_f32 v{T+3}, s{S_T+2}, v{T+2}
        v_floor_f32 v{T+3}, v{T+3}
        v_fma_f32 v{T+2}, v{T+3}, s{S_T+3}, v{T+2}
        v_fma_f32 v{T+2}, v{T+2}, s{S_T+2}, v{T+1}
        v_cos_f32 v{V+j}, v{T+2}
        v_cmp_eq_u32 vcc, 0, v{RH+j}
        v_cmp_eq_u32 s[{S_PT}:{S_PT+1}], s{S_T+4}, v{RH+j}
        s_or_b64 vcc, vcc, s[{S_PT}:{S_PT+1}]
        v_mov_b32 v{T+4}, s{S_T}
        v_mov_b32 v{T+5}, s{S_T+1}
        v_cndmask_b32 v{T+4}, v{T+4}, v{T+5}, vcc
        v_mul_f32 v{V+j}, v{V+j}, v{T+4}
        """)
    for p in range(4): A(f"v_cvt_pk_bf16_f32 v{W+p}, v{V+2*p}, v{V+2*p+1}")
    A(f"""
    s_lshl_b32 s{S_T}, s{S_K}, 10
    buffer_store_dwordx4 {v(W,4)}, v{LR}, s[{S_A}:{S_A+3}], s{S_T} offen
    """)
    A.label(ltab)

    for l in range(2):
        for (base, size) in ((L.MI + l * L.LS + L.MB, 64 * L.MB), (L.MX + l * L.LS + L.MB, 64 * L.MB), (L.PBUF + l * L.LS, L.PB_SZ)):
            srd(A, S_B, S_WS, base, size)
            per = size // 256
            assert per % 16 == 0 and per // 16 <= 256
            A(f"""
            s_mul_i32 s{S_T}, s2, {per}
            v_lshlrev_b32 v{T}, 4, v0
            v_add_u32 v{T}, s{S_T}, v{T}
            v_mov_b32 v{T+1}, 0x40000000
            v_cmp_gt_u32 vcc, {per//16}, v0
            v_cndmask_b32 v{T}, v{T+1}, v{T}, vcc
            v_mov_b32 v{W}, -1
            v_mov_b32 v{W+1}, -1
            v_mov_b32 v{W+2}, -1
            v_mov_b32 v{W+3}, -1
            buffer_store_dwordx4 {v(W,4)}, v{T}, s[{S_B}:{S_B+3}], 0 offen
            """)
    lct = A.uniq(name + "_ct")
    A(f"""
    s_sub_u32 s{S_T}, s2, 64
    s_cmp_ge_u32 s{S_T}, 2
    s_cbranch_scc1 {lct}
    s_mul_i32 s{S_T}, s{S_T}, {L.LS}
    s_add_u32 s{S_T}, s{S_T}, {L.CT}
    s_add_u32 s{S_B}, s{S_WS}, s{S_T}
    s_addc_u32 s{S_B+1}, s{S_WS+1}, 0
    s_mov_b32 s{S_B+2}, {L.CT_SZ}
    s_mov_b32 s{S_B+3}, 0x20000
    v_lshlrev_b32 v{T}, 7, v0
    v_mov_b32 v{W}, 0
    v_mov_b32 v{W+1}, 0
    v_mov_b32 v{W+2}, 0
    v_mov_b32 v{W+3}, 0
    """)
    for i in range(8): A(f"buffer_store_dwordx4 {v(W,4)}, v{T}, s[{S_B}:{S_B+3}], 0 offen offset:{16*i}")
    A.label(lct)
    lm0 = A.uniq(name + "_m0")
    A(f"""
    s_sub_u32 s{S_T}, s2, 66
    s_cmp_ge_u32 s{S_T}, 4
    s_cbranch_scc1 {lm0}
    s_and_b32 s{S_T+1}, s{S_T}, 1
    s_lshr_b32 s{S_T}, s{S_T}, 1
    s_mul_i32 s{S_T}, s{S_T}, {L.LS}
    s_mul_i32 s{S_T+1}, s{S_T+1}, {L.MX-L.MI}
    s_add_u32 s{S_T}, s{S_T}, s{S_T+1}
    s_add_u32 s{S_T}, s{S_T}, {L.MI}
    s_add_u32 s{S_B}, s{S_WS}, s{S_T}
    s_addc_u32 s{S_B+1}, s{S_WS+1}, 0
    s_mov_b32 s{S_B+2}, {L.MB}
    s_mov_b32 s{S_B+3}, 0x20000
    """)
    ptr_srd(A, S_C, 8, 7168)
    A("s_waitcnt lgkmcnt(0)")
    for i in range(2):
        A(f"""
        v_add_u32 v{T}, {256*i}, v0
        v_lshrrev_b32 v{T+1}, 6, v{T}
        v_lshlrev_b32 v{T+1}, 7, v{T+1}
        v_bfe_u32 v{T+2}, v{T}, 4, 2
        v_lshl_add_u32 v{T+1}, v{T+2}, 5, v{T+1}
        v_bfe_u32 v{T+2}, v{T}, 3, 1
        v_lshl_add_u32 v{T+1}, v{T+2}, 2, v{T+1}
        v_and_b32 v{T+2}, 7, v{T}
        v_mul_u32_u24 v{T+2}, 896, v{T+2}
        v_add_u32 v{T+1}, v{T+1}, v{T+2}
        v_mov_b32 v{T+3}, 0x40000000
        v_cmp_gt_u32 vcc, 448, v{T}
        v_cndmask_b32 v{T+1}, v{T+3}, v{T+1}, vcc
        v_lshlrev_b32 v{T+2}, 4, v{T}
        v_cndmask_b32 v{T+2}, v{T+3}, v{T+2}, vcc
        """)
        for p in range(4): A(f"buffer_load_dword v{W+p}, v{T+1}, s[{S_C}:{S_C+3}], 0 offen offset:{8*p}")
        A(f"s_waitcnt vmcnt(0)\nbuffer_store_dwordx4 {v(W,4)}, v{T+2}, s[{S_B}:{S_B+3}], 0 offen")
    A.label(lm0)

    ptr_srd(A, S_A, 64, 2048 * 450)
    ptr_srd(A, S_B, 72, 2048 * 450)
    srd(A, S_C, S_WS, L.WT, 225 * 8192)
    A(f"""
    s_waitcnt lgkmcnt(0)
    s_lshr_b32 s{S_T}, s2, 2                     ; k1
    s_and_b32 s{S_T+1}, s2, 3                    ; g
    s_lshl_b32 s{S_T+2}, s{S_T+1}, 9             ; 64 * 8 g
    s_add_u32 s{S_T+2}, s{S_T+2}, s{S_T}
    s_mul_i32 s{S_T+2}, s{S_T+2}, 450
    v_lshlrev_b32 v{T}, 1, v0
    v_mov_b32 v{T+1}, 0x40000000
    v_cmp_gt_u32 vcc, 225, v0
    v_cndmask_b32 v{T}, v{T+1}, v{T}, vcc
    ; destination: b * 8192 + (k1 >> 4) * 2048 + ((k1 & 15) + 16 g) * 32
    s_lshr_b32 s{S_T+3}, s{S_T}, 4
    s_lshl_b32 s{S_T+3}, s{S_T+3}, 11
    s_and_b32 s{S_T+4}, s{S_T}, 15
    s_lshl_b32 s{S_T+5}, s{S_T+1}, 4
    s_add_u32 s{S_T+4}, s{S_T+4}, s{S_T+5}
    s_lshl_b32 s{S_T+4}, s{S_T+4}, 5
    s_add_u32 s{S_T+3}, s{S_T+3}, s{S_T+4}
    v_lshlrev_b32 v{T+2}, 13, v0
    v_add_u32 v{T+2}, s{S_T+3}, v{T+2}
    v_cndmask_b32 v{T+2}, v{T+1}, v{T+2}, vcc
    """)
    for j in range(8):
        A(f"buffer_load_ushort v{RH+j}, v{T}, s[{S_A}:{S_A+3}], s{S_T+2} offen")
        A(f"buffer_load_ushort v{DD+j}, v{T}, s[{S_B}:{S_B+3}], s{S_T+2} offen")
        A(f"s_add_u32 s{S_T+2}, s{S_T+2}, {64*450}")
    A("s_waitcnt vmcnt(0)")
    for j in range(8):
        A(f"""
        v_lshlrev_b32 v{RH+j}, 16, v{RH+j}
        v_lshlrev_b32 v{DD+j}, 16, v{DD+j}
        v_mul_f32 v{RH+j}, {hex(np_f(2.0**-11))}, v{RH+j}
        v_mul_f32 v{DD+j}, {hex(np_f(2.0**-11))}, v{DD+j}
        v_cvt_pk_bf16_f32 v{V+j}, v{RH+j}, v{DD+j}
        """)
    A(f"""
    buffer_store_dwordx4 {v(V,4)}, v{T+2}, s[{S_C}:{S_C+3}], 0 offen
    buffer_store_dwordx4 {v(V+4,4)}, v{T+2}, s[{S_C}:{S_C+3}], 0 offen offset:16
    """)

    lln = A.uniq(name + "_ln")
    A(f"s_cmp_ge_u32 s2, 64\ns_cbranch_scc1 {lln}")
    ptr_srd(A, S_A, 0, L.XB)
    srd(A, S_B, S_WS, L.XI, L.XB)
    A(f"s_waitcnt lgkmcnt(0)\ns_mov_b32 s{S_K}, s2")
    RAW = U; XF = U + 28; TT = U + 84
    ln_load(A, S_A, S_K, RAW, TT, LANE)
    A("s_waitcnt vmcnt(0)")
    ln_regs(A, RAW, XF, TT)
    A(f"""
    v_and_b32 v{TT}, 7, v{LANE}
    v_bfe_u32 v{TT+1}, v{LANE}, 3, 2
    s_lshl_b32 s{S_T}, s{S_WAVE}, 2
    v_add_u32 v{TT+1}, s{S_T}, v{TT+1}
    v_lshlrev_b32 v{TT+1}, 4, v{TT+1}
    v_and_b32 v{TT+2}, 3, v{TT}
    v_lshl_add_u32 v{TT+1}, v{TT+2}, 8, v{TT+1}
    v_lshrrev_b32 v{TT+2}, 2, v{TT}
    v_lshl_add_u32 v{TT+1}, v{TT+2}, 10, v{TT+1}
    v_lshrrev_b32 v{TT+2}, 5, v{LANE}
    v_mul_u32_u24 v{TT+2}, 14336, v{TT+2}
    v_add_u32 v{TT+1}, v{TT+1}, v{TT+2}
    s_mul_i32 s{S_T}, s2, 28672
    v_add_u32 v{TT+1}, s{S_T}, v{TT+1}
    v_add_u32 v{TT+2}, 4096, v{TT+1}
    v_add_u32 v{TT+3}, 8192, v{TT+1}
    v_add_u32 v{TT+4}, 12288, v{TT+1}
    """)
    for j in range(7):
        A(f"buffer_store_dwordx4 {v(RAW+4*j,4)}, v{TT+1+(j>>1)}, s[{S_B}:{S_B+3}], 0 offen offset:{2048*(j&1)}")
    A.label(lln)

    A(f"""
    s_waitcnt vmcnt(0)
    s_barrier
    s_mul_i32 s{S_T}, s{S_H}, 28
    s_mul_i32 s{S_T+1}, s{S_Q}, 7
    s_add_u32 s{S_T}, s{S_T}, s{S_T+1}
    s_lshl_b32 s{S_T+1}, s{S_WAVE}, 1
    s_add_u32 s{S_T}, s{S_T}, s{S_T+1}
    s_mul_i32 s{S_T}, s{S_T}, 14
    s_mul_i32 s{S_T+1}, s{S_KH}, 7
    s_add_u32 s{S_T}, s{S_T}, s{S_T+1}
    s_lshl_b32 s{S_T}, s{S_T}, 10
    v_add_u32 v{OA}, s{S_T}, v{LR}
    v_add_u32 v{OA+1}, 14336, v{OA}
    v_mov_b32 v{T}, 0x40000000
    s_cmp_eq_u32 s{S_WAVE}, 3
    s_cselect_b64 vcc, -1, 0
    v_cndmask_b32 v{OA+1}, v{OA+1}, v{T}, vcc
    s_cmp_eq_u32 s{S_TYPE}, 0
    s_cselect_b32 s{S_K}, {hex(np_f(math.log2(math.e)/16))}, {hex(np_f(1.0))}
    s_mov_b32 s{S_K2}, 0
    v_add_u32 v{TA}, 65536, v{LR}
    """)
    def rd(i):
        kb, r = divmod(i, 16)
        off = (kb * 16 + r) * 1024
        if off < 65536: return f"ds_read_b128 {v(AF+4*(i%4),4)}, v{LR} offset:{off}"
        return f"ds_read_b128 {v(AF+4*(i%4),4)}, v{TA} offset:{off-65536}"
    NS = 7 * 16
    for i in range(3): A(rd(i))
    EP = U
    for i in range(NS):
        kb, r = divmod(i, 16); mu, es = divmod(r, 8)
        A(f"s_waitcnt lgkmcnt({min(2, NS-1-i)})")
        for t in range(2):
            d = v(AC + 8 * t + 4 * mu, 4)
            A(f"v_mfma_f32_16x16x32_bf16 {d}, {v(AF+4*(i%4),4)}, {v(BF+32*t+4*es,4)}, {d if es else 0}")
        if i + 3 < NS: A(rd(i + 3))
        if r == 15:
            A("s_nop 6")
            for t in range(2):
                d = AC + 8 * t; e = EP + 8 * t
                for x in range(8): A(f"v_mul_f32 v{e+x}, s{S_K}, v{d+x}")
                A(f"""
                v_cvt_pk_bf16_f32 v{e}, v{e}, v{e+1}
                v_cvt_pk_bf16_f32 v{e+1}, v{e+2}, v{e+3}
                v_cvt_pk_bf16_f32 v{e+2}, v{e+4}, v{e+5}
                v_cvt_pk_bf16_f32 v{e+3}, v{e+6}, v{e+7}
                buffer_store_dwordx4 {v(e,4)}, v{OA+t}, s[{S_O}:{S_O+3}], s{S_K2} offen
                """)
            A(f"s_add_u32 s{S_K2}, s{S_K2}, 1024")
    A("s_waitcnt vmcnt(0)")
    A.label(f"{name}_end")
    A("s_endpgm")
    return A.L

def ln_regs(A, RAW, XF, T):
    for i in range(28):
        A(f"v_lshlrev_b32 v{XF+2*i}, 16, v{RAW+i}\nv_and_b32 v{XF+2*i+1}, 0xffff0000, v{RAW+i}")
    A(f"v_pk_add_f32 {v(T,2)}, {v(XF,2)}, {v(XF+2,2)}\nv_pk_add_f32 {v(T+2,2)}, {v(XF+4,2)}, {v(XF+6,2)}")
    for i in range(4, 28, 2):
        A(f"v_pk_add_f32 {v(T,2)}, {v(T,2)}, {v(XF+2*i,2)}\nv_pk_add_f32 {v(T+2,2)}, {v(T+2,2)}, {v(XF+2*i+2,2)}")
    A(f"v_pk_add_f32 {v(T,2)}, {v(T,2)}, {v(T+2,2)}\nv_add_f32 v{T}, v{T}, v{T+1}")
    dpp_allred8(A, "v_add_f32", T, T + 1)
    A(f"v_mul_f32 v{T}, {hex(np_f(-1.0/448))}, v{T}\nv_mov_b32 v{T+1}, v{T}")
    for i in range(28):
        A(f"v_pk_add_f32 {v(XF+2*i,2)}, {v(XF+2*i,2)}, {v(T,2)}")
    A(f"v_pk_mul_f32 {v(T+2,2)}, {v(XF,2)}, {v(XF,2)}\nv_pk_mul_f32 {v(T+4,2)}, {v(XF+2,2)}, {v(XF+2,2)}")
    for i in range(2, 28, 2):
        A(f"v_pk_fma_f32 {v(T+2,2)}, {v(XF+2*i,2)}, {v(XF+2*i,2)}, {v(T+2,2)}")
        A(f"v_pk_fma_f32 {v(T+4,2)}, {v(XF+2*i+2,2)}, {v(XF+2*i+2,2)}, {v(T+4,2)}")
    A(f"v_pk_add_f32 {v(T+2,2)}, {v(T+2,2)}, {v(T+4,2)}\nv_add_f32 v{T}, v{T+2}, v{T+3}")
    dpp_allred8(A, "v_add_f32", T, T + 1)
    A(f"""
    v_mov_b32 v{T+1}, {hex(np_f(1e-5))}
    v_fmac_f32 v{T+1}, {hex(np_f(1.0/448))}, v{T}
    v_rsq_f32 v{T}, v{T+1}
    s_nop 0
    v_mov_b32 v{T+1}, v{T}
    """)
    for i in range(28):
        A(f"v_pk_mul_f32 {v(XF+2*i,2)}, {v(XF+2*i,2)}, {v(T,2)}")
    for i in range(28):
        A(f"v_cvt_pk_bf16_f32 v{RAW+i}, v{XF+2*i}, v{XF+2*i+1}")
```

```python
from asm import *
import layout as L

WS_SLOT = 96; DBG_SLOT = 88
SPIN_MAX = 400000
TEAM = 30
S_WL = 76
S_MX = 80
S_FL = 84
S_RDY = 78; S_UFO = 79
PROF = L.TB + (1 << 19)

def srd(A, r, base_lo, base_hi, off, size):
    A(f"s_add_u32 s{r}, s{base_lo}, {off}")
    A(f"s_addc_u32 s{r+1}, s{base_hi}, 0")
    A(f"s_mov_b32 s{r+2}, {size}")
    A(f"s_mov_b32 s{r+3}, 0x20000")

S_WS = 4
S_W = 8
S_M = 12
S_P = 16
S_X = 20
S_U = 24
S_STEP = 30; S_MOFF = 31; S_POFF = 32; S_XOFF = 33; S_SPIN = 34; S_ROLE = 35; S_WAVE = 36; S_SLOW = 37
S_T = 38
S_MNEXT = 48; S_UOFF = 49
S_XV = 50
S_MASK = 54
S_T0 = 56
S_CT = 60
S_KB = 62; S_KT = 63

NSTAMP = 8
S_ST = 64
ROLEBIT = [0]
def stamp(A, prof, i):
    if OPT['sd'] >> (ROLEBIT[0] + i) & 1: A(f"s_sleep {OPT['sdn']}")
    if prof == 2:
        A(f"""
        s_memtime s[72:73]
        s_waitcnt lgkmcnt(0)
        s_sub_u32 s73, s72, s74
        s_mov_b32 s74, s72
        s_add_u32 s{S_ST+i}, s{S_ST+i}, s73
        """)
    if prof == 3:
        A(f"""
        s_mov_b32 m0, s{S_STEP}
        s_memrealtime s[72:73]
        s_waitcnt lgkmcnt(0)
        v_writelane_b32 v{248+i}, s72, m0
        """)
def stamp_init(A, prof):
    if prof != 2: return
    for i in range(NSTAMP): A(f"s_mov_b32 s{S_ST+i}, 0")
    A("s_memtime s[72:73]\ns_waitcnt lgkmcnt(0)\ns_mov_b32 s74, s72")

def stream(A, mf, fill):
    for x in fill.get(-1, []): A(x)
    for i, m in enumerate(mf):
        A(m)
        for x in fill.get(i, []): A(x)

def store_handoff(A, name, ins):
    l1 = A.uniq(name + "_slow"); l2 = A.uniq(name + "_sd")
    A(f"s_cmp_lg_u32 s{S_SLOW}, 0\ns_cbranch_scc1 {l1}")
    A(ins)
    A.label(l2)
    return (l1, l2, ins)
def handoff_tail(A, t):
    l1, l2, ins = t
    A.label(l1)
    A(ins + " sc1")
    A(f"s_branch {l2}")
def team_mode_issue(A, vt, var):
    A(f"s_add_u32 s{S_CT}, s{S_WL}, {L.CT}\ns_addc_u32 s{S_CT+1}, s{S_WL+1}, 0\nv_mov_b32 v{var}, 0")
    A(f"global_load_dword v{vt}, v{var}, s[{S_CT}:{S_CT+1}] sc0 sc1")
def team_mode(A, name, vt, var):
    lp = A.uniq(name + "_tm"); ok = A.uniq(name + "_tk")
    A(f"""
    {lp}:
    v_readfirstlane_b32 s{S_SLOW}, v{vt}
    s_and_b32 s{S_T}, s{S_SLOW}, 0xffff
    s_cmp_ge_u32 s{S_T}, 32
    s_cbranch_scc1 {ok}
    s_add_u32 s{S_SPIN}, s{S_SPIN}, 1
    s_cmp_lt_u32 s{S_SPIN}, {SPIN_MAX}
    s_cbranch_scc0 {name}_end
    global_load_dword v{vt}, v{var}, s[{S_CT}:{S_CT+1}] sc0 sc1
    s_waitcnt vmcnt(0)
    s_branch {lp}
    {ok}:
    s_lshr_b32 s{S_SLOW}, s{S_SLOW}, 16
    """)

OPT = dict(ms=1, md=0, vs=1, vd=0, ps=1, pd=0,
           noxk=0, noxv=0, nopt=1, ext=1, wst=0, xv0=1, xvs=1,
           qs=0, qs2=0, vsl=0, vps=0, ppt=0, mpt=0, sd=0, sdn=1, qw=5, xpt=8, vpt=0)
def delay(A, n):
    while n > 0:
        k = min(n, 16); A(f"s_nop {k-1}"); n -= k

def poll(A, name, slots, issue, regs, tmp, success, dly, join):
    nl = len(issue(0))
    lp = A.uniq(name + "_pl")
    oks = [A.uniq(name + "_ok") for _ in range(slots)]
    for i in range(slots):
        for x in issue(i): A(x)
        if i + 1 < slots: delay(A, dly)
    A.label(lp)
    for i in range(slots):
        A(f"s_waitcnt vmcnt({nl*(slots-1)})")
        r = list(regs(i)); k = 0; cur = []
        lvl = r; t_ = tmp
        while len(lvl) > 1:
            nxt = []
            while len(lvl) >= 3:
                A(f"v_max3_u32 v{t_}, v{lvl[0]}, v{lvl[1]}, v{lvl[2]}"); nxt.append(t_); t_ += 1; lvl = lvl[3:]
            if len(lvl) == 2 and not nxt:
                A(f"v_max_u32 v{t_}, v{lvl[0]}, v{lvl[1]}"); nxt.append(t_); t_ += 1; lvl = []
            lvl = nxt + lvl
        A(f"v_cmp_eq_u32 vcc, -1, v{lvl[0]}")
        A(f"s_cbranch_vccz {oks[i]}")
        for x in issue(i): A(x)
        if i == slots - 1:
            A(f"""
            s_add_u32 s{S_SPIN}, s{S_SPIN}, 1
            s_cmp_lt_u32 s{S_SPIN}, {SPIN_MAX}
            s_cbranch_scc0 {name}_end
            """)
        delay(A, dly)
    A(f"s_branch {lp}")
    for i in range(slots):
        A.label(oks[i])
        success(i)
        if i + 1 < slots: A(f"s_branch {join}")
    A.label(join)

def poll_m(A, name, slotregs, tmp, vMP0, vMP1, slots, dly, prof=0):
    def issue(i):
        return [f"buffer_load_dwordx4 {v(slotregs[i],4)}, v{vMP0}, s[{S_M}:{S_M+3}], s{S_MOFF} offen sc1",
                f"buffer_load_dwordx4 {v(slotregs[i]+4,4)}, v{vMP1}, s[{S_M}:{S_M+3}], s{S_MOFF} offen sc1"]
    def success(i):
        A(f"ds_write_b128 v{vMP0}, {v(slotregs[i],4)}")
        A(f"ds_write_b128 v{vMP1}, {v(slotregs[i]+4,4)}")
    poll(A, name, slots, issue, lambda i: range(slotregs[i], slotregs[i] + 8), tmp, success, dly, A.uniq(name + "_mj"))
    stamp(A, prof, 0)
    A("s_waitcnt lgkmcnt(0)\ns_barrier")
    stamp(A, prof, 1)

def common_addr(A, vLANE, vMP0, vMP1, vLR, vIDX):
    A(f"""
    v_and_b32 v{vLANE}, 63, v0
    v_lshlrev_b32 v{vLR}, 4, v{vLANE}
    s_lshl_b32 s{S_T}, s{S_WAVE}, 10
    v_add_u32 v{vMP0}, s{S_T}, v{vLR}
    s_add_u32 s{S_T+1}, s{S_T}, 4096
    s_cmp_eq_u32 s{S_WAVE}, 3
    s_cselect_b32 s{S_T}, s{S_T}, s{S_T+1}
    v_add_u32 v{vMP1}, s{S_T}, v{vLR}
    v_and_b32 v{vIDX}, 8, v{vLANE}
    v_cmp_eq_u32 vcc, 0, v{vIDX}
    v_mov_b32 v{vIDX}, 0xeeee
    v_mov_b32 v19, 0x4444
    v_cndmask_b32 v{vIDX}, v{vIDX}, v19, vcc
    """)

def qk_role(A, name, layer, prof):
    ROLEBIT[0] = 0
    LANE = 1; MP0 = 2; MP1 = 3; LR = 4; IDX = 5; TW = 6; TR = 7; MKA = 8
    XK0 = 12; XK1 = 13; SW = 14; SR = 15; PS = 16; TA_ = 17; TB_ = 18; T0 = 19
    MF = 20
    DD = 48
    XK = 56
    MK = 88
    TF = 104
    SA = 108
    WV = 120
    def W(nt, k):
        g = nt * 7 + k
        return a(8 * g, 8) if g < 32 else v(WV + 8 * (g - 32), 8)
    def Wq(nt, k, half):
        g = nt * 7 + k
        return a(8 * g + 4 * half, 4) if g < 32 else v(WV + 8 * (g - 32) + 4 * half, 4)
    TBASE = 8192; TWAVE = 3072; SBASE = TBASE + 4 * TWAVE; RS = 56; KBASE = 32768; KBUF = 8192
    A.label(f"{name}_qk")
    srd(A, S_W, S_WS, S_WS + 1, L.AI, L.IMG)
    srd(A, S_X, S_WL, S_WL + 1, L.XI, L.XB)
    A(f"""
    v_and_b32 v{LANE}, 63, v0
    v_lshlrev_b32 v{LR}, 4, v{LANE}
    s_mul_i32 s{S_T}, s{S_ROLE}, {28*14*1024}
    s_mul_i32 s{S_T+1}, s{S_WAVE}, {7*14*1024}
    s_add_u32 s{S_T}, s{S_T}, s{S_T+1}
    """)
    for nt in range(7):
        for k in range(7):
            for hf in range(2):
                A(f"buffer_load_dwordx4 {Wq(nt,k,hf)}, v{LR}, s[{S_W}:{S_W+3}], s{S_T} offen offset:{1024*hf}")
            A(f"s_add_u32 s{S_T}, s{S_T}, 2048")
            if nt * 7 + k >= 24: A("s_waitcnt vmcnt(48)")
    common_addr(A, LANE, MP0, MP1, LR, IDX)
    A(f"""
    v_and_b32 v20, 15, v{LANE}            ; n
    v_lshrrev_b32 v21, 4, v{LANE}         ; g
    s_mul_i32 s{S_T}, s{S_WAVE}, {TWAVE}
    s_add_u32 s{S_T}, s{S_T}, {TBASE}
    v_and_b32 v22, 1, v21
    v_lshlrev_b32 v22, 1, v22
    v_lshrrev_b32 v23, 1, v21
    v_or_b32 v22, v22, v23
    v_lshlrev_b32 v22, 2, v22
    v_lshl_add_u32 v22, v20, 4, v22
    v_add_u32 v{TW}, s{S_T}, v22
    v_lshrrev_b32 v22, 3, v20             ; i>>1
    v_lshlrev_b32 v22, 2, v22
    v_and_b32 v23, 2, v20                 ; 2*half
    v_add_u32 v22, v22, v23
    v_bfe_u32 v23, v20, 2, 1              ; i&1
    v_add_u32 v22, v22, v23
    v_lshlrev_b32 v22, 4, v22
    v_and_b32 v23, 1, v20
    v_lshl_add_u32 v22, v23, 3, v22
    v_mul_u32_u24 v23, 384, v21
    v_add_u32 v22, v22, v23
    v_add_u32 v{TR}, s{S_T}, v22
    s_mul_i32 s{S_T+1}, s{S_WAVE}, 112
    """)
    for kp in range(2):
        for b in range(2):
            A(f"""
            v_lshlrev_b32 v22, 3, v21
            v_add_u32 v22, s{S_T+1}, v22
            v_add_u32 v22, {64*kp+32*b}, v22
            v_min_u32 v22, 440, v22
            v_lshrrev_b32 v23, 6, v22
            v_lshlrev_b32 v23, 10, v23
            v_bfe_u32 v24, v22, 4, 2
            v_lshl_add_u32 v23, v24, 8, v23
            v_bfe_u32 v24, v22, 2, 2
            v_lshl_add_u32 v23, v24, 2, v23
            v_and_b32 v24, 7, v20
            v_lshl_add_u32 v{MKA+2*kp+b}, v24, 4, v23
            """)
    A(f"""
    s_mul_i32 s{S_T+1}, s{S_WAVE}, 14
    v_add_u32 v22, s{S_T+1}, v21
    v_lshrrev_b32 v23, 2, v22
    v_lshlrev_b32 v23, 10, v23
    v_and_b32 v22, 3, v22
    v_lshl_add_u32 v23, v22, 8, v23
    v_lshl_add_u32 v{XK0}, v20, 4, v23
    s_lshl_b32 s{S_T+1}, s{S_ROLE}, 2
    s_add_u32 s{S_T+1}, s{S_T+1}, s{S_WAVE}
    s_lshl_b32 s{S_T+1}, s{S_T+1}, 2
    v_add_u32 v22, s{S_T+1}, v{LANE}
    v_lshlrev_b32 v22, 7, v22
    v_add_u32 v22, {28*1024}, v22
    v_mov_b32 v23, 0x40000000
    v_cmp_gt_u32 vcc, 4, v{LANE}
    v_cndmask_b32 v{XK1}, v23, v22, vcc
    v_and_b32 v22, 1, v21
    v_lshlrev_b32 v22, 2, v22
    v_and_b32 v23, 2, v21
    v_or_b32 v22, v22, v23
    v_mul_u32_u24 v22, {RS*4}, v22
    v_lshl_add_u32 v22, v20, 2, v22
    s_mul_i32 s{S_T+1}, s{S_WAVE}, {8*RS*4}
    s_add_u32 s{S_T+1}, s{S_T+1}, {SBASE}
    v_add_u32 v{SW}, s{S_T+1}, v22
    v_and_b32 v22, 1, v21
    s_lshl_b32 s{S_T+1}, s{S_WAVE}, 1
    v_add_u32 v22, s{S_T+1}, v22          ; row
    v_mul_u32_u24 v23, {RS*4}, v22
    v_lshlrev_b32 v24, 3, v20
    v_and_b32 v25, 3, v20
    v_lshlrev_b32 v25, 3, v25
    v_add_u32 v25, 128, v25
    v_cmp_gt_u32 vcc, 2, v21
    v_cndmask_b32 v24, v25, v24, vcc
    v_add_u32 v23, v23, v24
    v_add_u32 v{SR}, {SBASE}, v23
    s_and_b32 s{S_T}, s{S_ROLE}, 1
    s_lshr_b32 s{S_T+1}, s{S_ROLE}, 1
    s_lshl_b32 s{S_T+2}, s{S_T+1}, 10
    s_lshl_b32 s{S_T+3}, s{S_T}, 9
    s_add_u32 s{S_T+2}, s{S_T+2}, s{S_T+3}          ; X base
    v_bfe_u32 v23, v20, 2, 1                         ; key>>4
    v_lshlrev_b32 v23, 8, v23
    v_and_b32 v24, 1, v20                            ; hf
    v_lshl_add_u32 v23, v24, 7, v23
    v_bfe_u32 v24, v20, 1, 1
    v_lshl_add_u32 v23, v24, 3, v23
    v_bfe_u32 v24, v20, 3, 1
    v_lshl_add_u32 v23, v24, 2, v23
    v_lshl_add_u32 v23, v22, 4, v23
    v_add_u32 v23, s{S_T+2}, v23
    s_lshr_b32 s{S_T+2}, s{S_ROLE}, 2
    s_lshl_b32 s{S_T+2}, s{S_T+2}, 9
    s_and_b32 s{S_T+3}, s{S_T+1}, 1
    s_lshl_b32 s{S_T+3}, s{S_T+3}, 8
    s_add_u32 s{S_T+2}, s{S_T+2}, s{S_T+3}
    s_lshl_b32 s{S_T+3}, s{S_T}, 2
    s_add_u32 s{S_T+2}, s{S_T+2}, s{S_T+3}
    s_add_u32 s{S_T+2}, s{S_T+2}, 8192
    v_and_b32 v24, 1, v20                            ; cp&1
    v_lshlrev_b32 v24, 7, v24
    v_bfe_u32 v25, v20, 1, 1                         ; cp>>1
    v_lshl_add_u32 v24, v25, 3, v24
    v_lshl_add_u32 v24, v22, 4, v24
    v_add_u32 v24, s{S_T+2}, v24
    v_cmp_gt_u32 vcc, 2, v21
    v_cndmask_b32 v{PS}, v24, v23, vcc
    v_cmp_gt_u32 s[{S_T+4}:{S_T+5}], 4, v20
    s_or_b64 s[{S_MASK}:{S_MASK+1}], vcc, s[{S_T+4}:{S_T+5}]
    v_mov_b32 v24, 0x40000000
    v_cndmask_b32 v{PS}, v24, v{PS}, s[{S_MASK}:{S_MASK+1}]
    v_mov_b32 v24, 0
    ds_write_b32 v{TW}, v24 offset:{7*384}
    s_mov_b32 s{S_XOFF}, 0
    s_mov_b32 s{S_XOFF}, 0
    """)
    def xk_loads():
        l = []
        for tau in range(2):
            l.append(f"s_add_u32 s{S_KT}, s{S_XOFF}, {tau*14*1024}")
            for kp in range(2):
                for b in range(2):
                    l.append(f"buffer_load_dwordx4 {v(XK+16*kp+8*tau+4*b,4)}, v{XK0}, s[{S_X}:{S_X+3}], s{S_KT} offen offset:{2048*kp+1024*b}")
        return l
    for x in xk_loads(): A(x)
    team_mode_issue(A, T0, TA_)
    A("s_waitcnt vmcnt(0) lgkmcnt(0)")
    team_mode(A, name, T0, TA_)
    if prof: A(f"s_memtime s[{S_T0}:{S_T0+1}]\ns_waitcnt lgkmcnt(0)")
    stamp_init(A, prof)
    A.label(f"{name}_qk_loop")
    poll_m(A, name, [MK, MK + 8, SA], DD, MP0, MP1, OPT['ms'], OPT['md'], prof)
    for k in range(7):
        A(f"ds_read_b128 {v(MF+4*k,4)}, v{LR} offset:{1024*k}")
    A(f"v_mov_b64 {v(DD,2)}, 0\nv_mov_b64 {v(DD+2,2)}, 0")
    mf = []; fill = {}
    def F(i, *ins): fill.setdefault(i, []).extend(ins)
    for nt in range(7):
        d = DD + 4 * (nt & 1)
        for k in range(7):
            mf.append(f"v_smfmac_f32_16x16x64_bf16 {v(d,4)}, {v(MF+4*k,4)}, {W(nt,k)}, v{IDX}")
    def epi(nt, pos):
        d = DD + 4 * (nt & 1)
        ins = [f"v_permlane32_swap_b32 v{d}, v{d+2}", f"v_permlane32_swap_b32 v{d+1}, v{d+3}",
               f"v_add_f32 v{TA_}, v{d}, v{d+2}", f"v_add_f32 v{TB_}, v{d+1}, v{d+3}",
               f"v_mov_b64 {v(d,2)}, 0", f"v_mov_b64 {v(d+2,2)}, 0",
               f"v_cvt_pk_bf16_f32 v{TA_}, v{TA_}, v{TB_}", f"ds_write_b32 v{TW}, v{TA_} offset:{384*nt}"]
        for p_, i_ in zip(pos, ins): F(p_, i_)
    pre = []
    mk = []
    for kp in range(2):
        for b in range(2):
            mk.append(f"ds_read2_b32 {v(MK+8*kp+4*b,2)}, v{MKA+2*kp+b} offset0:0 offset1:32")
            mk.append(f"ds_read2_b32 {v(MK+8*kp+4*b+2,2)}, v{MKA+2*kp+b} offset0:1 offset1:33")
    A("s_waitcnt lgkmcnt(6)")
    for k in range(6):
        F(k, f"s_waitcnt lgkmcnt({5-k})")
    F(0, f"v_mov_b64 {v(DD+4,2)}, 0"); F(1, f"v_mov_b64 {v(DD+6,2)}, 0")
    if OPT['ms'] > 1: F(6, "s_waitcnt vmcnt(0)")
    for i_, x in enumerate(mk): F(7 + i_ // 2, x) if i_ < 4 else F(14 + (i_ - 4) // 2, x)
    if OPT['xpt'] or not OPT['nopt']: F(OPT['xpt'] or 8, f"buffer_load_dword v{T0}, v{XK1}, s[{S_X}:{S_X+3}], s{S_XOFF} offen")
    for i_ in range(6): F(21 + i_ // 2 if i_ < 4 else 28 + (i_ - 4) // 2, f"v_mov_b64 {v(SA+2*i_,2)}, 0")
    for nt in range(6):
        b = 7 * (nt + 1)
        epi(nt, [b + 2, b + 3, b + 3, b + 4, b + 4, b + 5, b + 5, b + 6])
    F(35, f"ds_read_b64_tr_b16 {v(TF,2)}, v{TR} offset:0", f"ds_read_b64_tr_b16 {v(TF+2,2)}, v{TR} offset:128")
    stream(A, mf, fill)
    stamp(A, prof, 2)
    def smf_s(kp, tau):
        b_ = v(XK + 16 * kp + 8 * tau, 8) if tau < 2 else v(MK + 8 * kp, 8)
        return f"v_smfmac_f32_16x16x64_bf16 {v(SA+4*tau,4)}, {v(TF,4)}, {b_}, v{IDX}"
    d = DD
    A(f"""
    s_waitcnt lgkmcnt(2)
    {smf_s(0,0)}
    {smf_s(0,1)}
    {smf_s(0,2)}
    s_nop 4
    v_permlane32_swap_b32 v{d}, v{d+2}
    v_permlane32_swap_b32 v{d+1}, v{d+3}
    v_add_f32 v{TA_}, v{d}, v{d+2}
    v_add_f32 v{TB_}, v{d+1}, v{d+3}
    v_cvt_pk_bf16_f32 v{TA_}, v{TA_}, v{TB_}
    ds_write_b32 v{TW}, v{TA_} offset:{384*6}
    ds_read_b64_tr_b16 {v(TF,2)}, v{TR} offset:{1536}
    ds_read_b64_tr_b16 {v(TF+2,2)}, v{TR} offset:{1536+128}
    s_waitcnt lgkmcnt(0)
    {smf_s(1,0)}
    {smf_s(1,1)}
    {smf_s(1,2)}
    """)
    stamp(A, prof, 3)
    for tau in range(3):
        d = SA + 4 * tau
        A(f"""
        v_permlane32_swap_b32 v{d}, v{d+2}
        v_permlane32_swap_b32 v{d+1}, v{d+3}
        v_add_f32 v{d}, v{d}, v{d+2}
        v_add_f32 v{d+1}, v{d+1}, v{d+3}
        ds_write2_b32 v{SW}, v{d}, v{d+1} offset0:{16*tau} offset1:{16*tau+RS}
        """)
    A("s_waitcnt lgkmcnt(0)\ns_barrier")
    stamp(A, prof, 4)
    R = MF
    for w in range(4):
        A(f"ds_read_b64 {v(R+2*w,2)}, v{SR} offset:{w*8*RS*4}")
    X0 = R + 8; X1 = R + 9; MX = R + 10; T = R + 11
    A(f"""
    s_waitcnt lgkmcnt(2)
    v_add_f32 v{R}, v{R}, v{R+2}
    v_add_f32 v{R+1}, v{R+1}, v{R+3}
    s_waitcnt lgkmcnt(0)
    v_add_f32 v{R+4}, v{R+4}, v{R+6}
    v_add_f32 v{R+5}, v{R+5}, v{R+7}
    v_add_f32 v{X0}, v{R}, v{R+4}
    v_add_f32 v{X1}, v{R+1}, v{R+5}
    v_mov_b32 v{T}, 0xff800000
    v_cndmask_b32 v{X0}, v{T}, v{X0}, s[{S_MASK}:{S_MASK+1}]
    v_cndmask_b32 v{X1}, v{T}, v{X1}, s[{S_MASK}:{S_MASK+1}]
    v_max_f32 v{MX}, v{X0}, v{X1}
    v_max_f32 v{MX}, v{MX}, v{MX} row_ror:8 row_mask:0xf bank_mask:0xf
    v_max_f32 v{MX}, v{MX}, v{MX} row_ror:4 row_mask:0xf bank_mask:0xf
    v_max_f32 v{MX}, v{MX}, v{MX} row_ror:2 row_mask:0xf bank_mask:0xf
    v_max_f32 v{MX}, v{MX}, v{MX} row_ror:1 row_mask:0xf bank_mask:0xf
    v_mov_b32 v{T}, v{MX}
    v_permlane32_swap_b32 v{MX}, v{T}
    v_max_f32 v{MX}, v{MX}, v{T}
    v_sub_f32 v{X0}, v{X0}, v{MX}
    v_sub_f32 v{X1}, v{X1}, v{MX}
    v_exp_f32 v{X0}, v{X0}
    v_exp_f32 v{X1}, v{X1}
    v_add_f32 v{MX}, v{X0}, v{X1}
    v_add_f32 v{MX}, v{MX}, v{MX} row_ror:8 row_mask:0xf bank_mask:0xf
    v_add_f32 v{MX}, v{MX}, v{MX} row_ror:4 row_mask:0xf bank_mask:0xf
    v_add_f32 v{MX}, v{MX}, v{MX} row_ror:2 row_mask:0xf bank_mask:0xf
    v_add_f32 v{MX}, v{MX}, v{MX} row_ror:1 row_mask:0xf bank_mask:0xf
    v_mov_b32 v{T}, v{MX}
    v_permlane32_swap_b32 v{MX}, v{T}
    v_add_f32 v{MX}, v{MX}, v{T}
    v_rcp_f32 v{MX}, v{MX}
    v_mul_f32 v{X0}, v{X0}, v{MX}
    v_mul_f32 v{X1}, v{X1}, v{MX}
    v_cvt_pk_bf16_f32 v{X0}, v{X0}, v{X1}
    v_min_u32 v{X0}, -2, v{X0}
    """)
    ho = store_handoff(A, name, f"buffer_store_dword v{X0}, v{PS}, s[{S_P}:{S_P+3}], s{S_POFF} offen")
    stamp(A, prof, 5)
    A(f"s_add_u32 s{S_XOFF}, s{S_XOFF}, {28*1024}")
    if OPT['qs']: A(f"s_sleep {OPT['qs']}")
    if OPT['qw'] & 1: A("s_waitcnt vmcnt(0)")
    if not OPT['noxk']:
        for x in xk_loads(): A(x)
    if OPT['mpt']:
        A(f"s_add_u32 s{S_KT}, s{S_MOFF}, {L.MB}")
        A(f"buffer_load_dwordx4 {v(MK,4)}, v{MP0}, s[{S_M}:{S_M+3}], s{S_KT} offen sc1")
        A(f"buffer_load_dwordx4 {v(MK+4,4)}, v{MP1}, s[{S_M}:{S_M+3}], s{S_KT} offen sc1")
    if OPT['qw'] & 2: A("s_waitcnt vmcnt(0)")
    if OPT['qs2']: A(f"s_sleep {OPT['qs2']}")
    A(f"""
    s_add_u32 s{S_MOFF}, s{S_MOFF}, {L.MB}
    s_add_u32 s{S_POFF}, s{S_POFF}, {L.PB}
    s_add_u32 s{S_STEP}, s{S_STEP}, 1
    s_cmp_lt_u32 s{S_STEP}, 63
    s_cbranch_scc1 {name}_qk_loop
    """)
    if prof: prof_out(A, name, layer, prof)
    A(f"s_branch {name}_end")
    handoff_tail(A, ho)

def prof_out(A, name, layer, prof):
    A(f"""
    s_add_u32 s{S_CT}, s{S_WS}, {PROF - 8192}
    s_addc_u32 s{S_CT+1}, s{S_WS+1}, 0
    s_memtime s[{S_T0+2}:{S_T0+3}]
    s_waitcnt lgkmcnt(0)
    s_sub_u32 s{S_T0+2}, s{S_T0+2}, s{S_T0}
    s_lshl_b32 s{S_T}, s{S_ROLE}, 2
    s_add_u32 s{S_T}, s{S_T}, s{S_WAVE}
    s_lshl_b32 s{S_T}, s{S_T}, 3
    s_add_u32 s{S_T}, s{S_T}, 8192
    v_mov_b32 v1, s{S_T}
    v_mov_b32 v2, s{S_T0+2}
    v_mov_b32 v3, s{S_SPIN}
    s_mov_b64 exec, 1
    global_store_dwordx2 v1, v[2:3], s[{S_CT}:{S_CT+1}]
    s_waitcnt vmcnt(0)
    """)
    if prof == 3:
        A(f"s_sub_u32 s{S_T}, s{S_T}, 8192\ns_lshl_b32 s{S_T}, s{S_T}, 8\ns_mov_b64 exec, -1\nv_mbcnt_lo_u32_b32 v1, -1, 0\nv_mbcnt_hi_u32_b32 v1, -1, v1\nv_lshlrev_b32 v1, 2, v1\nv_add_u32 v1, s{S_T}, v1")
        A(f"s_add_u32 s{S_T+2}, s{S_WS}, {L.TB}\ns_addc_u32 s{S_T+3}, s{S_WS+1}, 0")
        for i in range(8): A(f"global_store_dword v1, v{248+i}, s[{S_T+2}:{S_T+3}] offset:{256*i}")
        A("s_waitcnt vmcnt(0)")
    if prof == 2:
        A(f"s_sub_u32 s{S_T}, s{S_T}, 8192\ns_lshl_b32 s{S_T}, s{S_T}, 2\ns_add_u32 s{S_T}, s{S_T}, 10240\nv_mov_b32 v1, s{S_T}")
        for i in range(NSTAMP): A(f"v_mov_b32 v{2+i}, s{S_ST+i}")
        A(f"global_store_dwordx4 v1, v[2:5], s[{S_CT}:{S_CT+1}]\nglobal_store_dwordx4 v1, v[6:9], s[{S_CT}:{S_CT+1}] offset:16\ns_waitcnt vmcnt(0)")
    A("s_mov_b64 exec, -1")

def vo_role(A, name, layer, prof):
    ROLEBIT[0] = 8
    LANE = 1; MP0 = 2; MP1 = 3; LR = 4; IDX = 5; PX = 6; PM = 7; XVA = 8; US = 9; OW = 10; OR = 11; MS = 12; WL = 13; XT = 14; T0 = 15
    MF = 16
    UD = 44
    UB = 52
    XV = 68
    PR = 100
    OA = 112
    WT = 120
    MP = 136
    FLA = 146; UFA = 147; FLD = 148; ONE = 152; MXD = 153; MXA = 154
    WV = 160
    WBASE = 16384; OBASE = 8192; OWS = 1280
    ldsg = []
    for c in range(8):
        if c & 1: ldsg.append((c, 3))
        ldsg.append((c, 6))
    idx = {}; n = 0
    for c in range(8):
        for k in range(7):
            if (c, k) not in ldsg:
                idx[(c, k)] = n; n += 1
    assert n == 44
    def Wr(c, k, hf=None):
        g = idx[(c, k)]
        o = 8 * g + (0 if hf is None else 4 * hf); nn = 8 if hf is None else 4
        return a(o, nn) if g < 32 else v(WV + o - 256, nn)
    A.label(f"{name}_vo")
    srd(A, S_W, S_WS, S_WS + 1, L.VI, L.IMG)
    srd(A, S_X, S_WL, S_WL + 1, L.XV, L.XV_SZ)
    srd(A, S_FL, S_WL, S_WL + 1, L.FL - 512, L.CT_SZ - 4096 + 512)
    A(f"""
    s_sub_u32 s{S_ROLE}, s{S_ROLE}, 16          ; c
    v_and_b32 v{LANE}, 63, v0
    v_lshlrev_b32 v{LR}, 4, v{LANE}
    s_mul_i32 s{S_T+2}, s{S_WAVE}, {24*1024}
    s_add_u32 s{S_T+2}, s{S_T+2}, {WBASE}
    v_add_u32 v{WL}, s{S_T+2}, v{LR}
    """)
    nload = 0
    for c in range(8):
        hl, t = c >> 1, c & 1
        A(f"""
        s_lshl_b32 s{S_T}, s{S_WAVE}, 2
        s_add_u32 s{S_T}, s{S_T}, {hl}
        s_mul_i32 s{S_T}, s{S_T}, 28
        s_lshl_b32 s{S_T+1}, s{S_ROLE}, 1
        s_add_u32 s{S_T}, s{S_T}, s{S_T+1}
        s_add_u32 s{S_T}, s{S_T}, {t}
        s_mul_i32 s{S_T}, s{S_T}, {14*1024}
        """)
        for k in range(7):
            if (c, k) in ldsg:
                j = ldsg.index((c, k))
                A(f"""
                buffer_load_dwordx4 {v(MF,4)}, v{LR}, s[{S_W}:{S_W+3}], s{S_T} offen
                buffer_load_dwordx4 {v(MF+4,4)}, v{LR}, s[{S_W}:{S_W+3}], s{S_T} offen offset:1024
                s_waitcnt vmcnt(0)
                ds_write_b128 v{WL}, {v(MF,4)} offset:{2048*j}
                ds_write_b128 v{WL}, {v(MF+4,4)} offset:{2048*j+1024}
                s_waitcnt lgkmcnt(0)
                """)
            else:
                for hf in range(2):
                    A(f"buffer_load_dwordx4 {Wr(c,k,hf)}, v{LR}, s[{S_W}:{S_W+3}], s{S_T} offen offset:{1024*hf}")
            A(f"s_add_u32 s{S_T}, s{S_T}, 2048")
    common_addr(A, LANE, MP0, MP1, LR, IDX)
    A(f"""
    v_and_b32 v20, 15, v{LANE}            ; n
    v_lshrrev_b32 v21, 4, v{LANE}         ; g
    s_lshl_b32 s{S_T}, s{S_WAVE}, 11
    v_add_u32 v{PX}, s{S_T}, v{LR}
    v_lshrrev_b32 v22, 1, v21
    v_lshlrev_b32 v22, 8, v22
    v_lshl_add_u32 v22, v20, 4, v22
    s_lshl_b32 s{S_T}, s{S_WAVE}, 9
    s_add_u32 s{S_T}, s{S_T}, 8192
    v_add_u32 v{PM}, s{S_T}, v22
    s_mul_i32 s{S_T}, s{S_WAVE}, {4*28}
    s_lshl_b32 s{S_T+1}, s{S_ROLE}, 1
    s_add_u32 s{S_T}, s{S_T}, s{S_T+1}
    s_lshl_b32 s{S_T}, s{S_T}, 10
    v_add_u32 v{XVA}, s{S_T}, v{LR}
    v_lshrrev_b32 v22, 4, v0
    v_mul_u32_u24 v22, {28*1024}, v22
    v_and_b32 v23, 15, v0
    v_lshl_add_u32 v22, v23, 7, v22
    s_lshl_b32 s{S_T}, s{S_ROLE}, 11
    s_add_u32 s{S_T}, s{S_T}, {16*28*1024}
    v_add_u32 v{XT}, s{S_T}, v22
    s_mul_i32 s{S_T}, s{S_WAVE}, {OWS}
    s_add_u32 s{S_T}, s{S_T}, {OBASE}
    v_lshlrev_b32 v22, 2, v{LANE}
    v_add_u32 v{OW}, s{S_T}, v22
    v_bfe_u32 v22, v{LANE}, 2, 3          ; r
    v_and_b32 v23, 3, v{LANE}             ; p
    v_and_b32 v24, 1, v22
    v_lshlrev_b32 v24, 1, v24             ; 2*(i&1)
    v_bfe_u32 v25, v22, 1, 1              ; i>>1
    v_lshl_add_u32 v24, v25, 5, v24
    v_and_b32 v25, 3, v22
    v_lshl_add_u32 v24, v25, 6, v24       ; OFF(i) = 64 i + 2 (i&1) + 32 (i>>1)
    v_lshrrev_b32 v25, 2, v22             ; g1
    v_lshl_add_u32 v24, v25, 4, v24
    v_lshl_add_u32 v24, v23, 2, v24
    s_lshr_b32 s{S_T}, s{S_WAVE}, 1
    s_lshl_b32 s{S_T}, s{S_T}, 5
    s_and_b32 s{S_T+1}, s{S_WAVE}, 1
    s_lshl_b32 s{S_T+1}, s{S_T+1}, 1
    s_add_u32 s{S_T}, s{S_T}, s{S_T+1}
    v_add_u32 v24, s{S_T}, v24
    v_lshlrev_b32 v24, 2, v24
    v_add_u32 v{OR}, {OBASE}, v24
    s_lshl_b32 s{S_T}, s{S_ROLE}, 9
    s_lshl_b32 s{S_T+1}, s{S_WAVE}, 7
    s_add_u32 s{S_T}, s{S_T}, s{S_T+1}
    v_lshlrev_b32 v22, 2, v{LANE}
    v_add_u32 v22, s{S_T}, v22
    v_mov_b32 v23, 0x40000000
    v_cmp_gt_u32 vcc, 32, v{LANE}
    v_cndmask_b32 v{MS}, v23, v22, vcc
    v_lshrrev_b32 v22, 2, v{LANE}
    v_lshlrev_b32 v22, 8, v22
    v_and_b32 v24, 3, v{LANE}
    v_lshl_add_u32 v{FLA}, v24, 4, v22
    s_mov_b32 s{S_RDY}, 0

    s_mov_b32 s{S_XV}, 0
    s_mov_b32 s{S_XV+1}, {28*1024}
    s_mov_b32 s{S_XV+2}, {2*28*1024}
    s_mov_b32 s{S_XV+3}, {3*28*1024}
    """)
    team_mode_issue(A, T0, MXA)
    A("s_waitcnt vmcnt(0) lgkmcnt(0)")
    team_mode(A, name, T0, MXA)
    if prof: A(f"s_memtime s[{S_T0}:{S_T0+1}]\ns_waitcnt lgkmcnt(0)")
    stamp_init(A, prof)
    A.label(f"{name}_vo_loop")
    def wrd(j):
        b = WT + 8 * (j & 1)
        return [f"ds_read_b128 {v(b,4)}, v{WL} offset:{2048*j}", f"ds_read_b128 {v(b+4,4)}, v{WL} offset:{2048*j+1024}"]
    poll_m(A, name, [PR, WT, WT + 8], MP, MP0, MP1, OPT['vs'], OPT['vd'], prof)
    if OPT['vs'] > 1: A('s_waitcnt vmcnt(0)')
    for k in range(7):
        A(f"ds_read_b128 {v(MF+4*k,4)}, v{LR} offset:{1024*k}")
    for x in wrd(0) + wrd(1): A(x)
    A(f"v_mov_b64 {v(UD,2)}, 0\nv_mov_b64 {v(UD+2,2)}, 0")
    def fl_load():
        A(f"""
        s_add_u32 s{S_T}, s{S_RDY}, 2
        s_lshl_b32 s{S_T}, s{S_T}, 8
        buffer_load_dwordx4 {v(FLD,4)}, v{FLA}, s[{S_FL}:{S_FL+3}], s{S_T} offen sc0 sc1
        """)
    def fl_update():
        A(f"""
        v_min_u32 v{FLD}, v{FLD}, v{FLD+1}
        v_min3_u32 v{FLD}, v{FLD}, v{FLD+2}, v{FLD+3}
        v_cmp_ne_u32 vcc, 0, v{FLD}
        s_nop 1
        s_ff0_i32_b64 s{S_T}, vcc
        s_cmp_eq_u32 s{S_T}, -1
        s_cselect_b32 s{S_T}, 64, s{S_T}
        s_lshr_b32 s{S_T}, s{S_T}, 2
        s_add_u32 s{S_RDY}, s{S_RDY}, s{S_T}
        """)
    if OPT['ext']:
        lw = A.uniq(name + "_xw"); lo = A.uniq(name + "_xo"); ln = A.uniq(name + "_xn")
        A(f"""
        s_cmp_lt_u32 s{S_STEP}, s{S_RDY}
        s_cbranch_scc1 {lo}
        {lw}:
        """)
        fl_load()
        A("s_waitcnt vmcnt(0)")
        fl_update()
        A(f"""
        s_add_u32 s{S_SPIN}, s{S_SPIN}, 1
        s_cmp_lt_u32 s{S_SPIN}, {SPIN_MAX}
        s_cbranch_scc0 {name}_end
        s_cmp_lt_u32 s{S_STEP}, s{S_RDY}
        s_cbranch_scc0 {lw}
        {lo}:
        s_cmp_ge_u32 s{S_RDY}, 64
        s_cbranch_scc1 {ln}
        """)
        fl_load()
        A.label(ln)
    mf = []; fill = {}
    def F(i, *ins): fill.setdefault(i, []).extend(ins)
    pos = {}
    for c in range(8):
        d = UD + 4 * (c & 1)
        for k in range(7):
            if (c, k) in ldsg:
                j = ldsg.index((c, k)); b = v(WT + 8 * (j & 1), 8); pos[j] = len(mf)
            else:
                b = Wr(c, k)
            mf.append(f"v_smfmac_f32_16x16x64_bf16 {v(d,4)}, {v(MF+4*k,4)}, {b}, v{IDX}")
    A("s_waitcnt lgkmcnt(10)")
    for k in range(6): F(k, f"s_waitcnt lgkmcnt({9-k})")
    for j in range(12):
        F(pos[j] - 1, f"s_waitcnt lgkmcnt({2 if j < 11 else 0})")
        if j + 2 < 12: F(pos[j], *wrd(j + 2))
    F(0, f"v_mov_b64 {v(UD+4,2)}, 0"); F(1, f"v_mov_b64 {v(UD+6,2)}, 0")
    def epi_u(c):
        d = UD + 4 * (c & 1); hl, t = c >> 1, c & 1
        return [f"v_cvt_pk_bf16_f32 v{UB+8*t+2*hl}, v{d}, v{d+1}", f"v_cvt_pk_bf16_f32 v{UB+8*t+2*hl+1}, v{d+2}, v{d+3}",
                f"v_mov_b64 {v(d,2)}, 0", f"v_mov_b64 {v(d+2,2)}, 0"]
    for c in range(7):
        b = 7 * (c + 1)
        e = epi_u(c)
        F(b + 3, e[0], e[1]); F(b + 4, e[2], e[3])
    xl = []
    for hl in range(4):
        for t in range(2):
            xl.append(f"buffer_load_dwordx4 {v(XV+16*t+4*hl,4)}, v{XVA}, s[{S_X}:{S_X+3}], s{S_XV+hl} offen offset:{1024*t}")
    pl = [f"buffer_load_dwordx4 {v(PR,4)}, v{PX}, s[{S_P}:{S_P+3}], s{S_POFF} offen sc1",
          f"buffer_load_dwordx4 {v(PR+4,4)}, v{PX}, s[{S_P}:{S_P+3}], s{S_POFF} offen offset:1024 sc1",
          f"buffer_load_dwordx4 {v(PR+8,4)}, v{PM}, s[{S_P}:{S_P+3}], s{S_POFF} offen sc1"]
    if OPT['noxv']: xl = []
    pl0 = [] if (OPT['nopt'] and not OPT['ppt']) else pl
    for i_, x in enumerate(pl0 + xl): F(OPT['xv0'] + OPT['xvs'] * i_, x)
    if OPT['vpt'] or not OPT['nopt']: F(OPT['vpt'] or 36, f"buffer_load_dword v{T0}, v{XT}, s[{S_X}:{S_X+3}], s{S_XV} offen")
    F(2, f"v_mov_b64 {v(OA,2)}, 0", f"v_mov_b64 {v(OA+2,2)}, 0")
    F(3, f"v_mov_b64 {v(OA+4,2)}, 0", f"v_mov_b64 {v(OA+6,2)}, 0")
    stream(A, mf, fill)
    stamp(A, prof, 2)
    e = epi_u(7)
    A("s_nop 7")
    A(e[0]); A(e[1])
    if OPT.get('wst'):
        A("s_waitcnt vmcnt(0)")
        stamp(A, prof, 6)
    if OPT['vps']: A(f"s_sleep {OPT['vps']}")
    pslot = [PR, MF, MF + 12]
    def pissue(i):
        b = pslot[i]
        return [f"buffer_load_dwordx4 {v(b,4)}, v{PX}, s[{S_P}:{S_P+3}], s{S_POFF} offen sc1",
                f"buffer_load_dwordx4 {v(b+4,4)}, v{PX}, s[{S_P}:{S_P+3}], s{S_POFF} offen offset:1024 sc1",
                f"buffer_load_dwordx4 {v(b+8,4)}, v{PM}, s[{S_P}:{S_P+3}], s{S_POFF} offen sc1"]
    def psucc(i):
        stamp(A, prof, 3)
        b = pslot[i]
        for pair in range(2):
            for t in range(2):
                A(f"v_smfmac_f32_16x16x64_bf16 {v(OA+4*t,4)}, {v(b+4*pair,4)}, {v(XV+16*t+8*pair,8)}, v{IDX}")
        for t in range(2):
            A(f"v_smfmac_f32_16x16x64_bf16 {v(OA+4*t,4)}, {v(b+8,4)}, {v(UB+8*t,8)}, v{IDX}")
    poll(A, name, OPT['ps'], pissue, lambda i: range(pslot[i], pslot[i] + 12), MP, psucc, OPT['pd'], A.uniq(name + "_pj"))
    OFF = [0, 66, 160, 226]
    for i in range(4):
        A(f"v_permlane32_swap_b32 v{OA+i}, v{OA+4+i}")
    for i in range(4):
        A(f"v_add_f32 v{OA+i}, v{OA+i}, v{OA+4+i}")
        A(f"ds_write_b32 v{OW}, v{OA+i} offset:{4*OFF[i]}")
    A("s_waitcnt lgkmcnt(0)\ns_barrier")
    stamp(A, prof, 4)
    R = MP
    for w in range(4):
        A(f"ds_read_b64 {v(R+2*w,2)}, v{OR} offset:{w*OWS}")
    A(f"""
    s_add_u32 s{S_MNEXT}, s{S_MOFF}, {L.MB}
    s_waitcnt lgkmcnt(2)
    v_add_f32 v{R}, v{R}, v{R+2}
    v_add_f32 v{R+1}, v{R+1}, v{R+3}
    s_waitcnt lgkmcnt(0)
    v_add_f32 v{R+4}, v{R+4}, v{R+6}
    v_add_f32 v{R+5}, v{R+5}, v{R+7}
    v_add_f32 v{R}, v{R}, v{R+4}
    v_add_f32 v{R+1}, v{R+1}, v{R+5}
    v_cvt_pk_bf16_f32 v{R}, v{R}, v{R+1}
    v_min_u32 v{R}, -2, v{R}
    """)
    ho = store_handoff(A, name, f"buffer_store_dword v{R}, v{MS}, s[{S_M}:{S_M+3}], s{S_MNEXT} offen")
    stamp(A, prof, 5)
    if OPT['qw'] & 4: A("s_waitcnt vmcnt(0)")
    if OPT['vsl']: A(f"s_sleep {OPT['vsl']}")
    if OPT['ext']:
        lu = A.uniq(name + "_xu")
        A(f"""
        s_cmp_ge_u32 s{S_RDY}, 64
        s_cbranch_scc1 {lu}
        """)
        fl_update()
        A.label(lu)
    A(f"""
    s_mov_b32 s{S_MOFF}, s{S_MNEXT}
    s_add_u32 s{S_POFF}, s{S_POFF}, {L.PB}
    s_add_u32 s{S_XV}, s{S_XV}, {16*28*1024}
    s_add_u32 s{S_XV+1}, s{S_XV+1}, {16*28*1024}
    s_add_u32 s{S_XV+2}, s{S_XV+2}, {16*28*1024}
    s_add_u32 s{S_XV+3}, s{S_XV+3}, {16*28*1024}
    s_add_u32 s{S_STEP}, s{S_STEP}, 1
    s_cmp_lt_u32 s{S_STEP}, 63
    s_cbranch_scc1 {name}_vo_loop
    s_waitcnt vmcnt(0)
    """)
    if prof:
        A(f"s_add_u32 s{S_ROLE}, s{S_ROLE}, 16")
        prof_out(A, name, layer, prof)
    A(f"s_branch {name}_end")
    handoff_tail(A, ho)

def team_code(A, name, prof=False):
    srd(A, S_M, S_WL, S_WL + 1, L.MI, L.MI_SZ)
    srd(A, S_P, S_WL, S_WL + 1, L.PBUF, L.PB_SZ)
    A(f"""
    s_mov_b32 s{S_STEP}, 0
    s_mov_b32 s{S_MOFF}, 0
    s_mov_b32 s{S_POFF}, 0
    s_mov_b32 s{S_SPIN}, 0
    s_cmp_lt_u32 s{S_ROLE}, 16
    s_cbranch_scc0 {name}_vo
    """)
    qk_role(A, name, 0, prof)
    vo_role(A, name, 0, prof)
```

```python
D = 448; S = 2048; H = 16; SEG = 32; NSEG = 64; M = 8
NT = 28; KB = 14
UNIT = 1024
IMG = H * NT * KB * UNIT
ROWB = D * 2
XB = S * ROWB
MB = 7168
PB = 12288
off = 0
def alloc(n, align=4096):
    global off
    off = (off + align - 1) // align * align
    o = off; off += n
    return o
AI = alloc(IMG)
VI = alloc(IMG)
FI = alloc(NT * KB * UNIT)
GI = alloc(NT * KB * UNIT)
X1 = alloc(XB)
X2 = alloc(XB)
X3 = alloc(XB)
WT = alloc(225 * S * 8)
TB = alloc(1 << 20)
ST = alloc(64 * 4096)
LB = alloc(0, 1 << 16)
XI = alloc(XB + 4096)
XV_SZ = NSEG * H * NT * UNIT
XV = alloc(XV_SZ)
MI_SZ = (NSEG + 1) * MB
PB_SZ = NSEG * PB
MI = alloc(MI_SZ)
MX = alloc(MI_SZ)
PBUF = alloc(PB_SZ)
UI_STEP = 4 * NT * 1024
UI_SZ = NSEG * UI_STEP
UI = alloc(UI_SZ)
PTX_SZ = NSEG * H * 2 * UNIT
PTX = alloc(PTX_SZ)
PTM_SZ = NSEG * 4 * 2 * UNIT
PTM = alloc(PTM_SZ)
ZF = alloc(450 * S * 2 + 4096)
ZI = alloc(450 * S * 2 + 4096)
CT_SZ = 32768
CT = alloc(CT_SZ)
FL = CT + 4096
FL_XV = 0; FL_U = 64; FL_PT = 128
LS = (off - LB + 0xFFFF) // 0x10000 * 0x10000
off = LB + 2 * LS
WS_END = off
assert WS_END < 268435456
if __name__ == "__main__":
    for k, val in list(globals().items()):
        if k.isupper(): print(k, val if not isinstance(val, int) else hex(val))
```

```python
import sys, re
from asm import *
from build import HDR
import layout as L, ka, kb, kp, kr, kf
MAIN = "interleave_layers__memory_aug_recurrent_mem_tr__spectral_gfnet__prompt_kernel"
PATH = "interleave_layers__memory_aug_recurrent_mem_tr__spectral_gfnet__prompt.s"
def two(name, lines, vg, ag):
    return [(f"{name}0_kernel", ["  s_mov_b32 s3, 0", f"  s_branch {name}_common"], vg, ag),
            (f"{name}1_kernel", ["  s_mov_b32 s3, 1", f"{name}_common:"] + lines, vg, ag)]
def kernels():
    K = [(MAIN, kp.gen_prep("prep"), 256, 0)]
    K += two("ka", kf.gen_ka("ka"), 256, 256)
    K += two("kba", kb.gen_kb1("kba"), 132, 112)
    K += [("kbb_kernel", kb.gen_kb2("kbb"), 168, 0)]
    K += two("kbc", kb.gen_kb3q("kbc"), 108, 112)
    return K
G = 160 * 1024
LAUNCH = [(MAIN, 256, G)]
for l in range(2):
    LAUNCH += [(f"ka{l}_kernel", 256, G), (f"kba{l}_kernel", 256, 28672), ("kbb_kernel", 225, 16384), (f"kbc{l}_kernel", 256, 28672)]
def build_text(K, launch):
    ref = open(PATH + ".ref").read().split("\n")
    hdr = [x for x in ref if x.startswith(";") and "@launch" not in x and "Override" not in x and "grid=ceil" not in x]
    hdr = hdr[:hdr.index(next(x for x in hdr if "d_ws " in x)) + 1]
    txt = "\n".join(hdr) + "\n"
    for k, g, lds in launch: txt += f"; @launch kernel={k} grid=({g},1,1) block=(256,1,1) lds={lds}\n"
    txt += HDR
    desc = '.section .rodata,"a"\n'
    for name, lines, vg, ag in K:
        t, n = kernel_text(name, lines)
        t = "\n".join(x.split(";")[0].rstrip() if not x.lstrip().startswith(".") else x for x in t.split("\n") if x.strip())
        t = re.sub(r"^ +", " ", t, flags=re.M)
        txt += t + "\n"
        desc += ".p2align 6\n" + kernel_desc(name, vg, ag)
    return txt + desc
if __name__ == "__main__":
    pass
    txt = build_text(kernels(), LAUNCH)
    out = sys.argv[1] if len(sys.argv) > 1 else "cand.s"
    open(out, "w").write(txt)
    print(len(txt), "bytes ->", out)
```

```python
import re

def v(i, n=1):
    return f"v{i}" if n == 1 else f"v[{i}:{i+n-1}]"
def a(i, n=1):
    return f"a{i}" if n == 1 else f"a[{i}:{i+n-1}]"
def s(i, n=1):
    return f"s{i}" if n == 1 else f"s[{i}:{i+n-1}]"
def u(i, n=1):
    if i < 256:
        assert i + n <= 256, (i, n)
        return v(i, n)
    return a(i - 256, n)

TRANS = ("v_exp_f32", "v_log_f32", "v_rcp_f32", "v_rsq_f32", "v_sqrt_f32", "v_sin_f32", "v_cos_f32",
         "v_rcp_iflag_f32")
_reg_re = re.compile(r"^(-|\|)?([vas])(?:(\d+)|\[(\d+):(\d+)\])\|?$")

def parse_reg(tok):
    tok = tok.strip()
    if tok.startswith("-"):
        tok = tok[1:]
    tok = tok.strip("|")
    if tok == "vcc": return [("s", "vcc_lo"), ("s", "vcc_hi")]
    if tok in ("vcc_lo", "vcc_hi"): return [("s", tok)]
    if tok == "exec": return [("s", "exec_lo"), ("s", "exec_hi")]
    if tok in ("exec_lo", "exec_hi", "m0", "scc"): return [("s", tok)]
    m = re.match(r"^([vas])(\d+)$", tok)
    if m: return [(m.group(1), int(m.group(2)))]
    m = re.match(r"^([vas])\[(\d+):(\d+)\]$", tok)
    if m: return [(m.group(1), i) for i in range(int(m.group(2)), int(m.group(3)) + 1)]
    return []

class Ins:
    __slots__ = ("text", "op", "ops", "mods", "kind", "defs", "uses", "passes", "srcc", "srcab",
                 "label", "target", "nop", "dpp", "wide_store", "sdata")
    def __init__(self, text):
        self.text = text
        self.label = None; self.target = None; self.nop = 0
        self.defs = set(); self.uses = set(); self.passes = 0
        self.srcc = []; self.srcab = set(); self.dpp = False; self.wide_store = False; self.sdata = set()
        t = text.split(";")[0].strip()
        self.op = None; self.kind = None; self.ops = []; self.mods = ""
        if not t: return
        if t.endswith(":"):
            self.label = t[:-1]; return
        if t.startswith("."):
            return
        parts = t.split(None, 1)
        op = parts[0]; self.op = op
        rest = parts[1] if len(parts) > 1 else ""
        ops = []; cur = ""; depth = 0
        for ch in rest:
            if ch in "[(": depth += 1
            if ch in "])": depth -= 1
            if ch == "," and depth == 0:
                ops.append(cur.strip()); cur = ""
            else:
                cur += ch
        if cur.strip(): ops.append(cur.strip())
        mods = ""
        if ops:
            last = ops[-1].split(None, 1)
            ops[-1] = last[0]
            if len(last) > 1: mods = last[1]
        self.ops = ops; self.mods = mods
        self.classify()

    def classify(self):
        op, ops, mods = self.op, self.ops, self.mods
        R = [parse_reg(o) for o in ops]
        flat = lambda L: set(x for l in L for x in l)
        if op.startswith("v_mfma") or op.startswith("v_smfmac"):
            self.kind = "mfma"
            if "32x32" in op: self.passes = 8
            elif "16x16" in op: self.passes = 4
            elif "4x4x4" in op: self.passes = 2
            else: raise ValueError(op)
            if op.endswith("_f32") and "bf16" not in op and "f16" not in op:
                raise ValueError("SGEMM mfma not modelled: " + op)
            self.defs = set(R[0])
            if op.startswith("v_smfmac"):
                self.srcc = list(R[0]); self.srcab = flat(R[1:4])
            else:
                self.srcc = list(R[3]); self.srcab = flat(R[1:3])
            self.uses = set(self.srcc) | self.srcab
        elif op.startswith("v_"):
            self.kind = "valu"
            self.dpp = ("quad_perm" in mods or "row_" in mods or "wave_" in mods or "dpp" in op)
            if op.startswith("v_permlane") and "swap" in op:
                self.defs = flat(R[0:2]); self.uses = flat(R[0:2])
            elif op.startswith("v_cmp"):
                self.defs = set(R[0]); self.uses = flat(R[1:])
            elif op.startswith(("v_add_co", "v_sub_co", "v_addc_co", "v_subb_co", "v_subrev_co")):
                self.defs = flat(R[0:2]); self.uses = flat(R[2:])
            elif op.startswith("v_nop"):
                pass
            else:
                self.defs = set(R[0]); self.uses = flat(R[1:])
                if op.startswith(("v_fmac", "v_mac", "v_dot2c", "v_writelane", "v_pk_fmac")) or "_sdwa" in op or \
                   "op_sel" in mods or op in ("v_cvt_pk_bf16_f32_hi",):
                    self.uses |= set(R[0])
                if self.dpp: self.uses |= set(R[0])
                if op.startswith("v_cndmask") and len(ops) == 3:
                    self.uses |= {("s", "vcc_lo"), ("s", "vcc_hi")}
            self.uses |= {("s", "exec_lo"), ("s", "exec_hi")}
        elif op.startswith(("buffer_", "global_", "flat_")):
            self.kind = "vmem"
            is_store = "store" in op
            is_atomic = "atomic" in op
            lds = re.search(r"\blds\b", mods) is not None or "load_lds" in op
            if op.startswith("buffer_"):
                if lds and not is_store:
                    self.uses = flat(R); self.uses.add(("s", "m0"))
                elif is_store:
                    self.sdata = set(R[0]); self.uses = flat(R)
                elif is_atomic:
                    self.sdata = set(R[0]); self.uses = flat(R)
                    if "sc0" in mods.split(): self.defs = set(R[0][:max(1, len(R[0]) // (2 if "cmpswap" in op else 1))])
                else:
                    self.defs = set(R[0]); self.uses = flat(R[1:])
            else:
                if lds:
                    self.uses = flat(R); self.uses.add(("s", "m0"))
                elif is_store:
                    self.sdata = set(R[1]); self.uses = flat(R)
                elif is_atomic:
                    if "sc0" in mods.split():
                        self.defs = set(R[0]); self.uses = flat(R[1:]); self.sdata = set(R[2])
                    else:
                        self.uses = flat(R); self.sdata = set(R[1])
                else:
                    self.defs = set(R[0]); self.uses = flat(R[1:])
            if is_store and (op.endswith("x4") or op.endswith("x3")): self.wide_store = True
            if is_atomic and "cmpswap_x2" in op: self.wide_store = True
        elif op.startswith("ds_"):
            self.kind = "ds"
            if op.startswith(("ds_read", "ds_bpermute", "ds_permute", "ds_swizzle")):
                self.defs = set(R[0]); self.uses = flat(R[1:])
            elif "_rtn" in op:
                self.defs = set(R[0]); self.uses = flat(R[1:])
            else:
                self.uses = flat(R)
        elif op.startswith("s_"):
            if op.startswith(("s_load", "s_buffer_load", "s_memtime", "s_memrealtime")):
                self.kind = "smem"; self.defs = set(R[0]); self.uses = flat(R[1:])
            elif op == "s_nop":
                self.kind = "nop"; self.nop = int(ops[0], 0) + 1
            elif op.startswith(("s_cbranch", "s_branch")):
                self.kind = "branch"; self.target = ops[0]
            elif op in ("s_endpgm",):
                self.kind = "end"
            elif op.startswith(("s_waitcnt", "s_barrier", "s_setprio", "s_sleep", "s_sethalt")):
                self.kind = "sctl"
            elif op.startswith("s_cmp") or op.startswith("s_bitcmp"):
                self.kind = "salu"; self.uses = flat(R)
            else:
                self.kind = "salu"; self.defs = set(R[0]) if R else set(); self.uses = flat(R[1:])
                if "saveexec" in op: self.defs |= {("s", "exec_lo"), ("s", "exec_hi")}
        else:
            raise ValueError("unknown instruction: " + self.text)

    def states(self):
        if self.kind == "nop": return self.nop
        if self.op is None: return 0
        if self.kind == "mfma" and self.passes >= 4: return 2
        return 1

def vregs(S):
    return {r for r in S if r[0] in "va"}
def sregs(S):
    return {r for r in S if r[0] == "s"}

def need(p, c):
    w = 0
    if p.kind == "valu":
        pv = vregs(p.defs); ps = sregs(p.defs)
        if c.kind == "mfma" and pv & vregs(c.uses): w = max(w, 2)
        if c.kind == "valu":
            if pv & vregs(c.uses):
                if c.dpp: w = max(w, 2)
                if c.op.startswith("v_permlane"): w = max(w, 2)
                if c.op.startswith(("v_readlane", "v_readfirstlane")): w = max(w, 1)
                if p.op.startswith(TRANS) and not c.op.startswith(TRANS): w = max(w, 1)
                if p.op.startswith(TRANS): w = max(w, 1)
                if "op_sel" in p.mods or "dst_sel" in p.mods or "_sdwa" in p.op: w = max(w, 1)
                if p.op.startswith("v_dot"):
                    same_c = (c.op == p.op and not (pv & flat_ab(c)))
                    if not same_c: w = max(w, 3)
            if p.op.startswith("v_dot") and (pv & vregs(c.defs)) and c.op != p.op: w = max(w, 3)
            cs = sregs(c.uses) - {("s", "exec_lo"), ("s", "exec_hi")}
            if ps & cs:
                if c.op.startswith(("v_readlane", "v_writelane")): w = max(w, 4)
                else: w = max(w, 2)
            if ps & {("s", "exec_lo"), ("s", "exec_hi")}:
                if c.dpp: w = max(w, 5)
                if c.op.startswith(("v_readlane", "v_readfirstlane", "v_writelane", "v_permlane")): w = max(w, 4)
        if c.kind in ("vmem", "ds") and p.op.startswith("v_dot") and pv & vregs(c.uses): w = max(w, 3)
        if c.kind in ("vmem", "ds") and p.op.startswith(TRANS) and pv & vregs(c.uses): w = max(w, 1)
        if c.kind == "mfma" and p.op.startswith("v_dot") and pv & vregs(c.uses): w = max(w, 3)
        if c.kind == "vmem" and ps & sregs(c.uses): w = max(w, 5)
        if c.kind == "smem" and ps & sregs(c.uses): w = max(w, 5)
        if c.kind == "mfma" and ps & {("s", "exec_lo"), ("s", "exec_hi")}: w = max(w, 4)
    elif p.kind == "mfma":
        D = p.defs; n = p.passes
        hard = {2: 5, 4: 8, 8: 12}[n]
        if c.kind == "mfma":
            if D & c.srcab: w = max(w, hard)
            if D & set(c.srcc):
                exact = (list(sorted(D, key=str)) == list(sorted(set(c.srcc), key=str))) and c.passes == n
                if exact: w = max(w, 2 if n == 2 else 0)
                else: w = max(w, {2: 4, 4: 6, 8: 10}[n])
            elif D & c.defs:
                w = max(w, {2: 4, 4: 6, 8: 10}[n])
        elif c.kind in ("valu", "vmem", "ds"):
            if D & (vregs(c.uses) | vregs(c.defs)): w = max(w, hard)
        if c.kind == "valu" and set(p.srcc) & vregs(c.defs): w = max(w, {2: 1, 4: 3, 8: 7}[n])
        if c.kind in ("vmem", "ds") and set(p.srcc) & vregs(c.defs): w = max(w, {2: 1, 4: 3, 8: 7}[n])
    elif p.kind == "vmem":
        if p.wide_store and p.sdata & vregs(c.defs):
            w = max(w, 2 if c.kind in ("valu",) else 2)
    elif p.kind == "salu":
        if ("s", "m0") in p.defs and ("s", "m0") in c.uses and c.kind in ("vmem", "ds"): w = max(w, 1)
        if ("s", "m0") in p.defs and c.kind == "vmem" and ("lds" in c.mods.split() or "load_lds" in c.op): w = max(w, 1)
    return w

def flat_ab(c):
    R = [parse_reg(o) for o in c.ops]
    if c.op.startswith("v_dot2c"):
        return set(x for l in R[1:3] for x in l)
    return set(x for l in R[1:3] for x in l)

MAXW = 12

def pad_hazards(lines):
    ins = [Ins(t) for t in lines]
    branches = {}
    for i, x in enumerate(ins):
        if x.kind == "branch": branches.setdefault(x.target, []).append(i)
    def preds(i):
        out = []
        if i > 0:
            p = ins[i - 1]
            if not (p.kind == "end" or (p.kind == "branch" and p.op == "s_branch")):
                out.append(i - 1)
        if ins[i].label: out += branches.get(ins[i].label, [])
        return out
    extra = [0] * len(ins)
    for i, c in enumerate(ins):
        if c.op is None or c.kind in ("nop", "branch", "end", "sctl"): continue
        worst = 0
        stack = [(j, 0, 0) for j in preds(i)]
        seen = {}
        while stack:
            j, d, km = stack.pop()
            if d >= MAXW: continue
            if (j, km) in seen and seen[(j, km)] <= d: continue
            seen[(j, km)] = d
            p = ins[j]
            big = p.kind == "mfma" and p.passes >= 4
            if p.op is not None and p.kind != "nop":
                w = need(p, c)
                de = max(d, 4 * km) if big else d
                if w > de: worst = max(worst, w - de)
            nd = d + p.states() + extra[j]
            for k in preds(j): stack.append((k, nd, min(km + (1 if big else 0), 3)))
        extra[i] = worst
    out = []; total = 0
    for i, c in enumerate(ins):
        n = extra[i]
        total += n
        while n > 0:
            k = min(n, 16)
            out.append(f"  s_nop {k-1}"); n -= k
        out.append(c.text)
    return out, total

class Asm:
    def __init__(self):
        self.L = []
        self._n = 0
    def __call__(self, t, *args):
        for line in t.split("\n"):
            if line.strip(): self.L.append("  " + line.strip() if not line.strip().endswith(":") else line.strip())
    def label(self, name): self.L.append(name + ":")
    def uniq(self, base):
        self._n += 1
        return f"{base}_{self._n}"

def kernel_text(name, body_lines, vgpr=256, agpr=0, sgpr=102, pad=True):
    added = 0
    if pad:
        body_lines, added = pad_hazards(body_lines)
    txt = f".text\n.globl {name}\n.p2align 8\n.type {name},@function\n{name}:\n" + "\n".join(body_lines) + "\n"
    return txt, added

def kernel_desc(name, vgpr=256, agpr=0, sgpr=102, kernarg=104, wgy=False):
    acc = (vgpr + 3) // 4 * 4
    tot = acc + agpr if agpr else vgpr
    t = f""".amdhsa_kernel {name}
  .amdhsa_next_free_vgpr {tot}
  .amdhsa_next_free_sgpr {sgpr}
  .amdhsa_accum_offset {acc}
  .amdhsa_group_segment_fixed_size 0
  .amdhsa_kernarg_size {kernarg}
  .amdhsa_user_sgpr_count 2
  .amdhsa_user_sgpr_kernarg_segment_ptr 1
  .amdhsa_system_sgpr_workgroup_id_x 1
"""
    if wgy: t += "  .amdhsa_system_sgpr_workgroup_id_y 1\n"
    t += ".end_amdhsa_kernel\n"
    return t


STAMPS = [False]
def ts(A, i):
    if STAMPS[0]: A(f"s_memrealtime s[{64+2*i}:{65+2*i}]")
```

```python
from asm import *
import layout as L
from ka import entry, srd, sel_ptr, S_WS, S_WAVE, S_LAYER, S_T

def dpp_allred8(A, op, x, t):
    A(f"{op} v{x}, v{x}, v{x} quad_perm:[1,0,3,2] row_mask:0xf bank_mask:0xf")
    A(f"{op} v{x}, v{x}, v{x} quad_perm:[2,3,0,1] row_mask:0xf bank_mask:0xf")
    A(f"{op} v{x}, v{x}, v{x} row_half_mirror row_mask:0xf bank_mask:0xf")

def ln_load(A, S_SRC, s_seg, RAW, VA, LANE):
    A(f"""
    s_lshl_b32 s{S_T}, s{s_seg}, 5
    s_lshl_b32 s{S_T+1}, s{S_WAVE}, 3
    s_add_u32 s{S_T}, s{S_T}, s{S_T+1}
    v_lshrrev_b32 v{VA}, 3, v{LANE}
    v_add_u32 v{VA}, s{S_T}, v{VA}
    v_mul_u32_u24 v{VA}, 896, v{VA}
    v_and_b32 v{VA+1}, 7, v{LANE}
    v_lshl_add_u32 v{VA}, v{VA+1}, 4, v{VA}
    """)
    for j in range(7):
        A(f"buffer_load_dwordx4 {v(RAW+4*j,4)}, v{VA}, s[{S_SRC}:{S_SRC+3}], 0 offen offset:{128*j}")

def ln_to_lds(A, RAW, XF, T, LANE, base):
    for i in range(28):
        A(f"v_lshlrev_b32 v{XF+2*i}, 16, v{RAW+i}\nv_and_b32 v{XF+2*i+1}, 0xffff0000, v{RAW+i}")
    A(f"v_pk_add_f32 {v(T,2)}, {v(XF,2)}, {v(XF+2,2)}\nv_pk_add_f32 {v(T+2,2)}, {v(XF+4,2)}, {v(XF+6,2)}")
    for i in range(4, 28, 2):
        A(f"v_pk_add_f32 {v(T,2)}, {v(T,2)}, {v(XF+2*i,2)}\nv_pk_add_f32 {v(T+2,2)}, {v(T+2,2)}, {v(XF+2*i+2,2)}")
    A(f"v_pk_add_f32 {v(T,2)}, {v(T,2)}, {v(T+2,2)}\nv_add_f32 v{T}, v{T}, v{T+1}")
    dpp_allred8(A, "v_add_f32", T, T + 1)
    A(f"v_mul_f32 v{T}, {hex(np_f(-1.0/448))}, v{T}\nv_mov_b32 v{T+1}, v{T}")
    for i in range(28):
        A(f"v_pk_add_f32 {v(XF+2*i,2)}, {v(XF+2*i,2)}, {v(T,2)}")
    A(f"v_pk_mul_f32 {v(T+2,2)}, {v(XF,2)}, {v(XF,2)}\nv_pk_mul_f32 {v(T+4,2)}, {v(XF+2,2)}, {v(XF+2,2)}")
    for i in range(2, 28, 2):
        A(f"v_pk_fma_f32 {v(T+2,2)}, {v(XF+2*i,2)}, {v(XF+2*i,2)}, {v(T+2,2)}")
        A(f"v_pk_fma_f32 {v(T+4,2)}, {v(XF+2*i+2,2)}, {v(XF+2*i+2,2)}, {v(T+4,2)}")
    A(f"v_pk_add_f32 {v(T+2,2)}, {v(T+2,2)}, {v(T+4,2)}\nv_add_f32 v{T}, v{T+2}, v{T+3}")
    dpp_allred8(A, "v_add_f32", T, T + 1)
    A(f"""
    v_mov_b32 v{T+1}, {hex(np_f(1e-5))}
    v_fmac_f32 v{T+1}, {hex(np_f(1.0/448))}, v{T}
    v_rsq_f32 v{T}, v{T+1}
    s_nop 0
    v_mov_b32 v{T+1}, v{T}
    """)
    for i in range(28):
        A(f"v_pk_mul_f32 {v(XF+2*i,2)}, {v(XF+2*i,2)}, {v(T,2)}")
    for i in range(28):
        A(f"v_cvt_pk_bf16_f32 v{RAW+i}, v{XF+2*i}, v{XF+2*i+1}")
    A(f"""
    v_and_b32 v{T}, 7, v{LANE}                 ; sub
    v_bfe_u32 v{T+1}, v{LANE}, 3, 2            ; i8 & 3
    s_lshl_b32 s{S_T}, s{S_WAVE}, 2
    v_add_u32 v{T+1}, s{S_T}, v{T+1}           ; m
    v_xor_b32 v{T+1}, v{T+1}, v{T}
    v_lshlrev_b32 v{T+1}, 4, v{T+1}
    v_and_b32 v{T+2}, 3, v{T}
    v_lshl_add_u32 v{T+1}, v{T+2}, 8, v{T+1}
    v_lshrrev_b32 v{T+2}, 2, v{T}
    v_lshl_add_u32 v{T+1}, v{T+2}, 10, v{T+1}
    v_lshrrev_b32 v{T+2}, 5, v{LANE}           ; nu
    v_mul_u32_u24 v{T+2}, 14336, v{T+2}
    v_add_u32 v{T+1}, v{T+1}, v{T+2}
    """)
    for j in range(7):
        A(f"ds_write_b128 v{T+1}, {v(RAW+4*j,4)} offset:{base+2048*j}")

def a_addr(A, RA, LANE, T):
    A(f"""
    v_and_b32 v{T}, 15, v{LANE}
    v_lshrrev_b32 v{T+1}, 4, v{LANE}
    v_xor_b32 v{T}, v{T}, v{T+1}
    v_lshlrev_b32 v{T+2}, 4, v{T}
    v_lshl_add_u32 v{RA}, v{T+1}, 8, v{T+2}
    v_xor_b32 v{RA+1}, 64, v{RA}
    """)

import struct
def np_f(x): return struct.unpack("<I", struct.pack("<f", x))[0]

def gen_kb1(name):
    A = Asm()
    entry(A, name, 256)
    S_SRC = 16; S_F = 20; S_O = 24; S_S = 28; S_Q = 29
    sel_ptr(A, S_SRC, S_LAYER, None, L.X1, L.X3, L.XB, S_T)
    srd(A, S_F, S_WS, L.FI, 28 * 14 * 1024)
    srd(A, S_O, S_WS, L.ZF, 448 * 4096)
    LANE = 1; LR = 2; VA = 3; RA = 5; FA = 7; OA = 8; T = 10
    RAW = 16; XF = 44; AF = 100; AC = 116
    def FU(t, kb): return a(4 * (kb * 2 + t), 4)
    A(f"""
    s_lshr_b32 s{S_S}, s2, 2
    s_and_b32 s{S_Q}, s2, 3
    v_and_b32 v{LANE}, 63, v0
    v_lshlrev_b32 v{LR}, 4, v{LANE}
    """)
    ln_load(A, S_SRC, S_S, RAW, VA, LANE)
    A(f"""
    s_mul_i32 s{S_T}, s{S_Q}, 7
    s_lshl_b32 s{S_T+1}, s{S_WAVE}, 1
    s_add_u32 s{S_T}, s{S_T}, s{S_T+1}
    s_mul_i32 s{S_T+1}, s{S_T}, 14336
    v_add_u32 v{FA}, s{S_T+1}, v{LR}
    v_add_u32 v{FA+1}, 14336, v{FA}
    """)
    A(f"""
    v_and_b32 v{T}, 15, v{LANE}
    s_lshl_b32 s{S_T}, s{S_T}, 4
    v_add_u32 v{T}, s{S_T}, v{T}
    v_lshlrev_b32 v{T}, 12, v{T}
    v_lshrrev_b32 v{T+1}, 4, v{LANE}
    v_lshl_add_u32 v{T}, v{T+1}, 4, v{T}
    s_lshl_b32 s{S_T+1}, s{S_S}, 6
    """)
    for kb in range(14):
        if kb % 4 == 0: A(f"s_mov_b32 s{S_T+2}, {kb*1024}")
        for t in range(2):
            A(f"buffer_load_dwordx4 {FU(t,kb)}, v{FA+t}, s[{S_F}:{S_F+3}], s{S_T+2} offen offset:{(kb%4)*1024}")
    A(f"""
    v_add_u32 v{FA}, s{S_T+1}, v{T}
    v_add_u32 v{FA+1}, 65536, v{FA}
    v_mov_b32 v{T}, 0x40000000
    s_cmp_eq_u32 s{S_WAVE}, 3
    s_cselect_b64 vcc, -1, 0
    v_cndmask_b32 v{FA+1}, v{FA+1}, v{T}, vcc
    s_waitcnt vmcnt(28)
    """)
    ln_to_lds(A, RAW, XF, T, LANE, 0)
    a_addr(A, RA, LANE, T)
    A("s_waitcnt lgkmcnt(0)\ns_barrier")
    def rd(kb):
        for nu in range(2):
            A(f"ds_read_b128 {v(AF+8*(kb&1)+4*nu,4)}, v{RA+(kb&1)} offset:{(nu*14+kb)*1024}")
    rd(0); rd(1)
    for kb in range(14):
        A(f"s_waitcnt vmcnt({26-2*kb}) lgkmcnt({2 if kb < 13 else 0})")
        for t in range(2):
            for nu in range(2):
                d = v(AC + 8 * t + 4 * nu, 4)
                A(f"v_mfma_f32_16x16x32_bf16 {d}, {v(AF+8*(kb&1)+4*nu,4)}, {FU(t,kb)}, {d if kb else 0}")
        if kb + 2 < 14: rd(kb + 2)
    for t in range(2):
        d = AC + 8 * t
        A(f"""
        v_cvt_pk_bf16_f32 v{d}, v{d}, v{d+1}
        v_cvt_pk_bf16_f32 v{d+1}, v{d+2}, v{d+3}
        v_cvt_pk_bf16_f32 v{d+2}, v{d+4}, v{d+5}
        v_cvt_pk_bf16_f32 v{d+3}, v{d+6}, v{d+7}
        buffer_store_dwordx4 {v(d,4)}, v{FA+t}, s[{S_O}:{S_O+3}], 0 offen
        """)
    A("s_waitcnt vmcnt(0)")
    A.label(f"{name}_end")
    A("s_endpgm")
    return A.L

def MF(d, a_, b_, c): return f"v_mfma_f32_16x16x32_bf16 {v(d,4)}, {v(a_,4)}, {v(b_,4)}, {v(c,4) if c is not None else 0}"

def trig_frag(A, idx0, step, n, mask, scale, R, I, NI, T):
    for j in range(0, 8, 2):
        for e in range(2):
            A(f"""
            v_and_b32 v{T+e}, {mask}, v{idx0}
            v_add_u32 v{idx0}, v{idx0}, v{step}
            v_cvt_f32_u32 v{T+e}, v{T+e}
            v_mul_f32 v{T+e}, {hex(np_f(scale))}, v{T+e}
            v_cos_f32 v{T+2+e}, v{T+e}
            v_sin_f32 v{T+4+e}, v{T+e}
            """)
        A(f"""
        s_nop 0
        v_cvt_pk_bf16_f32 v{R+j//2}, v{T+2}, v{T+3}
        v_cvt_pk_bf16_f32 v{I+j//2}, -v{T+4}, -v{T+5}
        v_cvt_pk_bf16_f32 v{NI+j//2}, v{T+4}, v{T+5}
        """)

def gen_kb2(name):
    A = Asm()
    entry(A, name, 225)
    S_IN = 16; S_OUT = 20; S_WT = 24
    srd(A, S_IN, S_WS, L.ZF, 448 * 4096)
    srd(A, S_OUT, S_WS, L.ZI, 448 * 4096)
    srd(A, S_WT, S_WS, L.WT, 225 * 8192)
    LANE = 1; LR = 2; VR = 3; VI = 4; TA = 5; XA = 6; N = 7; G = 8; K1 = 9; T = 10
    FR = 16; FI = 24; NF = 32
    GR = 40; GI = 48; NG = 56
    TC = 64; TS = 72
    DA = 80
    DR = 112; DI = 120
    BR = 128; BI = 132
    WT = 136
    LD = 144
    U = 152
    A(f"""
    v_and_b32 v{LANE}, 63, v0
    v_lshlrev_b32 v{LR}, 4, v{LANE}
    s_lshl_b32 s{S_T}, s2, 12
    s_lshl_b32 s{S_T+1}, s{S_WAVE}, 10
    s_add_u32 s{S_T}, s{S_T}, s{S_T+1}
    v_add_u32 v{VR}, s{S_T}, v{LR}
    v_add_u32 v{VI}, {224*4096}, v{VR}
    v_mov_b32 v{T}, 0x40000000
    s_cmp_eq_u32 s2, 0
    s_cselect_b64 vcc, -1, 0
    s_cmp_eq_u32 s2, 224
    s_cselect_b64 s[{S_T+2}:{S_T+3}], -1, 0
    s_or_b64 vcc, vcc, s[{S_T+2}:{S_T+3}]
    v_cndmask_b32 v{VI}, v{VI}, v{T}, vcc
    buffer_load_dwordx4 {v(LD,4)}, v{VR}, s[{S_IN}:{S_IN+3}], 0 offen
    buffer_load_dwordx4 {v(LD+4,4)}, v{VI}, s[{S_IN}:{S_IN+3}], 0 offen
    ; filter
    s_lshl_b32 s{S_T}, s2, 13
    s_lshl_b32 s{S_T+1}, s{S_WAVE}, 11
    s_add_u32 s{S_T}, s{S_T}, s{S_T+1}
    v_lshlrev_b32 v{T}, 5, v{LANE}
    buffer_load_dwordx4 {v(WT,4)}, v{T}, s[{S_WT}:{S_WT+3}], s{S_T} offen
    buffer_load_dwordx4 {v(WT+4,4)}, v{T}, s[{S_WT}:{S_WT+3}], s{S_T} offen offset:16
    v_and_b32 v{N}, 15, v{LANE}
    v_lshrrev_b32 v{G}, 4, v{LANE}
    s_lshl_b32 s{S_T}, s{S_WAVE}, 4
    v_add_u32 v{K1}, s{S_T}, v{N}                 ; k1 = 16 w + n
    v_lshrrev_b32 v{T}, 2, v{N}
    v_lshl_add_u32 v{T}, v{G}, 3, v{T}
    v_lshlrev_b32 v{T}, 6, v{T}
    v_and_b32 v{T+1}, 3, v{N}
    v_lshl_add_u32 v{TA}, v{T+1}, 4, v{T}
    v_lshlrev_b32 v{T}, 6, v{K1}
    v_lshl_add_u32 v{T}, v{G}, 4, v{T}
    v_add_u32 v{XA}, 8192, v{T}
    """)
    A(f"v_lshlrev_b32 v{U}, 3, v{G}\nv_mul_u32_u24 v{U}, v{U}, v{K1}")
    for kap in range(2):
        trig_frag(A, U, K1, 8, 63, 1.0 / 64, FR + 4 * kap, FI + 4 * kap, NF + 4 * kap, T)
        if kap == 0: A(f"v_mul_u32_u24 v{U+1}, 24, v{K1}\nv_add_u32 v{U}, v{U}, v{U+1}")
    A(f"""
    s_lshl_b32 s{S_T}, s{S_WAVE}, 10
    v_add_u32 v{U+2}, s{S_T}, v{LR}
    s_waitcnt vmcnt(2)
    ds_write_b128 v{U+2}, {v(LD,4)}
    ds_write_b128 v{U+2}, {v(LD+4,4)} offset:4096
    """)
    for mu in range(2):
        A(f"""
        v_lshrrev_b32 v{U+1}, 2, v{N}
        v_lshlrev_b32 v{U+1}, 3, v{U+1}
        v_and_b32 v{U}, 3, v{N}
        v_add_u32 v{U+1}, v{U+1}, v{U}
        v_add_u32 v{U+1}, {4*mu}, v{U+1}           ; rho
        v_lshlrev_b32 v{U}, 3, v{G}
        v_mul_u32_u24 v{U}, v{U}, v{U+1}
        """)
        trig_frag(A, U, U + 1, 8, 31, 1.0 / 32, GR + 4 * mu, GI + 4 * mu, NG + 4 * mu, T)
    A("s_waitcnt lgkmcnt(0)\ns_barrier")
    def data_reads(base):
        for c in range(2):
            for mu in range(2):
                for kap in range(2):
                    for jh in range(2):
                        r = DA + 16 * c + 8 * mu + 4 * kap + 2 * jh
                        A(f"ds_read_b64_tr_b16 {v(r,2)}, v{TA} offset:{base+4096*c+2048*kap+256*jh+8*mu}")
    data_reads(0)
    A(f"v_lshlrev_b32 v{U}, 3, v{G}\nv_mul_u32_u24 v{U}, v{U}, v{K1}")
    for j in range(8):
        A(f"""
        v_cvt_f32_u32 v{T}, v{U}
        v_add_u32 v{U}, v{U}, v{K1}
        v_mul_f32 v{T}, {hex(np_f(1.0/2048))}, v{T}
        v_cos_f32 v{TC+j}, v{T}
        v_sin_f32 v{TS+j}, v{T}
        """)
    def da(c, mu, kap): return DA + 16 * c + 8 * mu + 4 * kap
    def stage64(s1, s2, s3, s4):
        for mu in range(2):
            for kap in range(2):
                A(MF(DR + 4 * mu, da(0, mu, kap), s1 + 4 * kap, DR + 4 * mu if kap else None))
                A(MF(DI + 4 * mu, da(0, mu, kap), s3 + 4 * kap, DI + 4 * mu if kap else None))
        for mu in range(2):
            for kap in range(2):
                A(MF(DR + 4 * mu, da(1, mu, kap), s2 + 4 * kap, DR + 4 * mu))
                A(MF(DI + 4 * mu, da(1, mu, kap), s4 + 4 * kap, DI + 4 * mu))
    def cmul(cs, sn, sign):
        for j in range(8):
            r, i_ = DR + j, DI + j
            A(f"v_mul_f32 v{U+j}, v{r}, v{cs(j)}\nv_mul_f32 v{U+8+j}, v{i_}, v{cs(j)}")
        for j in range(8):
            r, i_ = DR + j, DI + j
            if sign > 0: A(f"v_fma_f32 v{U+j}, -v{i_}, v{sn(j)}, v{U+j}\nv_fma_f32 v{U+8+j}, v{r}, v{sn(j)}, v{U+8+j}")
            else:        A(f"v_fma_f32 v{U+j}, v{i_}, v{sn(j)}, v{U+j}\nv_fma_f32 v{U+8+j}, -v{r}, v{sn(j)}, v{U+8+j}")
        for p in range(4):
            A(f"v_cvt_pk_bf16_f32 v{BR+p}, v{U+2*p}, v{U+2*p+1}\nv_cvt_pk_bf16_f32 v{BI+p}, v{U+8+2*p}, v{U+8+2*p+1}")
    def stage32(s1, s2, s3, s4):
        for mu in range(2):
            A(MF(DR + 4 * mu, s1 + 4 * mu, BR, None)); A(MF(DI + 4 * mu, s3 + 4 * mu, BR, None))
        for mu in range(2):
            A(MF(DR + 4 * mu, s2 + 4 * mu, BI, DR + 4 * mu)); A(MF(DI + 4 * mu, s4 + 4 * mu, BI, DI + 4 * mu))
    A("s_waitcnt lgkmcnt(0)")
    stage64(FR, NF, FI, FR)
    cmul(lambda j: TC + j, lambda j: TS + j, -1)
    stage32(GR, NG, GI, GR)
    A("s_waitcnt vmcnt(0)")
    WR = DA; WI = DA + 8
    for j in range(8):
        A(f"v_lshlrev_b32 v{WR+j}, 16, v{WT+j}\nv_and_b32 v{WI+j}, 0xffff0000, v{WT+j}")
    cmul(lambda j: WR + j, lambda j: WI + j, +1)
    stage32(GR, GI, NG, GR)
    cmul(lambda j: TC + j, lambda j: TS + j, +1)
    A(f"""
    ds_write_b128 v{XA}, {v(BR,4)}
    ds_write_b128 v{XA}, {v(BI,4)} offset:4096
    s_waitcnt lgkmcnt(0)
    s_barrier
    """)
    data_reads(8192)
    A("s_waitcnt lgkmcnt(0)")
    stage64(FR, FI, NF, FR)
    A(f"""
    v_lshlrev_b32 v{T}, 6, v{K1}
    v_lshl_add_u32 v{T}, v{G}, 4, v{T}
    s_lshl_b32 s{S_T}, s2, 12
    v_add_u32 v{VR}, s{S_T}, v{T}
    v_add_u32 v{T+1}, {224*4096}, v{VR}
    v_cmp_eq_u32 vcc, 0x40000000, v{VI}
    v_cndmask_b32 v{VI}, v{T+1}, v{VI}, vcc
    """)
    for p in range(4):
        A(f"v_cvt_pk_bf16_f32 v{BR+p}, v{DR+2*p}, v{DR+2*p+1}\nv_cvt_pk_bf16_f32 v{BI+p}, v{DI+2*p}, v{DI+2*p+1}")
    A(f"""
    buffer_store_dwordx4 {v(BR,4)}, v{VR}, s[{S_OUT}:{S_OUT+3}], 0 offen
    buffer_store_dwordx4 {v(BI,4)}, v{VI}, s[{S_OUT}:{S_OUT+3}], 0 offen
    s_waitcnt vmcnt(0)
    """)
    A.label(f"{name}_end")
    A("s_endpgm")
    return A.L

import ka
def allred_g(A, op, x, t):
    A(f"""
    v_mov_b32 v{t}, v{x}
    v_permlane16_swap_b32 v{x}, v{t}
    {op} v{x}, v{x}, v{t}
    v_mov_b32 v{t}, v{x}
    v_permlane32_swap_b32 v{x}, v{t}
    {op} v{x}, v{x}, v{t}
    """)

def gen_kb3(name):
    A = Asm()
    entry(A, name, 64)
    S_G = 16; S_Z = 20; S_IN = 24; S_OUT = 28; S_XI = 32; S_B = 36; S_H = 37; S_MU = 38
    srd(A, S_G, S_WS, L.GI, 28 * 14 * 1024)
    srd(A, S_Z, S_WS, L.ZI, 448 * 4096)
    sel_ptr(A, S_IN, S_LAYER, None, L.X1, L.X3, L.XB, S_T)
    A(f"""
    s_load_dwordx2 s[{S_T}:{S_T+1}], s[0:1], 80
    s_add_u32 s{S_OUT}, s{S_WS}, {L.X2}
    s_addc_u32 s{S_OUT+1}, s{S_WS+1}, 0
    s_waitcnt lgkmcnt(0)
    s_cmp_eq_u32 s{S_LAYER}, 0
    s_cselect_b32 s{S_OUT}, s{S_OUT}, s{S_T}
    s_cselect_b32 s{S_OUT+1}, s{S_OUT+1}, s{S_T+1}
    s_mov_b32 s{S_OUT+2}, {L.XB}
    s_mov_b32 s{S_OUT+3}, 0x20000
    """)
    srd(A, S_XI, S_WS, L.XI + L.LS, L.XB)
    LANE = 1; LR = 2; TA = 3; RA = 4; RH = 6; ZA = 8; N = 9; G = 10; T = 11
    BF = 16; RES = [32, 104]; ACC = ka.ACC; acc = ka.acc; Wu3 = lambda sl, kb: (a(4 * (kb * 7 + sl), 4) if kb * 7 + sl < 64 else v(120 + 4 * (kb * 7 + sl - 64), 4))
    A(f"""
    v_and_b32 v{LANE}, 63, v0
    v_lshlrev_b32 v{LR}, 4, v{LANE}
    v_and_b32 v{N}, 15, v{LANE}
    v_lshrrev_b32 v{G}, 4, v{LANE}
    v_lshrrev_b32 v{T}, 2, v{LANE}
    s_mul_i32 s{S_T}, s{S_WAVE}, 112
    v_add_u32 v{T}, s{S_T}, v{T}
    v_lshlrev_b32 v{T}, 12, v{T}
    v_and_b32 v{T+1}, 3, v{LANE}
    v_lshl_add_u32 v{T}, v{T+1}, 4, v{T}
    s_lshl_b32 s{S_T}, s2, 6
    v_add_u32 v{ZA}, s{S_T}, v{T}
    s_mul_i32 s{S_T}, s{S_WAVE}, 7168
    """)
    for i in range(7):
        A(f"s_mov_b32 m0, s{S_T}\ns_add_u32 s{S_T}, s{S_T}, 1024")
        A(f"buffer_load_dwordx4 v{ZA}, s[{S_Z}:{S_Z+3}], 0 offen lds")
        if i < 6: A(f"v_add_u32 v{ZA}, 65536, v{ZA}")
    A(f"""
    s_mul_i32 s{S_B}, s{S_WAVE}, 7
    s_add_u32 s{S_B}, s{S_B}, 1
    s_lshr_b32 s{S_B}, s{S_B}, 1               ; [0,4,7,11]
    s_lshr_b32 s{S_H}, s{S_WAVE}, 1
    s_mul_i32 s{S_H}, s{S_H}, 7
    s_add_u32 s{S_H}, s{S_H}, 3                ; [3,3,10,10]
    s_and_b32 s{S_T+2}, s{S_WAVE}, 1
    v_lshrrev_b32 v{T}, 2, v{N}
    v_lshlrev_b32 v{T}, 3, v{T}
    v_and_b32 v{T+1}, 3, v{N}
    v_add_u32 v{T}, v{T}, v{T+1}
    s_lshl_b32 s{S_T}, s2, 5
    v_add_u32 v{T}, s{S_T}, v{T}
    v_mul_u32_u24 v{T}, 896, v{T}
    v_lshl_add_u32 v{T}, v{G}, 4, v{T}
    s_lshl_b32 s{S_T}, s{S_B}, 6
    v_add_u32 v{RA}, s{S_T}, v{T}
    v_add_u32 v{RA+1}, {4*896}, v{RA}
    s_lshl_b32 s{S_T}, s{S_H}, 6
    s_lshl_b32 s{S_T+1}, s{S_T+2}, 3
    s_add_u32 s{S_T}, s{S_T}, s{S_T+1}
    v_add_u32 v{RH}, s{S_T}, v{T}
    v_add_u32 v{RH+1}, {4*896}, v{RH}
    """)
    for nu in range(2):
        for b in range(3):
            A(f"buffer_load_dwordx4 {v(RES[nu]+4*b,4)}, v{RA+nu}, s[{S_IN}:{S_IN+3}], 0 offen offset:{64*b}")
        A(f"buffer_load_dwordx2 {v(RES[nu]+12,2)}, v{RH+nu}, s[{S_IN}:{S_IN+3}], 0 offen")
    A(f"""
    s_mul_i32 s{S_T}, s{S_B}, {2*14336}
    s_mul_i32 s{S_T+1}, s{S_H}, 2
    s_add_u32 s{S_T+1}, s{S_T+1}, s{S_T+2}
    s_mul_i32 s{S_T+1}, s{S_T+1}, 14336
    """)
    VA = ACC
    for i in range(6): A(f"s_add_u32 s{S_T+3}, s{S_T}, {i*14336}\nv_add_u32 v{VA+i}, s{S_T+3}, v{LR}")
    A(f"v_add_u32 v{VA+6}, s{S_T+1}, v{LR}")
    for kb in range(14):
        if kb % 4 == 0: A(f"s_mov_b32 s{S_T+4}, {kb*1024}")
        for sl in range(7):
            A(f"buffer_load_dwordx4 {Wu3(sl,kb)}, v{VA+sl}, s[{S_G}:{S_G+3}], s{S_T+4} offen offset:{(kb%4)*1024}")
    A(f"""
    v_lshrrev_b32 v{T}, 2, v{N}
    v_lshl_add_u32 v{T}, v{G}, 3, v{T}
    v_lshlrev_b32 v{T}, 6, v{T}
    v_and_b32 v{T+1}, 3, v{N}
    v_lshl_add_u32 v{TA}, v{T+1}, 4, v{T}
    s_waitcnt vmcnt(63)
    s_barrier
    """)
    def rd(kb):
        for nu in range(2):
            for jh in range(2):
                A(f"ds_read_b64_tr_b16 {v(BF+8*(kb&1)+4*nu+2*jh,2)}, v{TA} offset:{2048*kb+256*jh+8*nu}")
    rd(0); rd(1)
    for kb in range(14):
        left = 98 - 7 * (kb + 1)
        A(f"s_waitcnt vmcnt({min(left,63)}) lgkmcnt({4 if kb < 13 else 0})")
        for sl in range(7):
            for nu in range(2):
                d = v(acc(sl, nu), 4)
                A(f"v_mfma_f32_16x16x32_bf16 {d}, {Wu3(sl,kb)}, {v(BF+8*(kb&1)+4*nu,4)}, {d if kb else 0}")
        if kb + 2 < 14: rd(kb + 2)
    TM = 120
    for nu in range(2):
        for sl in range(7):
            d = acc(sl, nu)
            r = RES[nu] + (4 * (sl >> 1) + 2 * (sl & 1) if sl < 6 else 12)
            A(f"""
            v_lshlrev_b32 v{TM}, 16, v{r}
            v_and_b32 v{TM+1}, 0xffff0000, v{r}
            v_lshlrev_b32 v{TM+2}, 16, v{r+1}
            v_and_b32 v{TM+3}, 0xffff0000, v{r+1}
            v_pk_add_f32 {v(d,2)}, {v(d,2)}, {v(TM,2)}
            v_pk_add_f32 {v(d+2,2)}, {v(d+2,2)}, {v(TM+2,2)}
            v_cvt_pk_bf16_f32 v{r}, v{d}, v{d+1}
            v_cvt_pk_bf16_f32 v{r+1}, v{d+2}, v{d+3}
            """)
        for b in range(3):
            A(f"buffer_store_dwordx4 {v(RES[nu]+4*b,4)}, v{RA+nu}, s[{S_OUT}:{S_OUT+3}], 0 offen offset:{64*b}")
        A(f"buffer_store_dwordx2 {v(RES[nu]+12,2)}, v{RH+nu}, s[{S_OUT}:{S_OUT+3}], 0 offen")
    A(f"s_cmp_lg_u32 s{S_LAYER}, 0\ns_cbranch_scc1 {name}_fin")
    ST = 124
    for nu in range(2):
        for sl in range(7):
            d = acc(sl, nu)
            r = RES[nu] + (4 * (sl >> 1) + 2 * (sl & 1) if sl < 6 else 12)
            A(f"""
            v_lshlrev_b32 v{d}, 16, v{r}
            v_and_b32 v{d+1}, 0xffff0000, v{r}
            v_lshlrev_b32 v{d+2}, 16, v{r+1}
            v_and_b32 v{d+3}, 0xffff0000, v{r+1}
            """)
        pr = [acc(sl, nu) + 2 * h for sl in range(7) for h in range(2)]
        A(f"v_pk_add_f32 {v(TM,2)}, {v(pr[0],2)}, {v(pr[1],2)}")
        for p in pr[2:]: A(f"v_pk_add_f32 {v(TM,2)}, {v(TM,2)}, {v(p,2)}")
        m = ST + 2 * nu
        A(f"v_add_f32 v{m}, v{TM}, v{TM+1}")
        allred_g(A, "v_add_f32", m, TM)
        A(f"v_mul_f32 v{m}, {hex(np_f(1.0/112))}, v{m}\nv_sub_f32 v{TM+2}, 0, v{m}\nv_mov_b32 v{TM+3}, v{TM+2}")
        A(f"v_pk_add_f32 {v(TM+4 if False else TM,2)}, {v(pr[0],2)}, {v(TM+2,2)}\nv_pk_mul_f32 {v(ST+4,2)}, {v(TM,2)}, {v(TM,2)}")
        for p in pr[1:]:
            A(f"v_pk_add_f32 {v(TM,2)}, {v(p,2)}, {v(TM+2,2)}\nv_pk_fma_f32 {v(ST+4,2)}, {v(TM,2)}, {v(TM,2)}, {v(ST+4,2)}")
        A(f"v_add_f32 v{m+1}, v{ST+4}, v{ST+5}")
        allred_g(A, "v_add_f32", m + 1, TM)
    A(f"""
    s_lshl_b32 s{S_T}, s{S_WAVE}, 8
    s_add_u32 s{S_T}, s{S_T}, 32768
    v_lshlrev_b32 v{TM}, 3, v{N}
    v_add_u32 v{TM+1}, s{S_T}, v{TM}
    ds_write_b64 v{TM+1}, {v(ST,2)}
    ds_write_b64 v{TM+1}, {v(ST+2,2)} offset:128
    v_add_u32 v{TM}, 32768, v{TM}
    s_waitcnt lgkmcnt(0)
    s_barrier
    """)
    E = 132
    for nu in range(2):
        for w in range(4):
            A(f"ds_read_b64 {v(E+8*nu+2*w,2)}, v{TM} offset:{256*w+128*nu}")
    A("s_waitcnt lgkmcnt(0)")
    for nu in range(2):
        e = E + 8 * nu; m = ST + 2 * nu
        A(f"""
        v_add_f32 v{TM+2}, v{e}, v{e+2}
        v_add_f32 v{TM+3}, v{e+4}, v{e+6}
        v_add_f32 v{TM+2}, v{TM+2}, v{TM+3}
        v_mul_f32 v{m}, 0.25, v{TM+2}               ; mean
        v_add_f32 v{TM+2}, v{e+1}, v{e+3}
        v_add_f32 v{TM+3}, v{e+5}, v{e+7}
        v_add_f32 v{m+1}, v{TM+2}, v{TM+3}
        v_mov_b32 v{TM+3}, 0
        """)
        for w in range(4):
            A(f"v_sub_f32 v{TM+2}, v{e+2*w}, v{m}\nv_fmac_f32 v{TM+3}, v{TM+2}, v{TM+2}")
        A(f"""
        v_fmac_f32 v{m+1}, {hex(np_f(112.0))}, v{TM+3}
        v_mov_b32 v{TM+2}, {hex(np_f(1e-5))}
        v_fmac_f32 v{TM+2}, {hex(np_f(1.0/448))}, v{m+1}
        v_rsq_f32 v{TM+2}, v{TM+2}
        s_nop 0
        v_mov_b32 v{TM+3}, v{TM+2}
        v_sub_f32 v{TM+4}, 0, v{m}
        v_mov_b32 v{TM+5}, v{TM+4}
        """)
        for sl in range(7):
            d = acc(sl, nu)
            r = RES[nu] + (4 * (sl >> 1) + 2 * (sl & 1) if sl < 6 else 12)
            A(f"""
            v_pk_add_f32 {v(d,2)}, {v(d,2)}, {v(TM+4,2)}
            v_pk_add_f32 {v(d+2,2)}, {v(d+2,2)}, {v(TM+4,2)}
            v_pk_mul_f32 {v(d,2)}, {v(d,2)}, {v(TM+2,2)}
            v_pk_mul_f32 {v(d+2,2)}, {v(d+2,2)}, {v(TM+2,2)}
            v_cvt_pk_bf16_f32 v{r}, v{d}, v{d+1}
            v_cvt_pk_bf16_f32 v{r+1}, v{d+2}, v{d+3}
            """)
    A(f"""
    s_mul_i32 s{S_T}, s2, 28672
    s_lshl_b32 s{S_T+1}, s{S_B}, 10
    s_add_u32 s{S_T+1}, s{S_T+1}, s{S_T}
    v_add_u32 v{TM}, s{S_T+1}, v{LR}
    v_add_u32 v{TM+1}, 14336, v{TM}
    s_lshl_b32 s{S_T+1}, s{S_H}, 10
    s_add_u32 s{S_T+1}, s{S_T+1}, s{S_T}
    s_and_b32 s{S_T+2}, s{S_WAVE}, 1
    s_lshl_b32 s{S_T+2}, s{S_T+2}, 3
    s_add_u32 s{S_T+1}, s{S_T+1}, s{S_T+2}
    v_add_u32 v{TM+2}, s{S_T+1}, v{LR}
    v_add_u32 v{TM+3}, 14336, v{TM+2}
    """)
    for nu in range(2):
        for b in range(3):
            A(f"buffer_store_dwordx4 {v(RES[nu]+4*b,4)}, v{TM+nu}, s[{S_XI}:{S_XI+3}], 0 offen offset:{1024*b}")
        A(f"buffer_store_dwordx2 {v(RES[nu]+12,2)}, v{TM+2+nu}, s[{S_XI}:{S_XI+3}], 0 offen")
    A.label(f"{name}_fin")
    A("s_waitcnt vmcnt(0)")
    A.label(f"{name}_end")
    A("s_endpgm")
    return A.L

SPIN_MAX = 400000
def gen_kb3q(name):
    A = Asm()
    entry(A, name, 256)
    S_G = 16; S_Z = 20; S_IN = 24; S_OUT = 28; S_XI = 32; S_ST = 36; S_B = 40; S_H = 41; S_MU = 42; S_S = 43; S_Q = 44; S_P = 45; S_SPN = 46
    srd(A, S_G, S_WS, L.GI, 28 * 14 * 1024)
    srd(A, S_Z, S_WS, L.ZI, 448 * 4096)
    sel_ptr(A, S_IN, S_LAYER, None, L.X1, L.X3, L.XB, S_T)
    LANE = 1; LR = 2; TA = 3; RA = 4; ZA = 6; N = 7; G = 8; GA = 9; T = 11; OA = 18
    BF = 20
    AC = 36
    RES = 52
    X = 60
    E = 76
    TM = 92
    SM = 100
    NJ = 104; RNJ = 105
    def GU(t, kb): return a(4 * (kb * 2 + t), 4)
    def acc(t, nu): return AC + 8 * t + 4 * nu
    A(f"""
    s_and_b32 s{S_T}, s2, 7
    s_lshl_b32 s{S_S}, s{S_T}, 1
    s_bfe_u32 s{S_T}, s2, 0x10005
    s_add_u32 s{S_S}, s{S_S}, s{S_T}
    s_lshr_b32 s{S_T}, s2, 6
    s_lshl_b32 s{S_T}, s{S_T}, 4
    s_add_u32 s{S_S}, s{S_S}, s{S_T}            ; segment
    s_bfe_u32 s{S_Q}, s2, 0x20003               ; quarter
    v_and_b32 v{LANE}, 63, v0
    v_lshlrev_b32 v{LR}, 4, v{LANE}
    v_and_b32 v{N}, 15, v{LANE}
    v_lshrrev_b32 v{G}, 4, v{LANE}
    v_lshrrev_b32 v{T}, 2, v{LANE}
    s_mul_i32 s{S_T}, s{S_WAVE}, 112
    v_add_u32 v{T}, s{S_T}, v{T}
    v_lshlrev_b32 v{T}, 12, v{T}
    v_and_b32 v{T+1}, 3, v{LANE}
    v_lshl_add_u32 v{T}, v{T+1}, 4, v{T}
    s_lshl_b32 s{S_T}, s{S_S}, 6
    v_add_u32 v{ZA}, s{S_T}, v{T}
    s_mul_i32 s{S_T}, s{S_WAVE}, 7168
    s_mov_b32 s{S_T+1}, 0
    """)
    for i in range(7):
        A(f"s_mov_b32 m0, s{S_T}\ns_add_u32 s{S_T}, s{S_T}, 1024")
        A(f"buffer_load_dwordx4 v{ZA}, s[{S_Z}:{S_Z+3}], s{S_T+1} offen lds")
        if i < 6: A(f"s_add_u32 s{S_T+1}, s{S_T+1}, 65536")
    A(f"""
    s_mul_i32 s{S_B}, s{S_Q}, 7
    s_add_u32 s{S_B}, s{S_B}, 1
    s_lshr_b32 s{S_B}, s{S_B}, 1
    s_add_u32 s{S_B}, s{S_B}, s{S_WAVE}
    s_lshr_b32 s{S_H}, s{S_Q}, 1
    s_mul_i32 s{S_H}, s{S_H}, 7
    s_add_u32 s{S_H}, s{S_H}, 3
    s_and_b32 s{S_MU}, s{S_Q}, 1
    s_cmp_eq_u32 s{S_WAVE}, 3
    s_cselect_b32 s{S_P}, s{S_H}, s{S_B}        ; block
    s_cselect_b32 s{S_MU}, s{S_MU}, 0
    s_cselect_b64 vcc, -1, 0
    s_lshl_b32 s{S_T}, s{S_P}, 1
    s_add_u32 s{S_T}, s{S_T}, s{S_MU}
    s_mul_i32 s{S_T}, s{S_T}, 14336
    v_add_u32 v{GA}, s{S_T}, v{LR}
    v_add_u32 v{GA+1}, 14336, v{GA}
    v_mov_b32 v{T}, 0x40000000
    v_cndmask_b32 v{GA+1}, v{GA+1}, v{T}, vcc
    """)
    for kb in range(14):
        if kb % 4 == 0: A(f"s_mov_b32 s{S_T+4}, {kb*1024}")
        for t in range(2):
            A(f"buffer_load_dwordx4 {GU(t,kb)}, v{GA+t}, s[{S_G}:{S_G+3}], s{S_T+4} offen offset:{(kb%4)*1024}")
    A(f"""
    v_lshrrev_b32 v{T}, 2, v{N}
    v_lshlrev_b32 v{T}, 3, v{T}
    v_and_b32 v{T+1}, 3, v{N}
    v_add_u32 v{T}, v{T}, v{T+1}
    s_lshl_b32 s{S_T}, s{S_S}, 5
    v_add_u32 v{T}, s{S_T}, v{T}
    v_mul_u32_u24 v{T}, 896, v{T}
    v_lshl_add_u32 v{T}, v{G}, 4, v{T}
    s_lshl_b32 s{S_T}, s{S_P}, 6
    v_add_u32 v{RA}, s{S_T}, v{T}
    v_add_u32 v{RA+1}, {4*896}, v{RA}
    """)
    for nu in range(2):
        A(f"buffer_load_dwordx4 {v(RES+4*nu,4)}, v{RA+nu}, s[{S_IN}:{S_IN+3}], 0 offen")
    A(f"""
    s_load_dwordx2 s[{S_T}:{S_T+1}], s[0:1], 80
    s_add_u32 s{S_OUT}, s{S_WS}, {L.X2}
    s_addc_u32 s{S_OUT+1}, s{S_WS+1}, 0
    v_lshrrev_b32 v{T}, 2, v{N}
    v_lshl_add_u32 v{T}, v{G}, 3, v{T}
    v_lshlrev_b32 v{T}, 6, v{T}
    v_and_b32 v{T+1}, 3, v{N}
    v_lshl_add_u32 v{TA}, v{T+1}, 4, v{T}
    s_waitcnt lgkmcnt(0)
    s_cmp_eq_u32 s{S_LAYER}, 0
    s_cselect_b32 s{S_OUT}, s{S_OUT}, s{S_T}
    s_cselect_b32 s{S_OUT+1}, s{S_OUT+1}, s{S_T+1}
    s_mov_b32 s{S_OUT+2}, {L.XB}
    s_mov_b32 s{S_OUT+3}, 0x20000
    """)
    srd(A, S_XI, S_WS, L.XI + L.LS, L.XB)
    srd(A, S_ST, S_WS, L.ST, 64 * 4096)
    ts(A, 0)
    A("s_waitcnt vmcnt(30)\ns_barrier")
    ts(A, 1)
    def rd(kb):
        for nu in range(2):
            for jh in range(2):
                A(f"ds_read_b64_tr_b16 {v(BF+8*(kb&1)+4*nu+2*jh,2)}, v{TA} offset:{2048*kb+256*jh+8*nu}")
    rd(0); rd(1)
    for kb in range(14):
        A(f"s_waitcnt vmcnt({2 + 28 - 2*(kb+1)}) lgkmcnt({4 if kb < 13 else 0})")
        for t in range(2):
            for nu in range(2):
                d = v(acc(t, nu), 4)
                A(f"v_mfma_f32_16x16x32_bf16 {d}, {GU(t,kb)}, {v(BF+8*(kb&1)+4*nu,4)}, {d if kb else 0}")
        if kb + 2 < 14: rd(kb + 2)
    ts(A, 2)
    A("s_waitcnt vmcnt(0)")
    lw3 = A.uniq(name + "_w3"); lj = A.uniq(name + "_j")
    A(f"s_cmp_eq_u32 s{S_WAVE}, 3\ns_cbranch_scc1 {lw3}")
    def add_res(nu, t, r):
        d = acc(t, nu)
        A(f"""
        v_lshlrev_b32 v{TM}, 16, v{r}
        v_and_b32 v{TM+1}, 0xffff0000, v{r}
        v_lshlrev_b32 v{TM+2}, 16, v{r+1}
        v_and_b32 v{TM+3}, 0xffff0000, v{r+1}
        v_add_f32 v{d}, v{d}, v{TM}
        v_add_f32 v{d+1}, v{d+1}, v{TM+1}
        v_add_f32 v{d+2}, v{d+2}, v{TM+2}
        v_add_f32 v{d+3}, v{d+3}, v{TM+3}
        v_cvt_pk_bf16_f32 v{r}, v{d}, v{d+1}
        v_cvt_pk_bf16_f32 v{r+1}, v{d+2}, v{d+3}
        """)
    def path(nt):
        cnt = 4 * nt
        if nt == 1:
            A(f"s_cmp_lg_u32 s{S_MU}, 0\ns_cselect_b64 vcc, -1, 0\ns_lshl_b32 s{S_T}, s{S_MU}, 3")
            for nu in range(2):
                r = RES + 4 * nu
                A(f"v_cndmask_b32 v{r}, v{r}, v{r+2}, vcc\nv_cndmask_b32 v{r+1}, v{r+1}, v{r+3}, vcc")
        for nu in range(2):
            r = RES + 4 * nu
            for t in range(nt): add_res(nu, t, r + 2 * t)
            if nt == 2: A(f"buffer_store_dwordx4 {v(r,4)}, v{RA+nu}, s[{S_OUT}:{S_OUT+3}], 0 offen")
            else: A(f"buffer_store_dwordx2 {v(r,2)}, v{RA+nu}, s[{S_OUT}:{S_OUT+3}], s{S_T} offen")
        A(f"s_cmp_lg_u32 s{S_LAYER}, 0\ns_cbranch_scc1 {name}_fin")
        for nu in range(2):
            r = RES + 4 * nu; x = X + 8 * nu
            for j in range(2 * nt):
                A(f"v_lshlrev_b32 v{x+2*j}, 16, v{r+j}\nv_and_b32 v{x+2*j+1}, 0xffff0000, v{r+j}")
        for nu in range(2):
            x = X + 8 * nu; m = SM + 2 * nu
            A(f"v_add_f32 v{m}, v{x}, v{x+1}\nv_add_f32 v{TM+nu}, v{x+2}, v{x+3}")
            if nt == 2: A(f"v_add_f32 v{TM+2+nu}, v{x+4}, v{x+5}\nv_add_f32 v{TM+4+nu}, v{x+6}, v{x+7}\nv_add_f32 v{TM+nu}, v{TM+nu}, v{TM+2+nu}\nv_add_f32 v{m}, v{m}, v{TM+4+nu}")
            A(f"v_add_f32 v{m}, v{m}, v{TM+nu}")
        for nu in range(2): allred_g(A, "v_add_f32", SM + 2 * nu, TM + nu)
        for nu in range(2):
            x = X + 8 * nu; m = SM + 2 * nu
            A(f"v_mul_f32 v{TM+nu}, {hex(np_f(-1.0/(4*cnt)))}, v{m}")
            A(f"v_add_f32 v{TM+2+nu}, v{x}, v{TM+nu}\nv_mul_f32 v{m+1}, v{TM+2+nu}, v{TM+2+nu}")
            for j in range(1, cnt):
                A(f"v_add_f32 v{TM+2+nu}, v{x+j}, v{TM+nu}\nv_fmac_f32 v{m+1}, v{TM+2+nu}, v{TM+2+nu}")
        for nu in range(2): allred_g(A, "v_add_f32", SM + 2 * nu + 1, TM + nu)
        A(f"""
        v_min_u32 v{SM+1}, -2, v{SM+1}
        v_min_u32 v{SM+3}, -2, v{SM+3}
        v_cmp_eq_u32 vcc, 1, v{G}
        v_cndmask_b32 v{TM}, v{SM}, v{SM+2}, vcc
        v_cndmask_b32 v{TM+1}, v{SM+1}, v{SM+3}, vcc
        s_lshl_b32 s{S_T+1}, s{S_Q}, 2
        s_add_u32 s{S_T+1}, s{S_T+1}, s{S_WAVE}
        s_lshl_b32 s{S_T+1}, s{S_T+1}, 8
        s_lshl_b32 s{S_T+2}, s{S_S}, 12
        s_add_u32 s{S_T+1}, s{S_T+1}, s{S_T+2}
        v_lshlrev_b32 v{T}, 4, v{N}
        v_lshl_add_u32 v{T}, v{G}, 3, v{T}
        v_mov_b32 v{T+1}, 0x40000000
        v_cmp_gt_u32 vcc, 2, v{G}
        v_cndmask_b32 v{T}, v{T+1}, v{T}, vcc
        buffer_store_dwordx2 {v(TM,2)}, v{T}, s[{S_ST}:{S_ST+3}], s{S_T+1} offen sc0 sc1
        """)
        lp = A.uniq(name + "_sp"); ok = A.uniq(name + "_sk")
        A(f"s_mov_b32 s{S_SPN}, 0")
        A.label(lp)
        for i in range(4):
            A(f"buffer_load_dwordx4 {v(E+4*i,4)}, v{LR}, s[{S_ST}:{S_ST+3}], s{S_T+2} offen offset:{1024*i} sc0 sc1")
        A(f"""
        s_waitcnt vmcnt(0)
        v_max3_u32 v{TM}, v{E+1}, v{E+3}, v{E+5}
        v_max3_u32 v{TM+1}, v{E+7}, v{E+9}, v{E+11}
        v_max3_u32 v{TM}, v{TM}, v{E+13}, v{E+15}
        v_max_u32 v{TM}, v{TM}, v{TM+1}
        v_cmp_eq_u32 vcc, -1, v{TM}
        s_cbranch_vccz {ok}
        s_add_u32 s{S_SPN}, s{S_SPN}, 1
        s_cmp_lt_u32 s{S_SPN}, {SPIN_MAX}
        s_cbranch_scc1 {lp}
        s_branch {name}_end
        """)
        A.label(ok)
        A(f"""
        v_cmp_eq_u32 vcc, 3, v{G}
        v_mov_b32 v{NJ}, {hex(np_f(32.0))}
        v_mov_b32 v{TM}, {hex(np_f(16.0))}
        v_cndmask_b32 v{NJ}, v{NJ}, v{TM}, vcc
        v_mov_b32 v{RNJ}, {hex(np_f(1.0/32))}
        v_mov_b32 v{TM}, {hex(np_f(1.0/16))}
        v_cndmask_b32 v{RNJ}, v{RNJ}, v{TM}, vcc
        """)
        for nu in range(2):
            m = SM + 2 * nu; e = lambda i, k: E + 4 * i + 2 * nu + k
            A(f"""
            v_add_f32 v{m}, v{e(0,0)}, v{e(1,0)}
            v_add_f32 v{TM+nu}, v{e(2,0)}, v{e(3,0)}
            v_add_f32 v{m}, v{m}, v{TM+nu}
            """)
        for nu in range(2): allred_g(A, "v_add_f32", SM + 2 * nu, TM + nu)
        for nu in range(2):
            m = SM + 2 * nu; e = lambda i, k: E + 4 * i + 2 * nu + k
            A(f"v_mul_f32 v{m}, {hex(np_f(-1.0/448))}, v{m}          ; - mean")
            A(f"v_add_f32 v{m+1}, v{e(0,1)}, v{e(1,1)}\nv_add_f32 v{TM+nu}, v{e(2,1)}, v{e(3,1)}\nv_add_f32 v{m+1}, v{m+1}, v{TM+nu}")
            for i in range(4):
                A(f"v_fma_f32 v{TM+2+nu}, v{NJ}, v{m}, v{e(i,0)}\nv_mul_f32 v{TM+4+nu}, v{TM+2+nu}, v{RNJ}\nv_fmac_f32 v{m+1}, v{TM+2+nu}, v{TM+4+nu}")
        for nu in range(2): allred_g(A, "v_add_f32", SM + 2 * nu + 1, TM + nu)
        for nu in range(2):
            m = SM + 2 * nu; x = X + 8 * nu; r = RES + 4 * nu
            A(f"""
            v_mov_b32 v{TM+nu}, {hex(np_f(1e-5))}
            v_fmac_f32 v{TM+nu}, {hex(np_f(1.0/448))}, v{m+1}
            v_rsq_f32 v{TM+nu}, v{TM+nu}
            """)
            for j in range(cnt): A(f"v_add_f32 v{x+j}, v{x+j}, v{m}")
            for j in range(cnt): A(f"v_mul_f32 v{x+j}, v{x+j}, v{TM+nu}")
            for j in range(cnt // 2): A(f"v_cvt_pk_bf16_f32 v{r+j}, v{x+2*j}, v{x+2*j+1}")
        A(f"""
        s_mul_i32 s{S_T}, s{S_S}, 28672
        s_lshl_b32 s{S_T+1}, s{S_P}, 10
        s_add_u32 s{S_T}, s{S_T}, s{S_T+1}
        s_lshl_b32 s{S_T+1}, s{S_MU}, 3
        s_add_u32 s{S_T}, s{S_T}, s{S_T+1}
        s_add_u32 s{S_T+1}, s{S_T}, 14336
        """)
        for nu in range(2):
            if nt == 2: A(f"buffer_store_dwordx4 {v(RES+4*nu,4)}, v{LR}, s[{S_XI}:{S_XI+3}], s{S_T+nu} offen")
            else: A(f"buffer_store_dwordx2 {v(RES+4*nu,2)}, v{LR}, s[{S_XI}:{S_XI+3}], s{S_T+nu} offen")
    path(2)
    A(f"s_branch {name}_fin")
    A.label(lw3)
    path(1)
    A.label(f"{name}_fin")
    ts(A, 3)
    A("s_waitcnt vmcnt(0)")
    A.label(f"{name}_end")
    A("s_endpgm")
    return A.L
```

```python
from asm import *
import layout as L
import kr, ka, kp
from ka import srd, stream, gemm_phases, load_weights, aread, acc, afrag, Wu, sel_ptr
from ka import (LANE, LR, XR, XRN, XG, ST, ST2, KA, KH, MKA, SPW, SPR, AF, ACC, TMP, PMA, PMM, MG, BIAS, WV, SEGB)
from ka import (S_WS, S_WAVE, S_LAYER, S_T, S_W, S_X, S_O, S_M, S_O2, S_HEAD, S_SEG, S_CNT, S_CUR, S_NXT, S_NN, S_XO, S_XP, S_4K,
                S_MO, S_PO, S_PM, S_MU)
S_WL = kr.S_WL
S_FL = 56
S_FP = 60; S_SPN = 61
SPIN_MAX = kr.SPIN_MAX
OOB = 0x40000000
GSTR = 4

PROF = [0]
OPT = dict(steal=0)
TRACE2 = L.TB + (1 << 18)
def wst(A):
    if PROF[0] != 3: return
    A("""
    s_memrealtime s[98:99]
    s_waitcnt lgkmcnt(0)
    s_mov_b32 m0, s97
    s_nop 0
    s_movreld_b32 s64, s98
    s_add_u32 s97, s97, 1
    s_cmp_eq_u32 s97, 12
    s_cselect_b32 s97, 14, s97
    s_min_u32 s97, s97, 32
    """)
def wdump(A):
    if PROF[0] != 3: return
    l = A.uniq("wd")
    A(f"""
    v_mov_b32 v2, 0
    """)
    for i in range(33):
        if i not in (12, 13): A(f"v_writelane_b32 v2, s{64+i}, {i if i < 12 else i - 2}")
    A(f"""
    v_and_b32 v1, 63, v0
    v_lshlrev_b32 v1, 2, v1
    s_lshl_b32 s98, s101, 8
    s_add_u32 s98, s98, {TRACE2}
    v_add_u32 v1, s98, v1
    s_cmp_eq_u32 s{S_WAVE}, 0
    s_cbranch_scc0 {l}
    global_store_dword v1, v2, s[{S_WS}:{S_WS+1}]
    s_waitcnt vmcnt(0)
    {l}:
    """)
NEED = [32, 23, 23, 23, 23, 23, 23, 22]
STEAL_AFTER = 48
def prologue(A, name):
    dbg = OPT['steal']
    A(f"""
    s_cmp_ge_u32 s2, 256
    s_cbranch_scc1 {name}_end
    s_load_dwordx2 s[{S_WS}:{S_WS+1}], s[0:1], 96
    v_lshrrev_b32 v1, 6, v0
    s_getreg_b32 s8, hwreg(HW_REG_XCC_ID, 0, 4)
    v_readfirstlane_b32 s{S_WAVE}, v1
    s_mul_i32 s9, s{S_LAYER}, {L.LS}
    s_and_b32 s8, s8, 7
    s_waitcnt lgkmcnt(0)
    s_add_u32 s{S_WL}, s{S_WS}, s9
    s_addc_u32 s{S_WL+1}, s{S_WS+1}, 0
    s_cmp_eq_u32 s{S_WAVE}, 0
    s_cbranch_scc0 {name}_tk_wait
    s_add_u32 s10, s{S_WL}, {L.CT}
    s_addc_u32 s11, s{S_WL+1}, 0
    s_lshl_b32 s9, s8, 8
    v_mov_b32 v3, s9
    v_mov_b32 v4, 1
    s_mov_b64 exec, 1
    """)
    if dbg: A(f"s_cmp_eq_u32 s8, 0\ns_cbranch_scc1 {name}_rs")
    A(f"""
    global_atomic_add v5, v3, v4, s[10:11] sc0 sc1
    s_mov_b32 s12, 23
    s_cmp_eq_u32 s8, 0
    s_cselect_b32 s12, 32, s12
    s_cmp_eq_u32 s8, 7
    s_cselect_b32 s12, 22, s12
    s_waitcnt vmcnt(0)
    v_readfirstlane_b32 s7, v5
    s_and_b32 s7, s7, 0xffff
    s_cmp_lt_u32 s7, s12
    s_cbranch_scc1 {name}_tk_pub
    {name}_rs:
    s_mov_b64 exec, 0xff
    v_and_b32 v7, 63, v0
    v_lshlrev_b32 v6, 8, v7
    v_cmp_eq_u32 vcc, 7, v7
    v_mov_b32 v8, 23
    v_cndmask_b32 v8, v8, 22, vcc
    v_cmp_eq_u32 vcc, 0, v7
    v_cndmask_b32 v7, v8, 32, vcc
    s_mov_b32 s13, 0
    s_sleep 32
    {name}_rl:
    global_load_dword v5, v6, s[10:11] sc0 sc1
    s_waitcnt vmcnt(0)
    v_and_b32 v8, 0xffff, v5
    v_cmp_lt_u32 vcc, v8, v7
    s_nop 1
    s_and_b64 vcc, vcc, exec
    s_cbranch_scc0 {name}_rx
    s_add_u32 s13, s13, 1
    s_cmp_ge_u32 s13, {SPIN_MAX}
    s_cbranch_scc1 {name}_rx
    s_cmp_ge_u32 s13, {2 if dbg else STEAL_AFTER}
    s_cbranch_scc1 {name}_st
    s_sleep 8
    s_branch {name}_rl
    {name}_st:
    s_ff1_i32_b64 s14, vcc
    s_nop 0
    v_readlane_b32 s15, v5, s14
    s_add_u32 s12, s15, 1
    s_cmp_eq_u32 s14, 0
    s_cbranch_scc0 {name}_st1
    s_cmp_eq_u32 s8, 0
    s_cbranch_scc1 {name}_st1
    s_add_u32 s12, s12, 0x10000
    {name}_st1:
    s_mov_b64 exec, 1
    s_lshl_b32 s9, s14, 8
    v_mov_b32 v3, s9
    v_mov_b32 v4, s12
    v_mov_b32 v5, s15
    global_atomic_cmpswap v9, v3, v[4:5], s[10:11] sc0 sc1
    s_waitcnt vmcnt(0)
    v_readfirstlane_b32 s12, v9
    s_mov_b64 exec, 0xff
    s_cmp_eq_u32 s12, s15
    s_cbranch_scc0 {name}_rl
    s_mov_b32 s8, s14
    s_and_b32 s7, s15, 0xffff
    s_branch {name}_tk_pub
    {name}_rx:
    s_mov_b32 s8, 255
    s_mov_b32 s7, 255
    s_cmp_lg_u32 s{S_LAYER}, 0
    s_cbranch_scc1 {name}_tk_pub
    s_mov_b64 exec, 1
    v_mov_b32 v3, 2048
    v_mov_b32 v4, 1
    global_atomic_add v5, v3, v4, s[10:11] sc0 sc1
    s_waitcnt vmcnt(0)
    v_readfirstlane_b32 s12, v5
    s_cmp_lt_u32 s12, 64
    s_cbranch_scc0 {name}_tk_pub
    s_mov_b32 s8, 254
    s_mov_b32 s7, s12
    {name}_tk_pub:
    s_mov_b64 exec, 1
    s_lshl_b32 s9, s8, 8
    s_or_b32 s9, s9, s7
    v_mov_b32 v3, 0
    v_mov_b32 v5, s9
    ds_write_b32 v3, v5
    s_waitcnt lgkmcnt(0)
    s_mov_b64 exec, -1
    {name}_tk_wait:
    s_barrier
    v_mov_b32 v3, 0
    ds_read_b32 v4, v3
    s_waitcnt lgkmcnt(0)
    v_readfirstlane_b32 s7, v4
    s_barrier
    s_lshr_b32 s8, s7, 8
    s_and_b32 s7, s7, 255
    """)

def dispatch(A, name):
    A(f"""
    s_cmp_eq_u32 s8, 254
    s_cbranch_scc1 {name}_misc
    s_cmp_ge_u32 s7, 32
    s_cbranch_scc1 {name}_end
    s_cmp_eq_u32 s8, 0
    s_cbranch_scc0 {name}_wk
    s_cmp_ge_u32 s7, {kr.TEAM}
    s_cbranch_scc1 {name}_pf
    s_mov_b32 s{kr.S_ROLE}, s7
    s_mov_b32 s{kr.S_WAVE}, s{S_WAVE}
    s_branch {name}_team
    {name}_wk:
    """)
    if PROF[0] == 3:
        A("s_lshl_b32 s101, s8, 5\ns_add_u32 s101, s101, s7\ns_mov_b32 s97, 0")
        for i in range(33):
            if i not in (12, 13): A(f"s_mov_b32 s{64+i}, 0")
        wst(A)
    A(f"""
    s_sub_u32 s9, s8, 1
    s_cmp_lt_u32 s7, 16
    s_cbranch_scc0 {name}_wk_hi
    s_lshr_b32 s10, s7, 3
    s_bfe_u32 s11, s7, 0x10002
    s_mul_i32 s11, s11, 7
    s_add_u32 s{S_HEAD}, s11, s9
    s_and_b32 s{S_SEG}, s7, 3
    s_branch {name}_wk_xt
    {name}_wk_hi:
    s_sub_u32 s10, s7, 16
    s_mul_i32 s10, s10, 7
    s_add_u32 s9, s10, s9               ; e = 0..111
    s_cmp_lt_u32 s9, 16
    s_cbranch_scc0 {name}_wk_o
    s_lshr_b32 s10, s9, 3
    s_bfe_u32 s11, s9, 0x10002
    s_add_u32 s{S_HEAD}, s11, 14
    s_and_b32 s{S_SEG}, s9, 3
    {name}_wk_xt:
    s_cmp_eq_u32 s10, 0
    s_cbranch_scc1 {name}_gx
    s_branch {name}_gt
    {name}_wk_o:
    s_sub_u32 s9, s9, 16
    s_cmp_lt_u32 s9, 32
    s_cbranch_scc0 {name}_end
    s_lshr_b32 s40, s9, 2               ; group
    s_and_b32 s41, s9, 3                ; quarter
    s_branch {name}_go
    """)

def fl_srd(A):
    srd(A, S_FL, S_WL, L.FL - 256, L.CT_SZ - 4096 + 256)

def x_dma(slot_s):
    l = [f"s_mul_i32 s{S_T}, s{S_WAVE}, 7168", f"s_add_u32 s{S_T}, s{S_T}, s{slot_s}", f"s_mov_b32 m0, s{S_T}"]
    for i in range(4): l.append(f"buffer_load_dwordx4 v{XG}, s[{S_X}:{S_X+3}], 0 offen offset:{1024*i} lds")
    l += [f"s_add_u32 s{S_T}, s{S_T}, 4096", f"s_mov_b32 m0, s{S_T}"]
    for i in range(3): l.append(f"buffer_load_dwordx4 v{XG}, s[{S_X}:{S_X+3}], s{S_4K} offen offset:{1024*i} lds")
    l.append(f"v_add_u32 v{XG}, {GSTR*SEGB}, v{XG}")
    return l

def ring_init(A, base):
    A(f"""
    s_mov_b32 s{S_CUR}, {base}
    s_mov_b32 s{S_NXT}, {base+SEGB}
    s_mov_b32 s{S_NN}, {base+2*SEGB}
    s_mov_b32 s{S_4K}, 4096
    v_add_u32 v{XR}, {base}, v{LR}
    v_add_u32 v{XRN}, {base+SEGB}, v{LR}
    s_mul_i32 s{S_T}, s{S_SEG}, {SEGB}
    s_mul_i32 s{S_T+1}, s{S_WAVE}, 7168
    s_add_u32 s{S_T}, s{S_T}, s{S_T+1}
    v_add_u32 v{XG}, s{S_T}, v{LR}
    """)

def gx_role(A, name):
    ST2R = 8; FA = 9; ONE = 10
    A.label(f"{name}_gx")
    srd(A, S_W, S_WS, L.VI, L.IMG)
    srd(A, S_X, S_WL, L.XI, L.XB)
    srd(A, S_O, S_WL, L.XV, L.XV_SZ)
    fl_srd(A)
    A(f"v_and_b32 v{LANE}, 63, v0\nv_lshlrev_b32 v{LR}, 4, v{LANE}\ns_mov_b32 s{S_CNT}, {64//GSTR}")
    ring_init(A, 0)
    for x in x_dma(S_CUR): A(x)
    load_weights(A, False)
    for x in x_dma(S_NXT): A(x)
    A(f"""
    s_mul_i32 s{S_T}, s{S_HEAD}, 28
    s_mul_i32 s{S_T+1}, s{S_WAVE}, 7
    s_add_u32 s{S_T}, s{S_T}, s{S_T+1}
    s_lshl_b32 s{S_T}, s{S_T}, 10
    v_add_u32 v{ST}, s{S_T}, v{LR}
    v_add_u32 v{ST2R}, 4096, v{ST}
    v_mov_b32 v{ST2}, {OOB}
    s_lshl_b32 s{S_T}, s{S_HEAD}, 2
    s_add_u32 s{S_T}, s{S_T}, {L.FL_XV}
    v_mov_b32 v{FA}, s{S_T}
    v_cmp_eq_u32 vcc, 0, v0
    v_cndmask_b32 v{FA}, v{ST2}, v{FA}, vcc
    v_mov_b32 v{ONE}, 1
    s_mov_b32 s{S_FP}, 0
    s_mul_i32 s{S_XO}, s{S_SEG}, {16*SEGB}
    s_mov_b32 s{S_XP}, s{S_XO}
    s_waitcnt vmcnt(49)
    s_barrier
    """)
    wst(A)
    for st in range(2):
        for x in aread(st, XR, st): A(x)
    A.label(f"{name}_gx_loop")
    mf, fill, start = gemm_phases(False)
    def F(i, *ins): fill.setdefault(i, []).extend(ins)
    def epi(tau, t, vst, soff, off):
        return [f"v_cvt_pk_bf16_f32 v{t}, v{acc(tau,0)}, v{acc(tau,0)+1}",
                f"v_cvt_pk_bf16_f32 v{t+1}, v{acc(tau,0)+2}, v{acc(tau,0)+3}",
                f"v_cvt_pk_bf16_f32 v{t+2}, v{acc(tau,1)}, v{acc(tau,1)+1}",
                f"v_cvt_pk_bf16_f32 v{t+3}, v{acc(tau,1)+2}, v{acc(tau,1)+3}",
                f"buffer_store_dwordx4 {v(t,4)}, v{vst}, s[{S_O}:{S_O+3}], s{soff} offen offset:{off} sc1"]
    for j, tau in enumerate(range(4, 7)):
        e = epi(tau, TMP + 4 * (j & 1), ST2, S_XP, 1024 * j)
        p = start[1 + 2 * j]
        for i_, x in enumerate(e): F(p + 1 + i_, x)
    F(start[14] - 1, "s_waitcnt vmcnt(0)", "s_barrier",
      f"buffer_store_dword v{ONE}, v{FA}, s[{S_FL}:{S_FL+3}], s{S_FP} offen sc1")
    for tau in range(4):
        e = epi(tau, TMP + 4 * (tau & 1), ST, S_XO, 1024 * tau)
        p = start[15 + 2 * tau]
        for i_, x in enumerate(e): F(p + 1 + i_, x)
    F(start[26], *aread(28, XRN, 0))
    F(start[27], *aread(29, XRN, 1))
    dm = x_dma(S_NN)
    for i_, x in enumerate(dm): F(start[24] + 1 + i_ * 20 // len(dm), x)
    stream(A, mf, fill)
    ka.ring_rotate(A)
    A(f"""
    v_mov_b32 v{ST2}, v{ST2R}
    s_mov_b32 s{S_XP}, s{S_XO}
    s_add_u32 s{S_XO}, s{S_XO}, {GSTR*16*SEGB}
    s_add_u32 s{S_FP}, s{S_SEG}, 1
    s_lshl_b32 s{S_FP}, s{S_FP}, 8
    s_add_u32 s{S_SEG}, s{S_SEG}, {GSTR}
    s_sub_u32 s{S_CNT}, s{S_CNT}, 1
    s_cmp_lg_u32 s{S_CNT}, 0
    s_cbranch_scc1 {name}_gx_loop
    """)
    A("s_nop 7")
    for j, tau in enumerate(range(4, 7)):
        for x in epi(tau, TMP + 4 * (j & 1), ST2, S_XP, 1024 * j): A(x)
    A(f"""
    s_waitcnt vmcnt(0)
    s_barrier
    buffer_store_dword v{ONE}, v{FA}, s[{S_FL}:{S_FL+3}], s{S_FP} offen sc1
    """)
    wst(A)
    MP0 = XR; MP1 = XRN; UA = ST; UA2 = ST2; MD = AF
    MK = [ACC + 8 * i + 4 for i in range(7)]
    srd(A, S_M, S_WL, L.MX, L.MI_SZ)
    srd(A, S_O, S_WL, L.UI, L.UI_SZ)
    A(f"""
    s_sub_u32 s{S_SEG}, s{S_SEG}, 64
    s_mov_b32 s{S_CNT}, {64//GSTR}
    s_mov_b32 s{S_SPN}, 0
    s_lshl_b32 s{S_T+4}, s{S_WAVE}, 10
    v_add_u32 v{MP0}, s{S_T+4}, v{LR}
    s_add_u32 s{S_T+5}, s{S_T+4}, 4096
    s_cmp_eq_u32 s{S_WAVE}, 3
    s_cselect_b32 s{S_T+4}, s{S_T+4}, s{S_T+5}
    v_add_u32 v{MP1}, s{S_T+4}, v{LR}
    v_and_b32 v20, 15, v{LANE}            ; n
    v_lshrrev_b32 v21, 4, v{LANE}         ; g
    v_and_b32 v22, 7, v20
    v_lshlrev_b32 v22, 5, v22
    v_lshrrev_b32 v23, 1, v21
    v_lshl_add_u32 v22, v23, 8, v22
    v_and_b32 v23, 1, v21
    v_lshl_add_u32 v22, v23, 3, v22
    """)
    for i in range(7): A(f"v_add_u32 v{MK[i]}, {1024*i}, v22")
    A(f"""
    s_lshr_b32 s{S_T}, s{S_HEAD}, 2
    s_mul_i32 s{S_T}, s{S_T}, 28
    s_mul_i32 s{S_T+1}, s{S_WAVE}, 7
    s_add_u32 s{S_T}, s{S_T}, s{S_T+1}
    s_lshl_b32 s{S_T}, s{S_T}, 10
    s_and_b32 s{S_T+1}, s{S_HEAD}, 3
    s_lshl_b32 s{S_T+1}, s{S_T+1}, 8
    s_add_u32 s{S_T}, s{S_T}, s{S_T+1}
    v_lshlrev_b32 v22, 4, v20
    v_lshl_add_u32 v22, v21, 3, v22
    v_add_u32 v22, s{S_T}, v22
    v_mov_b32 v23, {OOB}
    v_cmp_gt_u32 vcc, 2, v21
    v_cndmask_b32 v{UA}, v23, v22, vcc
    v_add_u32 v{UA2}, 4096, v{UA}
    v_add_u32 v{FA}, {L.FL_U - L.FL_XV}, v{FA}
    s_mul_i32 s{S_MO}, s{S_SEG}, {L.MB}
    s_mul_i32 s{S_XO}, s{S_SEG}, {L.UI_STEP}
    s_add_u32 s{S_FP}, s{S_SEG}, 1
    s_lshl_b32 s{S_FP}, s{S_FP}, 8
    """)
    A.label(f"{name}_gu_loop")
    poll_mx(A, name, MD, MP0, MP1)
    def rd(kb):
        o = 128 * (kb & 1); r = AF + 4 * (kb % 4)
        A(f"ds_read2_b32 {v(r,2)}, v{MK[kb>>1]} offset0:{o} offset1:{o+4}")
        A(f"ds_read2_b32 {v(r+2,2)}, v{MK[kb>>1]} offset0:{o+1} offset1:{o+5}")
    for kb in range(4): rd(kb)
    for kb in range(14):
        A(f"s_waitcnt lgkmcnt({2*min(3, 13-kb)})")
        for tau in range(7):
            d = v(acc(tau, 0), 4)
            A(f"v_mfma_f32_16x16x32_bf16 {d}, {v(AF+4*(kb%4),4)}, {Wu(tau,kb)}, {d if kb else 0}")
        if kb + 4 < 14: rd(kb + 4)
    for tau in range(7):
        d = acc(tau, 0)
        A(f"""
        v_cvt_pk_bf16_f32 v{d}, v{d}, v{d+1}
        v_cvt_pk_bf16_f32 v{d+1}, v{d+2}, v{d+3}
        buffer_store_dwordx2 {v(d,2)}, v{UA if tau < 4 else UA2}, s[{S_O}:{S_O+3}], s{S_XO} offen offset:{1024*(tau&3)} sc1
        """)
    A(f"""
    s_waitcnt vmcnt(0)
    s_barrier
    buffer_store_dword v{ONE}, v{FA}, s[{S_FL}:{S_FL+3}], s{S_FP} offen sc1
    """)
    wst(A)
    A(f"""
    s_add_u32 s{S_MO}, s{S_MO}, {GSTR*L.MB}
    s_add_u32 s{S_XO}, s{S_XO}, {GSTR*L.UI_STEP}
    s_add_u32 s{S_FP}, s{S_FP}, {GSTR*256}
    s_sub_u32 s{S_CNT}, s{S_CNT}, 1
    s_cmp_lg_u32 s{S_CNT}, 0
    s_cbranch_scc1 {name}_gu_loop
    s_waitcnt vmcnt(0)
    """)
    wdump(A)
    A(f"s_branch {name}_end")

def poll_mx(A, name, MD, MP0, MP1):
    lp = A.uniq(name + "_mp"); ok = A.uniq(name + "_mok")
    A(f"""
    {lp}:
    buffer_load_dwordx4 {v(MD,4)}, v{MP0}, s[{S_M}:{S_M+3}], s{S_MO} offen sc0 sc1
    buffer_load_dwordx4 {v(MD+4,4)}, v{MP1}, s[{S_M}:{S_M+3}], s{S_MO} offen sc0 sc1
    s_waitcnt vmcnt(0)
    v_max3_u32 v{TMP}, v{MD}, v{MD+1}, v{MD+2}
    v_max3_u32 v{TMP+1}, v{MD+3}, v{MD+4}, v{MD+5}
    v_max3_u32 v{TMP}, v{TMP}, v{MD+6}, v{MD+7}
    v_max_u32 v{TMP}, v{TMP}, v{TMP+1}
    v_cmp_eq_u32 vcc, -1, v{TMP}
    s_cbranch_vccz {ok}
    s_add_u32 s{S_SPN}, s{S_SPN}, 1
    s_cmp_lt_u32 s{S_SPN}, {SPIN_MAX}
    s_cbranch_scc1 {lp}
    s_branch {name}_end
    {ok}:
    ds_write_b128 v{MP0}, {v(MD,4)}
    ds_write_b128 v{MP1}, {v(MD+4,4)}
    s_waitcnt lgkmcnt(0)
    s_barrier
    """)

RING = 8192; SPBASE = RING + 3 * SEGB
def gt_role(A, name):
    MP0 = MG; MP1 = 111; MD = AF + 16; PF = 6
    A.label(f"{name}_gt")
    srd(A, S_W, S_WS, L.AI, L.IMG)
    srd(A, S_X, S_WL, L.XI, L.XB)
    srd(A, S_O, S_WL, L.PTX, L.PTX_SZ)
    srd(A, S_O2, S_WL, L.PTM, L.PTM_SZ)
    srd(A, S_M, S_WL, L.MX, L.MI_SZ)
    fl_srd(A)
    A(f"v_and_b32 v{LANE}, 63, v0\nv_lshlrev_b32 v{LR}, 4, v{LANE}\ns_mov_b32 s{S_CNT}, {64//GSTR}\ns_mov_b32 s{S_SPN}, 0")
    ring_init(A, RING)
    for x in x_dma(S_CUR): A(x)
    load_weights(A, True)
    A(f"""
    s_cmp_lg_u32 s{S_T+3}, 0
    s_cselect_b64 s[{S_MU}:{S_MU+1}], -1, 0
    s_lshl_b32 s{S_T+4}, s{S_T+1}, 10
    s_lshl_b32 s{S_T+5}, s{S_T+2}, 10
    v_mov_b32 v{KA}, s{S_T+4}
    v_mov_b32 v{KH}, s{S_T+5}
    v_and_b32 v20, 15, v{LANE}            ; n
    v_lshrrev_b32 v21, 4, v{LANE}         ; g
    v_and_b32 v22, 7, v20
    v_lshlrev_b32 v22, 5, v22
    v_lshrrev_b32 v23, 1, v21
    v_lshl_add_u32 v22, v23, 8, v22
    v_and_b32 v23, 1, v21
    v_lshl_add_u32 v22, v23, 3, v22
    """)
    for i in range(4):
        A(f"s_add_u32 s{S_T+4}, s{S_T+1}, {i}" if i < 3 else f"s_mov_b32 s{S_T+4}, s{S_T+2}")
        A(f"s_lshl_b32 s{S_T+4}, s{S_T+4}, 9\nv_add_u32 v{MKA+i}, s{S_T+4}, v22")
    A(f"""
    s_mul_i32 s{S_T+4}, s{S_WAVE}, 6144
    s_add_u32 s{S_T+4}, s{S_T+4}, {SPBASE}
    v_add_u32 v{SPW}, s{S_T+4}, v{LR}
    s_and_b32 s{S_T+5}, s{S_WAVE}, 1
    s_mul_i32 s{S_T+4}, s{S_T+5}, 3072
    s_add_u32 s{S_T+4}, s{S_T+4}, {SPBASE}
    v_add_u32 v{SPR}, s{S_T+4}, v{LR}
    v_lshrrev_b32 v22, 2, v20
    v_lshlrev_b32 v22, 3, v22
    v_and_b32 v23, 3, v20
    v_add_u32 v22, v22, v23
    s_lshl_b32 s{S_T+4}, s{S_T+5}, 2
    v_add_u32 v22, s{S_T+4}, v22
    v_lshlrev_b32 v23, 3, v21
    v_sub_u32 v22, v22, v23
    v_mov_b32 v23, 0xff800000
    """)
    for j in range(8):
        A(f"v_cmp_gt_i32 vcc, {j}, v22\nv_cndmask_b32 v{BIAS+j}, 0, v23, vcc")
    A(f"""
    s_lshl_b32 s{S_T+4}, s{S_HEAD}, 1
    s_add_u32 s{S_T+4}, s{S_T+4}, s{S_T+5}
    s_lshl_b32 s{S_T+6}, s{S_T+4}, 2
    s_add_u32 s{S_T+6}, s{S_T+6}, {L.FL_PT}
    v_mov_b32 v22, s{S_T+6}
    v_mov_b32 v23, {OOB}
    v_cmp_eq_u32 vcc, 0, v{LANE}
    v_cndmask_b32 v{PF}, v23, v22, vcc
    s_lshl_b32 s{S_T+4}, s{S_T+4}, 10
    v_add_u32 v{PMA}, s{S_T+4}, v{LR}
    s_lshr_b32 s{S_T+4}, s{S_HEAD}, 2
    s_lshl_b32 s{S_T+4}, s{S_T+4}, 1
    s_add_u32 s{S_T+4}, s{S_T+4}, s{S_T+5}
    s_lshl_b32 s{S_T+4}, s{S_T+4}, 10
    s_and_b32 s{S_T+6}, s{S_HEAD}, 3
    s_lshl_b32 s{S_T+6}, s{S_T+6}, 8
    s_add_u32 s{S_T+4}, s{S_T+4}, s{S_T+6}
    v_lshlrev_b32 v22, 4, v20
    v_lshl_add_u32 v22, v21, 3, v22
    v_add_u32 v22, s{S_T+4}, v22
    v_cmp_gt_u32 vcc, 2, v21
    v_cndmask_b32 v{PMM}, v23, v22, vcc
    s_lshl_b32 s{S_PO}, s{S_SEG}, 15
    s_lshl_b32 s{S_PM}, s{S_SEG}, 13
    s_mul_i32 s{S_MO}, s{S_SEG}, {L.MB}
    s_add_u32 s{S_FP}, s{S_SEG}, 1
    s_lshl_b32 s{S_FP}, s{S_FP}, 8
    s_lshl_b32 s{S_T+4}, s{S_WAVE}, 10
    v_add_u32 v{MP0}, s{S_T+4}, v{LR}
    s_add_u32 s{S_T+5}, s{S_T+4}, 4096
    s_cmp_eq_u32 s{S_WAVE}, 3
    s_cselect_b32 s{S_T+4}, s{S_T+4}, s{S_T+5}
    v_add_u32 v{MP1}, s{S_T+4}, v{LR}
    """)
    for x in x_dma(S_NXT): A(x)
    A("s_waitcnt vmcnt(49)\ns_barrier")
    A.label(f"{name}_gt_loop")
    for st in range(2):
        for x in aread(st, XR, st): A(x)
    mf, fill, start = gemm_phases(True, next_prefetch=False)
    def F(i, *ins): fill.setdefault(i, []).extend(ins)
    def cvt_pair(p, nu):
        d = acc(2 * p, nu); e = acc(2 * p + 1, nu)
        return [f"v_cvt_pk_bf16_f32 v{d}, v{d}, v{d+1}", f"v_cvt_pk_bf16_f32 v{d+1}, v{d+2}, v{d+3}",
                f"v_cvt_pk_bf16_f32 v{d+2}, v{e}, v{e+1}", f"v_cvt_pk_bf16_f32 v{d+3}, v{e+2}, v{e+3}"]
    F(start[14] - 1, "s_waitcnt vmcnt(7)")
    k = start[15]
    for p in range(2):
        for nu in range(2):
            for x in cvt_pair(p, nu): F(k, x); k += 1
    stream(A, mf, fill)
    KX = AF
    A(f"v_add_u32 v{TMP}, v{XR}, v{KA}\nv_add_u32 v{TMP+1}, v{XR}, v{KH}")
    for b in range(4):
        for mu in range(2):
            if b < 3: A(f"ds_read_b128 {v(KX+8*b+4*mu,4)}, v{TMP} offset:{(mu*14+b)*1024}")
            else: A(f"ds_read_b128 {v(KX+8*b+4*mu,4)}, v{TMP+1} offset:{mu*14*1024}")
    for nu in range(2):
        for x in cvt_pair(2, nu): A(x)
    for nu in range(2):
        d = acc(6, nu)
        A(f"""
        v_cvt_pk_bf16_f32 v{TMP+2}, v{d}, v{d+1}
        v_cvt_pk_bf16_f32 v{TMP+3}, v{d+2}, v{d+3}
        v_cndmask_b32 v{d}, v{TMP+2}, 0, s[{S_MU}:{S_MU+1}]
        v_cndmask_b32 v{d+1}, v{TMP+3}, 0, s[{S_MU}:{S_MU+1}]
        v_cndmask_b32 v{d+2}, 0, v{TMP+2}, s[{S_MU}:{S_MU+1}]
        v_cndmask_b32 v{d+3}, 0, v{TMP+3}, s[{S_MU}:{S_MU+1}]
        """)
    def TF(b, nu): return v(acc(2 * b, nu), 4)
    SACC = [[acc(1, 0), acc(1, 1)], [acc(3, 0), acc(3, 1)], [acc(5, 0), acc(5, 1)]]
    for b in range(4):
        A(f"s_waitcnt lgkmcnt({6-2*b})")
        for mu in range(2):
            for nu in range(2):
                d = v(SACC[mu][nu], 4)
                A(f"v_mfma_f32_16x16x32_bf16 {d}, {v(KX+8*b+4*mu,4)}, {TF(b,nu)}, {d if b else 0}")
    A("s_nop 7")
    poll_mx(A, name, MD, MP0, MP1)
    wst(A)
    for b in range(4):
        A(f"ds_read2_b32 {v(KX+4*b,2)}, v{MKA+b} offset0:0 offset1:4")
        A(f"ds_read2_b32 {v(KX+4*b+2,2)}, v{MKA+b} offset0:1 offset1:5")
    for b in range(4):
        A(f"s_waitcnt lgkmcnt({6-2*b})")
        for nu in range(2):
            d = v(SACC[2][nu], 4)
            A(f"v_mfma_f32_16x16x32_bf16 {d}, {v(KX+4*b,4)}, {TF(b,nu)}, {d if b else 0}")
    for nu in range(2):
        for kap in range(3):
            A(f"ds_write_b128 v{SPW}, {v(SACC[kap][nu],4)} offset:{(nu*3+kap)*1024}")
    A("s_waitcnt lgkmcnt(0)\ns_barrier")
    skip = A.uniq(name + "_nosm")
    A(f"s_cmp_ge_u32 s{S_WAVE}, 2\ns_cbranch_scc1 {skip}")
    R = ACC
    for w in range(4):
        for kap in range(3):
            A(f"ds_read_b128 {v(R+12*w+4*kap,4)}, v{SPR} offset:{w*6144+kap*1024}")
    A("s_waitcnt lgkmcnt(6)")
    for i in range(12): A(f"v_add_f32 v{R+i}, v{R+i}, v{R+12+i}")
    A("s_waitcnt lgkmcnt(0)")
    for i in range(12): A(f"v_add_f32 v{R+24+i}, v{R+24+i}, v{R+36+i}")
    for i in range(8): A(f"v_add_f32 v{R+24+i}, v{R+24+i}, v{BIAS+i}")
    for i in range(12): A(f"v_add_f32 v{R+i}, v{R+i}, v{R+24+i}")
    MX = R + 12; T = R + 13; SM = R + 14
    A(f"""
    v_max3_f32 v{MX}, v{R}, v{R+1}, v{R+2}
    v_max3_f32 v{T}, v{R+3}, v{R+4}, v{R+5}
    v_max3_f32 v{MX}, v{MX}, v{R+6}, v{R+7}
    v_max3_f32 v{T}, v{T}, v{R+8}, v{R+9}
    v_max3_f32 v{MX}, v{MX}, v{R+10}, v{R+11}
    v_max_f32 v{MX}, v{MX}, v{T}
    v_mov_b32 v{T}, v{MX}
    v_permlane16_swap_b32 v{MX}, v{T}
    v_max_f32 v{MX}, v{MX}, v{T}
    v_mov_b32 v{T}, v{MX}
    v_permlane32_swap_b32 v{MX}, v{T}
    v_max_f32 v{MX}, v{MX}, v{T}
    """)
    for i in range(12): A(f"v_sub_f32 v{R+i}, v{R+i}, v{MX}")
    for i in range(12): A(f"v_exp_f32 v{R+i}, v{R+i}")
    A(f"""
    v_add_f32 v{SM}, v{R+8}, v{R+9}
    v_add_f32 v{T}, v{R+10}, v{R+11}
    v_add_f32 v{SM}, v{SM}, v{T}
    v_mul_f32 v{SM}, 0.5, v{SM}
    v_add_f32 v{T}, v{R}, v{R+1}
    v_add_f32 v{MX}, v{R+2}, v{R+3}
    v_add_f32 v{SM}, v{SM}, v{T}
    v_add_f32 v{T}, v{R+4}, v{R+5}
    v_add_f32 v{SM}, v{SM}, v{MX}
    v_add_f32 v{MX}, v{R+6}, v{R+7}
    v_add_f32 v{SM}, v{SM}, v{T}
    v_add_f32 v{SM}, v{SM}, v{MX}
    v_mov_b32 v{T}, v{SM}
    v_permlane16_swap_b32 v{SM}, v{T}
    v_add_f32 v{SM}, v{SM}, v{T}
    v_mov_b32 v{T}, v{SM}
    v_permlane32_swap_b32 v{SM}, v{T}
    v_add_f32 v{SM}, v{SM}, v{T}
    v_rcp_f32 v{SM}, v{SM}
    """)
    for i in range(12): A(f"v_mul_f32 v{R+i}, v{R+i}, v{SM}")
    for i in range(6): A(f"v_cvt_pk_bf16_f32 v{R+16+i}, v{R+2*i}, v{R+2*i+1}")
    A(f"""
    buffer_store_dwordx4 {v(R+16,4)}, v{PMA}, s[{S_O}:{S_O+3}], s{S_PO} offen sc1
    buffer_store_dwordx2 {v(R+20,2)}, v{PMM}, s[{S_O2}:{S_O2+3}], s{S_PM} offen sc1
    v_mov_b32 v{T}, 1
    s_waitcnt vmcnt(0)
    buffer_store_dword v{T}, v{PF}, s[{S_FL}:{S_FL+3}], s{S_FP} offen sc1
    """)
    wst(A)
    A.label(skip)
    for x in x_dma(S_NN): A(x)
    ka.ring_rotate(A)
    A(f"""
    s_add_u32 s{S_PO}, s{S_PO}, {GSTR*32768}
    s_add_u32 s{S_PM}, s{S_PM}, {GSTR*8192}
    s_add_u32 s{S_MO}, s{S_MO}, {GSTR*L.MB}
    s_add_u32 s{S_FP}, s{S_FP}, {GSTR*256}
    s_sub_u32 s{S_CNT}, s{S_CNT}, 1
    s_cmp_lg_u32 s{S_CNT}, 0
    s_cbranch_scc1 {name}_gt_loop
    s_waitcnt vmcnt(0)
    """)
    wdump(A)
    A(f"s_branch {name}_end")

def wait_flags(A, name, vd, va, soff, mask, spn):
    lp = A.uniq(name + "_fw"); ok = A.uniq(name + "_fok")
    A(f"""
    {lp}:
    buffer_load_dword v{vd}, v{va}, s[{S_FL}:{S_FL+3}], s{soff} offen sc0 sc1
    s_waitcnt vmcnt(0)
    v_cmp_eq_u32 vcc, 0, v{vd}
    s_nop 1
    s_and_b64 vcc, vcc, s[{mask}:{mask+1}]
    s_cbranch_scc0 {ok}
    s_add_u32 s{spn}, s{spn}, 1
    s_cmp_lt_u32 s{spn}, {SPIN_MAX}
    s_cbranch_scc1 {lp}
    s_branch {name}_end
    {ok}:
    """)

def go_role(A, name):
    S_XVS = 16; S_U = 20; S_PX = 24; S_PMM = 28; S_IN = 32; S_OUT = 36
    S_S = 40; S_Q = 41; S_N = 42; S_MK1 = 44; S_MK2 = 46
    A.label(f"{name}_go")
    srd(A, S_XVS, S_WL, L.XV, L.XV_SZ)
    srd(A, S_U, S_WL, L.UI, L.UI_SZ)
    srd(A, S_PX, S_WL, L.PTX, L.PTX_SZ)
    srd(A, S_PMM, S_WL, L.PTM, L.PTM_SZ)
    sel_ptr(A, S_IN, S_LAYER, 0, None, L.X2, L.XB, S_T)
    sel_ptr(A, S_OUT, S_LAYER, None, L.X1, L.X3, L.XB, S_T)
    fl_srd(A)
    LANE = 1; LR = 2; FA = 3; FD = 4; RA = 5; WA = 6; RD = 7
    PX = 16; PMr = 48; AC = 64; RES = 120
    def XVR(hl, t): return a(4 * (hl * 7 + t), 4)
    def UR(t): return a(112 + 4 * t, 4)
    A(f"""
    v_and_b32 v{LANE}, 63, v0
    v_lshlrev_b32 v{LR}, 4, v{LANE}
    v_lshlrev_b32 v{FA}, 2, v{LANE}
    s_mov_b32 s{S_N}, 8
    s_mov_b32 s{S_SPN}, 0
    s_mov_b32 s{S_MK1}, 0xffff
    s_mov_b32 s{S_MK1+1}, 0
    s_mov_b32 s{S_MK2}, 0xffff0000
    s_mov_b32 s{S_MK2+1}, -1
    s_mul_i32 s{S_T}, s{S_WAVE}, {14*1024}
    v_add_u32 v{WA}, s{S_T}, v{LR}
    s_lshl_b32 s{S_T}, s{S_WAVE}, 10
    v_add_u32 v{RD}, s{S_T}, v{LR}
    """)
    A.label(f"{name}_go_loop")
    A(f"s_add_u32 s{S_FP}, s{S_S}, 1\ns_lshl_b32 s{S_FP}, s{S_FP}, 8")
    wait_flags(A, name, FD, FA, S_FP, S_MK1, S_SPN)
    A(f"""
    s_mul_i32 s{S_T}, s{S_S}, {16*SEGB}
    s_mul_i32 s{S_T+1}, s{S_WAVE}, {4*SEGB}
    s_add_u32 s{S_T}, s{S_T}, s{S_T+1}
    s_mul_i32 s{S_T+1}, s{S_Q}, 7168
    s_add_u32 s{S_T}, s{S_T}, s{S_T+1}
    """)
    for hl in range(4):
        A(f"s_add_u32 s{S_T+1}, s{S_T}, 4096")
        for t in range(7):
            A(f"buffer_load_dwordx4 {XVR(hl,t)}, v{LR}, s[{S_XVS}:{S_XVS+3}], s{S_T+(t>>2)} offen offset:{1024*(t&3)} sc1")
        A(f"s_add_u32 s{S_T}, s{S_T}, {SEGB}")
    A(f"""
    v_and_b32 v8, 15, v{LANE}
    v_lshrrev_b32 v9, 4, v{LANE}
    v_lshrrev_b32 v10, 2, v8
    v_lshlrev_b32 v10, 3, v10
    v_and_b32 v11, 3, v8
    v_add_u32 v10, v10, v11
    s_and_b32 s{S_T}, s{S_WAVE}, 1
    s_lshl_b32 s{S_T}, s{S_T}, 2
    s_lshl_b32 s{S_T+1}, s{S_S}, 5
    s_add_u32 s{S_T}, s{S_T}, s{S_T+1}
    v_add_u32 v10, s{S_T}, v10
    v_mul_u32_u24 v10, 896, v10
    s_mul_i32 s{S_T}, s{S_Q}, 7
    s_lshr_b32 s{S_T+1}, s{S_WAVE}, 1
    s_add_u32 s{S_T}, s{S_T}, s{S_T+1}
    s_lshl_b32 s{S_T}, s{S_T}, 5
    v_lshl_add_u32 v10, v9, 3, v10
    v_add_u32 v{RA}, s{S_T}, v10
    """)
    for j in range(4):
        A(f"buffer_load_dwordx2 {v(RES+2*j,2)}, v{RA}, s[{S_IN}:{S_IN+3}], 0 offen offset:{64*j}")
    wait_flags(A, name, FD, FA, S_FP, S_MK2, S_SPN)
    wst(A)
    A(f"""
    s_lshl_b32 s{S_T}, s{S_S}, 15
    s_lshl_b32 s{S_T+1}, s{S_WAVE}, 13
    s_add_u32 s{S_T}, s{S_T}, s{S_T+1}
    s_add_u32 s{S_T+1}, s{S_T}, 4096
    """)
    for i in range(8):
        A(f"buffer_load_dwordx4 {v(PX+4*i,4)}, v{LR}, s[{S_PX}:{S_PX+3}], s{S_T+(i>>2)} offen offset:{1024*(i&3)} sc1")
    A(f"""
    s_lshl_b32 s{S_T}, s{S_S}, 13
    s_lshl_b32 s{S_T+1}, s{S_WAVE}, 11
    s_add_u32 s{S_T}, s{S_T}, s{S_T+1}
    """)
    for i in range(2):
        A(f"buffer_load_dwordx4 {v(PMr+4*i,4)}, v{LR}, s[{S_PMM}:{S_PMM+3}], s{S_T} offen offset:{1024*i} sc1")
    A(f"""
    s_mul_i32 s{S_T}, s{S_S}, {L.UI_STEP}
    s_mul_i32 s{S_T+1}, s{S_WAVE}, 28
    s_mul_i32 s{S_T+2}, s{S_Q}, 7
    s_add_u32 s{S_T+1}, s{S_T+1}, s{S_T+2}
    s_lshl_b32 s{S_T+1}, s{S_T+1}, 10
    s_add_u32 s{S_T}, s{S_T}, s{S_T+1}
    """)
    for i in range(7):
        if i and i % 4 == 0: A(f"s_add_u32 s{S_T}, s{S_T}, 4096")
        A(f"buffer_load_dwordx4 {UR(i)}, v{LR}, s[{S_U}:{S_U+3}], s{S_T} offen offset:{1024*(i&3)} sc1")
    for hl in range(4):
        A(f"s_waitcnt vmcnt({7+2+2*(3-hl)})")
        for t in range(7):
            for nu in range(2):
                d = v(AC + 8 * t + 4 * nu, 4)
                A(f"v_mfma_f32_16x16x32_bf16 {d}, {XVR(hl,t)}, {v(PX+8*hl+4*nu,4)}, {d if hl else 0}")
    A("s_waitcnt vmcnt(0)")
    for t in range(7):
        for nu in range(2):
            d = v(AC + 8 * t + 4 * nu, 4)
            A(f"v_mfma_f32_16x16x32_bf16 {d}, {UR(t)}, {v(PMr+4*nu,4)}, {d}")
    for t in range(7):
        for nu in range(2):
            A(f"ds_write_b128 v{WA}, {v(AC+8*t+4*nu,4)} offset:{(2*t+nu)*1024}")
    A("s_waitcnt lgkmcnt(0)\ns_barrier")
    R = 16
    def tile(j):
        for w in range(4):
            A(f"ds_read_b128 {v(R+16*j+4*w,4)}, v{RD} offset:{w*14*1024+4*j*1024}")
    def fin(j):
        r = R + 16 * j
        for i in range(4): A(f"v_add_f32 v{r+i}, v{r+i}, v{r+4+i}\nv_add_f32 v{r+8+i}, v{r+8+i}, v{r+12+i}")
        A(f"""
        v_lshlrev_b32 v{r+4}, 16, v{RES+2*j}
        v_and_b32 v{r+5}, 0xffff0000, v{RES+2*j}
        v_lshlrev_b32 v{r+6}, 16, v{RES+2*j+1}
        v_and_b32 v{r+7}, 0xffff0000, v{RES+2*j+1}
        """)
        for i in range(4): A(f"v_add_f32 v{r+i}, v{r+i}, v{r+8+i}")
        for i in range(4): A(f"v_add_f32 v{r+i}, v{r+i}, v{r+4+i}")
        A(f"""
        v_cvt_pk_bf16_f32 v{r}, v{r}, v{r+1}
        v_cvt_pk_bf16_f32 v{r+1}, v{r+2}, v{r+3}
        buffer_store_dwordx2 {v(r,2)}, v{RA}, s[{S_OUT}:{S_OUT+3}], 0 offen offset:{64*j}
        """)
    for j in range(3): tile(j)
    l3 = A.uniq(name + "_t3")
    A(f"s_cmp_ge_u32 s{S_WAVE}, 2\ns_cbranch_scc1 {l3}")
    tile(3)
    A("s_waitcnt lgkmcnt(0)")
    fin(3)
    A.label(l3)
    A("s_waitcnt lgkmcnt(0)")
    for j in range(3): fin(j)
    wst(A)
    A(f"""
    s_barrier
    s_add_u32 s{S_S}, s{S_S}, 8
    s_sub_u32 s{S_N}, s{S_N}, 1
    s_cmp_lg_u32 s{S_N}, 0
    s_cbranch_scc1 {name}_go_loop
    s_waitcnt vmcnt(0)
    """)
    wst(A)
    wdump(A)
    A(f"s_branch {name}_end")

def pf_role(A, name):
    S_S = 40; S_K = 41; S_MXS = 44
    VE = 5; FD = 12; D = 16
    A.label(f"{name}_pf")
    srd(A, S_M, S_WL, L.MI, L.MI_SZ)
    srd(A, S_MXS, S_WL, L.MX, L.MI_SZ)
    lp = A.uniq(name + "_pfm"); ok = A.uniq(name + "_pfk")
    A(f"""
    s_sub_u32 s{S_K}, s7, {kr.TEAM}
    s_lshl_b32 s{S_K}, s{S_K}, 2
    s_add_u32 s{S_K}, s{S_K}, s{S_WAVE}
    s_cmp_ge_u32 s{S_K}, 7
    s_cbranch_scc1 {name}_end
    v_and_b32 v1, 63, v0
    v_lshlrev_b32 v1, 4, v1
    s_lshl_b32 s{S_T}, s{S_K}, 10
    v_add_u32 v{VE}, s{S_T}, v1
    s_mov_b32 s{S_SPN}, 0
    s_mov_b32 s{S_S}, 1
    s_mov_b32 s{S_T}, {L.MB}
    {lp}:
    buffer_load_dwordx4 {v(D,4)}, v{VE}, s[{S_M}:{S_M+3}], s{S_T} offen sc0 sc1
    s_waitcnt vmcnt(0)
    v_max3_u32 v{FD}, v{D}, v{D+1}, v{D+2}
    v_max_u32 v{FD}, v{FD}, v{D+3}
    v_cmp_eq_u32 vcc, -1, v{FD}
    s_cbranch_vccz {ok}
    s_add_u32 s{S_SPN}, s{S_SPN}, 1
    s_cmp_lt_u32 s{S_SPN}, {SPIN_MAX}
    s_cbranch_scc1 {lp}
    s_branch {name}_end
    {ok}:
    buffer_store_dwordx4 {v(D,4)}, v{VE}, s[{S_MXS}:{S_MXS+3}], s{S_T} offen sc1
    s_add_u32 s{S_T}, s{S_T}, {L.MB}
    s_add_u32 s{S_S}, s{S_S}, 1
    s_cmp_lt_u32 s{S_S}, 64
    s_cbranch_scc1 {lp}
    s_waitcnt vmcnt(0)
    s_branch {name}_end
    """)

def gen_ka(name, prof=False):
    A = Asm(); PROF[0] = prof
    prologue(A, name)
    dispatch(A, name)
    gx_role(A, name)
    gt_role(A, name)
    go_role(A, name)
    pf_role(A, name)
    A.label(f"{name}_misc")
    A("s_mov_b32 s50, s7")
    kp.misc_role(A, name, 50)
    A(f"s_branch {name}_end")
    A.label(f"{name}_team")
    kr.team_code(A, name, prof)
    A.label(f"{name}_end")
    A("s_endpgm")
    return A.L
```

```python
from asm import *
import layout as L
from ka import entry, srd, S_WS, S_WAVE, S_T
from kb import np_f, dpp_allred8, ln_load
import math

def ptr_srd(A, r, slot, size):
    A(f"s_load_dwordx2 s[{r}:{r+1}], s[0:1], {slot}")
    A(f"s_mov_b32 s{r+2}, {size}\ns_mov_b32 s{r+3}, 0x20000")

POPT = dict(imgmod="sc1", mismod="", rot=0, ahead=3, wt=0)
def instrs(A): return [x.strip() for x in A.L if x.strip() and not x.strip().startswith(";")]
def fill_store(A, srd_r, base, size, s_id, nwg, val, T, mm=""):
    srd(A, srd_r, S_WS, base, size)
    per = size // nwg
    assert size % nwg == 0 and per % 16 == 0
    n = (per // 16 + 255) // 256
    A(f"s_mul_i32 s{S_T}, s{s_id}, {per}\nv_lshlrev_b32 v{T}, 4, v0\nv_add_u32 v{T}, s{S_T}, v{T}")
    for i in range(n):
        left = per // 16 - 256 * i
        if left < 256:
            A(f"v_mov_b32 v{T+1}, 0x40000000\nv_cmp_gt_u32 vcc, {left}, v0\nv_cndmask_b32 v{T}, v{T+1}, v{T}, vcc")
        A(f"buffer_store_dwordx4 {v(val,4)}, v{T}, s[{srd_r}:{srd_r+3}], 0 offen {mm}")
        if i + 1 < n: A(f"v_add_u32 v{T}, 4096, v{T}")

def gen_prep(name):
    A = Asm()
    entry(A, name, 256)
    S_L = 16; S_R = 20; S_O = 24; S_A = 28; S_B = 32; S_C = 36
    S_TYPE = 40; S_H = 41; S_KH = 42; S_Q = 43; S_K = 44; S_K2 = 45; S_PT = 46
    S_X = 52
    S_SL = 50
    LANE = 1; LR = 2; N = 3; G = 4; LA = 5; TA = 7; OA = 8; T = 10
    BF = 16
    AF = 80
    AC = 96
    AC2 = 228
    RAW = 144; XF = 172; TT = 228 + 12
    M0 = 128
    AD = 132
    LD = 134
    W = 246
    S_KB = 88
    im = POPT['imgmod']; mm = POPT['mismod']
    A(f"""
    v_and_b32 v{LANE}, 63, v0
    v_lshlrev_b32 v{LR}, 4, v{LANE}
    v_and_b32 v{N}, 15, v{LANE}
    v_lshrrev_b32 v{G}, 4, v{LANE}
    s_load_dwordx2 s[{S_L}:{S_L+1}], s[0:1], 16
    s_load_dwordx2 s[{S_PT}:{S_PT+1}], s[0:1], 32
    s_load_dwordx2 s[{S_R}:{S_R+1}], s[0:1], 24
    s_load_dwordx2 s[{S_PT+2}:{S_PT+3}], s[0:1], 40
    s_load_dwordx2 s[{S_X}:{S_X+1}], s[0:1], 0
    s_load_dwordx2 s[{S_C}:{S_C+1}], s[0:1], 8
    s_and_b32 s{S_T}, s2, 7
    s_lshr_b32 s{S_T+1}, s2, 3
    s_lshr_b32 s{S_T+2}, s{S_T+1}, 3
    s_lshl_b32 s{S_T+2}, s{S_T+2}, 3
    s_add_u32 s{S_T}, s{S_T}, s{S_T+2}          ; product 0..31
    s_lshr_b32 s{S_TYPE}, s{S_T}, 4
    s_and_b32 s{S_H}, s{S_T}, 15
    s_bfe_u32 s{S_KH}, s{S_T+1}, 0x10002
    s_and_b32 s{S_Q}, s{S_T+1}, 3
    s_lshl_b32 s{S_SL}, s{S_WAVE}, 14
    s_add_u32 s{S_SL}, s{S_SL}, 98304
    s_mov_b32 s{S_X+2}, {L.XB}
    s_mov_b32 s{S_X+3}, 0x20000
    s_mov_b32 s{S_C+2}, 7168
    s_mov_b32 s{S_C+3}, 0x20000
    s_waitcnt lgkmcnt(0)
    s_cmp_eq_u32 s{S_TYPE}, 0
    s_cselect_b32 s{S_L}, s{S_L}, s{S_PT}
    s_cselect_b32 s{S_L+1}, s{S_L+1}, s{S_PT+1}
    s_cselect_b32 s{S_R}, s{S_R}, s{S_PT+2}
    s_cselect_b32 s{S_R+1}, s{S_R+1}, s{S_PT+3}
    s_mov_b32 s{S_L+2}, {448*8192}
    s_mov_b32 s{S_L+3}, 0x20000
    s_mov_b32 s{S_R+2}, {448*8192}
    s_mov_b32 s{S_R+3}, 0x20000
    """)
    ts(A, 0)
    lx0 = A.uniq(name + "_x0"); lm0 = A.uniq(name + "_m0")
    A(f"""
    s_cmp_lg_u32 s{S_WAVE}, 3
    s_cbranch_scc1 {lx0}
    v_lshrrev_b32 v{T}, 3, v{LANE}
    s_lshl_b32 s{S_T}, s2, 3
    v_add_u32 v{T}, s{S_T}, v{T}
    v_mul_u32_u24 v{T}, 896, v{T}
    v_and_b32 v{T+1}, 7, v{LANE}
    v_lshl_add_u32 v{T}, v{T+1}, 4, v{T}
    """)
    for j in range(7):
        A(f"buffer_load_dwordx4 {v(RAW+4*j,4)}, v{T}, s[{S_X}:{S_X+3}], 0 offen offset:{128*j}")
    A.label(lx0)
    A(f"v_mov_b32 v{AD+1}, 0x40000000\ns_cmp_ge_u32 s2, 7\ns_cbranch_scc1 {lm0}")
    assert L.MX - L.MI < (1 << 24) and L.LS + L.MX - L.MI + L.MB < (1 << 30)
    A(f"""
    s_lshl_b32 s{S_T}, s2, 8
    v_add_u32 v{T}, s{S_T}, v0                       ; P4
    v_mul_u32_u24 v{T+1}, 2341, v{T}
    v_lshrrev_b32 v{T+1}, 20, v{T+1}
    v_mul_u32_u24 v{T+2}, 448, v{T+1}
    v_cmp_gt_u32 vcc, 1792, v{T}
    v_sub_u32 v{T}, v{T}, v{T+2}                     ; P
    v_lshrrev_b32 v{T+2}, 1, v{T+1}                  ; layer
    v_and_b32 v{T+1}, 1, v{T+1}
    s_mov_b32 s{S_T}, {L.LS}
    v_mul_lo_u32 v{T+2}, v{T+2}, s{S_T}
    s_mov_b32 s{S_T}, {L.MX-L.MI}
    v_mul_lo_u32 v{T+1}, v{T+1}, s{S_T}
    v_add_u32 v{T+2}, v{T+2}, v{T+1}
    v_lshl_add_u32 v{T+2}, v{T}, 4, v{T+2}
    v_mov_b32 v{T+3}, 0x40000000
    v_cndmask_b32 v{AD+1}, v{T+3}, v{T+2}, vcc
    v_lshrrev_b32 v{T+1}, 6, v{T}
    v_lshlrev_b32 v{T+1}, 7, v{T+1}
    v_bfe_u32 v{T+2}, v{T}, 4, 2
    v_lshl_add_u32 v{T+1}, v{T+2}, 5, v{T+1}
    v_and_b32 v{T+2}, 1, v{T}
    v_lshl_add_u32 v{T+1}, v{T+2}, 2, v{T+1}
    v_bfe_u32 v{T+2}, v{T}, 1, 3
    v_mul_u32_u24 v{T+2}, 896, v{T+2}
    v_add_u32 v{T+1}, v{T+1}, v{T+2}
    v_cndmask_b32 v{T+1}, v{T+3}, v{T+1}, vcc
    """)
    for p in range(4): A(f"buffer_load_dword v{M0+p}, v{T+1}, s[{S_C}:{S_C+3}], 0 offen offset:{8*p}")
    A.label(lm0)
    lvo = A.uniq(name + "_vo"); lb = A.uniq(name + "_bd")
    rot = POPT['rot']
    A(f"""
    v_lshrrev_b32 v{T+4}, 2, v{LANE}                 ; row m'
    v_and_b32 v{T+5}, 3, v{LANE}
    v_xor_b32 v{T+5}, v{T+5}, v{G}                   ; piece
    v_lshlrev_b32 v{T+5}, 4, v{T+5}
    s_cmp_lg_u32 s{S_TYPE}, 0
    s_cbranch_scc1 {lvo}
    s_mul_i32 s{S_T}, s{S_Q}, 7
    s_lshl_b32 s{S_T+1}, s{S_WAVE}, 1
    s_add_u32 s{S_T}, s{S_T}, s{S_T+1}
    s_lshl_b32 s{S_T}, s{S_T}, 4
    v_add_u32 v{T}, s{S_T}, v{T+4}
    v_lshl_add_u32 v{T}, v{T}, 13, v{T+5}
    s_lshl_b32 s{S_T}, s{S_H}, 9
    v_add_u32 v{T}, s{S_T}, v{T}
    v_add_u32 v{T+1}, {16*8192}, v{T}
    s_lshl_b32 s{S_T+2}, s{S_KH}, {2 if rot else 31}
    """)
    l3 = A.uniq(name + "_r3")
    for t in range(2):
        if t == 1: A(f"s_cmp_eq_u32 s{S_WAVE}, 3\ns_cbranch_scc1 {lb}")
        for es in range(8):
            A(f"""
            s_add_u32 s{S_T}, s{S_T+2}, {es}
            s_and_b32 s{S_T}, s{S_T}, 7
            s_lshl_b32 s{S_T+1}, s{S_T}, 10
            s_add_u32 s{S_T+1}, s{S_T+1}, s{S_SL}
            s_add_u32 s{S_T+1}, s{S_T+1}, {8192*t}
            s_mov_b32 m0, s{S_T+1}
            s_lshl_b32 s{S_T}, s{S_T}, 6
            buffer_load_dwordx4 v{T+t}, s[{S_R}:{S_R+3}], s{S_T} offen lds
            """)
    A(f"s_branch {lb}")
    A.label(lvo)
    A(f"""
    v_lshrrev_b32 v{T}, 2, v{LANE}
    s_lshl_b32 s{S_T}, s{S_H}, 8
    v_add_u32 v{T}, s{S_T}, v{T}
    v_mul_u32_u24 v{T}, 896, v{T}
    v_and_b32 v{T+1}, 3, v{LANE}
    v_lshl_add_u32 v{T}, v{T+1}, 4, v{T}
    s_mul_i32 s{S_T}, s{S_Q}, 224
    s_lshl_b32 s{S_T+1}, s{S_WAVE}, 6
    s_add_u32 s{S_T}, s{S_T}, s{S_T+1}
    v_add_u32 v{T}, s{S_T}, v{T}
    s_lshl_b32 s{S_T+2}, s{S_KH}, {3 if rot else 31}
    """)
    for i in range(16):
        A(f"""
        s_add_u32 s{S_T}, s{S_T+2}, {i}
        s_and_b32 s{S_T}, s{S_T}, 15
        s_lshl_b32 s{S_T+1}, s{S_T}, 10
        s_add_u32 s{S_T+1}, s{S_T+1}, s{S_SL}
        s_mov_b32 m0, s{S_T+1}
        s_mul_i32 s{S_T}, s{S_T}, {16*896}
        buffer_load_dwordx4 v{T}, s[{S_R}:{S_R+3}], s{S_T} offen lds
        """)
    A.label(lb)
    ts(A, 11)
    A(f"""
    v_lshrrev_b32 v{T}, 2, v{T+4}
    v_lshlrev_b32 v{T}, 3, v{T}
    v_and_b32 v{T+1}, 3, v{T+4}
    v_add_u32 v{T}, v{T}, v{T+1}
    v_lshl_add_u32 v{T}, v{T}, 13, v{T+5}
    s_lshl_b32 s{S_T}, s{S_H}, 9
    s_mul_i32 s{S_T+1}, s{S_KH}, {7*32*8192}
    s_add_u32 s{S_T}, s{S_T}, s{S_T+1}
    v_add_u32 v{LD}, s{S_T}, v{T}
    v_add_u32 v{LD+1}, {4*8192}, v{LD}
    s_lshl_b32 s{S_T+2}, s{S_Q}, {1 if rot else 31}
    """)
    for i in range(7):
        A(f"""
        s_add_u32 s{S_T}, s{S_T+2}, {i}
        s_and_b32 s{S_T}, s{S_T}, 15
        s_sub_u32 s{S_T+1}, s{S_T}, 7
        s_cmp_ge_u32 s{S_T}, 7
        s_cselect_b32 s{S_KB+i}, s{S_T+1}, s{S_T}
        """)
    def a_dma(i):
        lds0 = 98304 if i == 6 else 16384 * i
        l = []
        for mu in range(2):
            for e2 in range(2):
                l += [f"s_lshl_b32 s{S_PT}, s{S_WAVE}, 1",
                      f"s_add_u32 s{S_PT}, s{S_PT}, {e2}",
                      f"s_lshl_b32 s{S_PT+1}, s{S_PT}, 10",
                      f"s_add_u32 s{S_PT+1}, s{S_PT+1}, {lds0 + mu * 8192}",
                      f"s_mov_b32 m0, s{S_PT+1}",
                      f"s_lshl_b32 s{S_PT}, s{S_PT}, 6",
                      f"s_lshl_b32 s{S_PT+1}, s{S_KB+i}, 18",
                      f"s_add_u32 s{S_PT}, s{S_PT}, s{S_PT+1}",
                      f"buffer_load_dwordx4 v{LD+mu}, s[{S_L}:{S_L+3}], s{S_PT} offen lds"]
        return l
    AH = POPT['ahead']
    for i in range(AH):
        for x in a_dma(i): A(x)
    ts(A, 1)
    lvo2 = A.uniq(name + "_vo2"); lb2 = A.uniq(name + "_bd2")
    A(f"""
    s_waitcnt vmcnt({4*AH})
    s_cmp_lg_u32 s{S_TYPE}, 0
    s_cbranch_scc1 {lvo2}
    v_lshrrev_b32 v{T}, 2, v{N}
    v_xor_b32 v{T}, v{T}, v{G}
    v_lshlrev_b32 v{T}, 4, v{T}
    v_lshl_add_u32 v{T}, v{N}, 6, v{T}
    v_add_u32 v{TA}, s{S_SL}, v{T}
    """)
    for t in range(2):
        for es in range(8):
            A(f"ds_read_b128 {v(BF+32*t+4*es,4)}, v{TA} offset:{8192*t+1024*es}")
    A(f"s_branch {lb2}")
    A.label(lvo2)
    A(f"""
    v_lshrrev_b32 v{T}, 2, v{N}
    v_lshl_add_u32 v{T}, v{G}, 3, v{T}
    v_lshlrev_b32 v{T}, 6, v{T}
    v_and_b32 v{T+1}, 3, v{N}
    v_lshl_add_u32 v{T}, v{T+1}, 3, v{T}
    v_add_u32 v{TA}, s{S_SL}, v{T}
    """)
    for t in range(2):
        for es in range(8):
            for jh in range(2):
                A(f"ds_read_b64_tr_b16 {v(BF+32*t+4*es+2*jh,2)}, v{TA} offset:{2048*es+256*jh+32*t}")
    A.label(lb2)
    ts(A, 3)
    A(f"""
    s_mul_i32 s{S_T}, s{S_H}, 28
    s_mul_i32 s{S_T+1}, s{S_Q}, 7
    s_add_u32 s{S_T}, s{S_T}, s{S_T+1}
    s_lshl_b32 s{S_T+1}, s{S_WAVE}, 1
    s_add_u32 s{S_T}, s{S_T}, s{S_T+1}
    s_mul_i32 s{S_T}, s{S_T}, 14
    s_mul_i32 s{S_T+1}, s{S_KH}, 7
    s_add_u32 s{S_T}, s{S_T}, s{S_T+1}
    s_lshl_b32 s{S_T}, s{S_T}, 10
    v_add_u32 v{OA}, s{S_T}, v{LR}
    v_add_u32 v{OA+1}, 14336, v{OA}
    v_mov_b32 v{T}, 0x40000000
    s_cmp_eq_u32 s{S_WAVE}, 3
    s_cselect_b64 vcc, -1, 0
    v_cndmask_b32 v{OA+1}, v{OA+1}, v{T}, vcc
    s_cmp_eq_u32 s{S_TYPE}, 0
    s_cselect_b32 s{S_K}, {hex(np_f(math.log2(math.e)/16))}, {hex(np_f(1.0))}
    s_mov_b32 s{S_K2}, 0
    s_mul_i32 s{S_T}, s{S_TYPE}, {L.VI-L.AI}
    s_add_u32 s{S_T}, s{S_T}, {L.AI}
    s_add_u32 s{S_O}, s{S_WS}, s{S_T}
    s_addc_u32 s{S_O+1}, s{S_WS+1}, 0
    s_mov_b32 s{S_O+2}, {L.IMG}
    s_mov_b32 s{S_O+3}, 0x20000
    v_lshrrev_b32 v{T}, 2, v{N}
    v_xor_b32 v{T}, v{T}, v{G}
    v_lshlrev_b32 v{T}, 4, v{T}
    v_lshl_add_u32 v{LA}, v{N}, 6, v{T}
    v_add_u32 v{TA}, 65536, v{LA}
    """)
    def rd(i):
        kb, r = divmod(i, 16)
        off = (kb * 16 + r) * 1024
        if off < 65536: return f"ds_read_b128 {v(AF+4*(i%4),4)}, v{LA} offset:{off}"
        return f"ds_read_b128 {v(AF+4*(i%4),4)}, v{TA} offset:{off-65536}"
    B = Asm()
    srd(B, S_B, S_WS, L.MI, L.LS + L.MX - L.MI + L.MB)
    B(f"buffer_store_dwordx4 {v(M0,4)}, v{AD+1}, s[{S_B}:{S_B+3}], 0 offen {mm}")
    for i in range(4): B(f"v_mov_b32 v{W+i}, -1")
    B("s_mov_b32 s51, s2")
    for (base, size) in ((L.MI + L.MB, 64 * L.MB), (L.MX + L.MB, 64 * L.MB), (L.PBUF, L.PB_SZ)):
        fill_store(B, S_B, base, size, 51, 256, W, T, mm)
    assert L.CT_SZ == 8 * 4096
    B(f"""
    s_lshr_b32 s{S_T}, s2, 3
    s_mul_i32 s{S_T}, s{S_T}, {L.LS}
    s_and_b32 s{S_T+1}, s2, 7
    s_lshl_b32 s{S_T+1}, s{S_T+1}, 12
    s_add_u32 s{S_T}, s{S_T}, s{S_T+1}
    v_lshlrev_b32 v{T}, 4, v0
    v_add_u32 v{T}, s{S_T}, v{T}
    s_cmp_lt_u32 s2, 16
    s_cselect_b64 vcc, -1, 0
    v_mov_b32 v{T+1}, 0x40000000
    v_cndmask_b32 v{T}, v{T+1}, v{T}, vcc
    v_mov_b32 v{M0}, 0
    v_mov_b32 v{M0+1}, 0
    v_mov_b32 v{M0+2}, 0
    v_mov_b32 v{M0+3}, 0
    """)
    srd(B, S_B, S_WS, L.CT, L.LS + L.CT_SZ)
    B(f"buffer_store_dwordx4 {v(M0,4)}, v{T}, s[{S_B}:{S_B+3}], 0 offen {mm}")
    extra = instrs(B)
    B = Asm(); ln_regs(B, RAW, XF, TT); lnl = instrs(B)
    ts(A, 6)
    NS = 7 * 16
    def product(tiles, more):
        vm = [f"a{kb}" for kb in range(AH) for _ in range(4)]
        xtra = list(extra); more = list(more); dma = []; tag = [None]
        def wait_block(kb):
            last = max(i for i, x in enumerate(vm) if x == f"a{kb}")
            A(f"s_waitcnt vmcnt({len(vm) - 1 - last})\ns_barrier")
        def emit(x):
            A(x)
            if x.startswith("buffer_store"): vm.append("st")
            if x.startswith("buffer_load"): vm.append(tag[0])
        def take(l):
            while l:
                x = l.pop(0); emit(x)
                if not x.startswith("s_"): return True
            return False
        def epilogue(kb):
            ac = AC2 if kb & 1 else AC
            l = [f"s_lshl_b32 s{S_K2}, s{S_KB+kb}, 10"]
            for t in range(tiles):
                d = ac + 8 * t
                for x in range(8): l.append(f"v_mul_f32 v{d+x}, s{S_K}, v{d+x}")
                for x in range(4): l.append(f"v_cvt_pk_bf16_f32 v{d+x}, v{d+2*x}, v{d+2*x+1}")
                l.append(f"buffer_store_dwordx4 {v(d,4)}, v{OA+t}, s[{S_O}:{S_O+3}], s{S_K2} offen {im if kb < POPT['wt'] else ''}")
            return l
        A("s_waitcnt lgkmcnt(0)")
        wait_block(0)
        for i in range(3): A(rd(i))
        pend = []
        for i in range(NS):
            kb, r = divmod(i, 16); mu, es = divmod(r, 8)
            ac = AC2 if kb & 1 else AC
            if r == 0 and kb + AH < 7:
                assert not dma
                dma = a_dma(kb + AH); tag[0] = f"a{kb+AH}"
            A(f"s_waitcnt lgkmcnt({min(2, NS-1-i)})")
            for t in range(tiles):
                d = v(ac + 8 * t + 4 * mu, 4)
                A(f"v_mfma_f32_16x16x32_bf16 {d}, {v(AF+4*(i%4),4)}, {v(BF+32*t+4*es,4)}, {d if es else 0}")
                if t == 0 and i + 3 < NS:
                    if (i + 3) % 16 == 0: wait_block((i + 3) // 16)
                    A(rd(i + 3))
                if r >= 1: take(pend)
            if not take(dma): take(xtra)
            if more:
                take(more); take(more); take(more)
            if r == 15:
                assert not pend
                pend = epilogue(kb)
        for x in pend + xtra + more: emit(x)
    lw3 = A.uniq(name + "_w3"); lpe = A.uniq(name + "_pe")
    A(f"s_cmp_eq_u32 s{S_WAVE}, 3\ns_cbranch_scc1 {lw3}")
    product(2, [])
    A(f"s_branch {lpe}")
    A.label(lw3)
    product(1, lnl)
    ts(A, 7)
    lx = A.uniq(name + "_xi")
    srd(A, S_B, S_WS, L.XI, L.XB)
    A(f"""
        v_and_b32 v{TT}, 7, v{LANE}
    v_bfe_u32 v{TT+1}, v{LANE}, 3, 2
    s_and_b32 s{S_T}, s2, 3
    s_lshl_b32 s{S_T}, s{S_T}, 2
    v_add_u32 v{TT+1}, s{S_T}, v{TT+1}
    v_lshlrev_b32 v{TT+1}, 4, v{TT+1}
    v_and_b32 v{TT+2}, 3, v{TT}
    v_lshl_add_u32 v{TT+1}, v{TT+2}, 8, v{TT+1}
    v_lshrrev_b32 v{TT+2}, 2, v{TT}
    v_lshl_add_u32 v{TT+1}, v{TT+2}, 10, v{TT+1}
    v_lshrrev_b32 v{TT+2}, 5, v{LANE}
    v_mul_u32_u24 v{TT+2}, 14336, v{TT+2}
    v_add_u32 v{TT+1}, v{TT+1}, v{TT+2}
    s_lshr_b32 s{S_T}, s2, 2
    s_mul_i32 s{S_T}, s{S_T}, 28672
    v_add_u32 v{TT+1}, s{S_T}, v{TT+1}
    v_add_u32 v{TT+2}, 4096, v{TT+1}
    v_add_u32 v{TT+3}, 8192, v{TT+1}
    v_add_u32 v{TT+4}, 12288, v{TT+1}
    """)
    for j in range(7):
        A(f"buffer_store_dwordx4 {v(RAW+4*j,4)}, v{TT+1+(j>>1)}, s[{S_B}:{S_B+3}], 0 offen offset:{2048*(j&1)} {mm}")
    A.label(lx)
    A.label(lpe)
    ts(A, 4)
    A("s_waitcnt vmcnt(0)")
    A.label(f"{name}_end")
    A("s_endpgm")
    return A.L

def misc_role(A, name, S_J):
    S_A = 28; S_B = 32; S_F1 = 20; S_F2 = 24; S_K = 44; S_K2 = 45; S_PT = 46; S_I = 48; S_U = 49
    LANE = 1; LR = 2; N = 3; G = 4; T = 10; AD = 16; FW = 24; FD = 32; RH = 40; DD = 48; V = 56; W = 64
    A(f"""
    s_load_dwordx2 s[{S_F1}:{S_F1+1}], s[0:1], 64
    s_load_dwordx2 s[{S_F2}:{S_F2+1}], s[0:1], 72
    v_and_b32 v{LANE}, 63, v0
    v_lshlrev_b32 v{LR}, 4, v{LANE}
    v_and_b32 v{N}, 15, v{LANE}
    v_lshrrev_b32 v{G}, 4, v{LANE}
    s_mov_b32 s{S_F1+2}, {2048*450}
    s_mov_b32 s{S_F1+3}, 0x20000
    s_mov_b32 s{S_F2+2}, {2048*450}
    s_mov_b32 s{S_F2+3}, 0x20000
    s_mov_b32 s{S_I}, 0
    s_waitcnt lgkmcnt(0)
    """)
    loop = A.uniq(name + "_mil")
    A.label(loop)
    A(f"s_lshl_b32 s{S_U}, s{S_I}, 6\ns_add_u32 s{S_U}, s{S_U}, s{S_J}")
    A(f"""
    s_lshr_b32 s{S_T}, s{S_U}, 2                     ; k1
    s_and_b32 s{S_T+1}, s{S_U}, 3                    ; g
    s_lshl_b32 s{S_T+2}, s{S_T+1}, 9             ; 64 * 8 g
    s_add_u32 s{S_T+2}, s{S_T+2}, s{S_T}
    s_mul_i32 s{S_T+2}, s{S_T+2}, 450
    v_lshlrev_b32 v{T}, 1, v0
    v_mov_b32 v{T+1}, 0x40000000
    v_cmp_gt_u32 vcc, 225, v0
    v_cndmask_b32 v{T}, v{T+1}, v{T}, vcc
    ; destination: b * 8192 + (k1 >> 4) * 2048 + ((k1 & 15) + 16 g) * 32
    s_lshr_b32 s{S_T+3}, s{S_T}, 4
    s_lshl_b32 s{S_T+3}, s{S_T+3}, 11
    s_and_b32 s{S_T+4}, s{S_T}, 15
    s_lshl_b32 s{S_T+5}, s{S_T+1}, 4
    s_add_u32 s{S_T+4}, s{S_T+4}, s{S_T+5}
    s_lshl_b32 s{S_T+4}, s{S_T+4}, 5
    s_add_u32 s{S_T+3}, s{S_T+3}, s{S_T+4}
    v_lshlrev_b32 v{AD}, 13, v0
    v_add_u32 v{AD}, s{S_T+3}, v{AD}
    v_cndmask_b32 v{AD}, v{T+1}, v{AD}, vcc
    """)
    for j in range(8):
        A(f"buffer_load_ushort v{FW+j}, v{T}, s[{S_F1}:{S_F1+3}], s{S_T+2} offen")
        A(f"buffer_load_ushort v{FD+j}, v{T}, s[{S_F2}:{S_F2+3}], s{S_T+2} offen")
        if j < 7: A(f"s_add_u32 s{S_T+2}, s{S_T+2}, {64*450}")
    ltab = A.uniq(name + "_tabend"); lg = A.uniq(name + "_tabg"); lst = A.uniq(name + "_tabst")
    A(f"""
    s_lshl_b32 s{S_K}, s{S_U}, 2
    s_add_u32 s{S_K}, s{S_K}, s{S_WAVE}
    s_mov_b32 s51, s{S_K}
    s_cmp_ge_u32 s{S_K}, 784
    s_cbranch_scc1 {ltab}
    s_cmp_ge_u32 s{S_K}, 392
    s_cselect_b32 s{S_T}, 392, 0
    s_sub_u32 s{S_T}, s{S_K}, s{S_T}
    s_mul_i32 s{S_T+1}, s{S_T}, 4682
    s_lshr_b32 s{S_T+1}, s{S_T+1}, 16            ; tile = u / 14
    s_mul_i32 s{S_T+2}, s{S_T+1}, 14
    s_sub_u32 s{S_T+2}, s{S_T}, s{S_T+2}         ; kb
    s_lshl_b32 s{S_T+2}, s{S_T+2}, 5
    v_lshlrev_b32 v{T}, 3, v{G}
    v_add_u32 v{T}, s{S_T+2}, v{T}               ; k = 32 kb + 8 g
    s_cmp_ge_u32 s{S_K}, 392
    s_cbranch_scc1 {lg}
    s_lshl_b32 s{S_T+1}, s{S_T+1}, 4
    v_add_u32 v{T+1}, s{S_T+1}, v{N}
    """)
    for j in range(8): A(f"v_mov_b32 v{RH+j}, v{T+1}\nv_add_u32 v{DD+j}, {j}, v{T}")
    A(f"s_mov_b32 s{S_K2}, 0\ns_branch {lst}")
    A.label(lg)
    A(f"""
    ; G: d = 32 (T>>1) + 8 (m>>2) + 4 (T&1) + (m&3) , rho = k + j
    s_lshr_b32 s{S_T+2}, s{S_T+1}, 1
    s_lshl_b32 s{S_T+2}, s{S_T+2}, 5
    s_and_b32 s{S_T+1}, s{S_T+1}, 1
    s_lshl_b32 s{S_T+1}, s{S_T+1}, 2
    s_add_u32 s{S_T+1}, s{S_T+1}, s{S_T+2}
    v_lshrrev_b32 v{T+1}, 2, v{N}
    v_lshlrev_b32 v{T+1}, 3, v{T+1}
    v_and_b32 v{T+2}, 3, v{N}
    v_add_u32 v{T+1}, v{T+1}, v{T+2}
    v_add_u32 v{T+1}, s{S_T+1}, v{T+1}
    """)
    for j in range(8): A(f"v_mov_b32 v{DD+j}, v{T+1}\nv_add_u32 v{RH+j}, {j}, v{T}")
    A(f"s_mov_b32 s{S_K2}, 1")
    A.label(lst)
    A(f"""
    s_cmp_eq_u32 s{S_K2}, 0
    s_cselect_b32 s{S_T}, {hex(np_f(1.0))}, {hex(np_f(2.0/448))}
    s_cselect_b32 s{S_T+1}, {hex(np_f(1.0))}, {hex(np_f(1.0/448))}
    s_mov_b32 s{S_T+2}, {hex(np_f(1.0/448))}
    s_mov_b32 s{S_T+3}, {hex(np_f(-448.0))}
    s_movk_i32 s{S_T+4}, 224
    """)
    for j in range(8):
        A(f"""
        v_cmp_lt_u32 vcc, s{S_T+4}, v{RH+j}
        v_subrev_u32 v{T}, s{S_T+4}, v{RH+j}
        v_cndmask_b32 v{T}, v{RH+j}, v{T}, vcc          ; bin
        v_mov_b32 v{T+1}, 0x3e800000
        v_cndmask_b32 v{T+1}, 0, v{T+1}, vcc            ; phase
        v_mul_u32_u24 v{T+2}, v{T}, v{DD+j}
        v_cvt_f32_u32 v{T+2}, v{T+2}
        v_mul_f32 v{T+3}, s{S_T+2}, v{T+2}
        v_floor_f32 v{T+3}, v{T+3}
        v_fma_f32 v{T+2}, v{T+3}, s{S_T+3}, v{T+2}
        v_fma_f32 v{T+2}, v{T+2}, s{S_T+2}, v{T+1}
        v_cos_f32 v{V+j}, v{T+2}
        v_cmp_eq_u32 vcc, 0, v{RH+j}
        v_cmp_eq_u32 s[{S_PT}:{S_PT+1}], s{S_T+4}, v{RH+j}
        s_or_b64 vcc, vcc, s[{S_PT}:{S_PT+1}]
        v_mov_b32 v{T+4}, s{S_T}
        v_mov_b32 v{T+5}, s{S_T+1}
        v_cndmask_b32 v{T+4}, v{T+4}, v{T+5}, vcc
        v_mul_f32 v{V+j}, v{V+j}, v{T+4}
        """)
    for p in range(4): A(f"v_cvt_pk_bf16_f32 v{W+p}, v{V+2*p}, v{V+2*p+1}")
    A.label(ltab)
    assert L.GI == L.FI + 392 * 1024
    srd(A, S_A, S_WS, L.FI, 2 * 392 * 1024)
    A(f"""
    s_lshl_b32 s{S_T}, s51, 10
    buffer_store_dwordx4 {v(W,4)}, v{LR}, s[{S_A}:{S_A+3}], s{S_T} offen
    s_waitcnt vmcnt(1)
    """)
    for j in range(8):
        A(f"""
        v_lshlrev_b32 v{FW+j}, 16, v{FW+j}
        v_lshlrev_b32 v{FD+j}, 16, v{FD+j}
        v_mul_f32 v{FW+j}, {hex(np_f(2.0**-11))}, v{FW+j}
        v_mul_f32 v{FD+j}, {hex(np_f(2.0**-11))}, v{FD+j}
        v_cvt_pk_bf16_f32 v{FW+j}, v{FW+j}, v{FD+j}
        """)
    srd(A, S_A, S_WS, L.WT, 225 * 8192)
    A(f"""
    buffer_store_dwordx4 {v(FW,4)}, v{AD}, s[{S_A}:{S_A+3}], 0 offen
    buffer_store_dwordx4 {v(FW+4,4)}, v{AD}, s[{S_A}:{S_A+3}], 0 offen offset:16
    s_add_u32 s{S_I}, s{S_I}, 1
    s_cmp_lt_u32 s{S_I}, 4
    s_cbranch_scc1 {loop}
    """)
    for i in range(4): A(f"v_mov_b32 v{W+i}, -1")
    for (base, size) in ((L.MI + L.LS + L.MB, 64 * L.MB), (L.MX + L.LS + L.MB, 64 * L.MB), (L.PBUF + L.LS, L.PB_SZ), (L.ST, 64 * 4096)):
        fill_store(A, S_B, base, size, S_J, 64, W, T)
    A("s_waitcnt vmcnt(0)")

def ln_regs(A, RAW, XF, T):
    for i in range(28):
        A(f"v_lshlrev_b32 v{XF+2*i}, 16, v{RAW+i}\nv_and_b32 v{XF+2*i+1}, 0xffff0000, v{RAW+i}")
    A(f"v_pk_add_f32 {v(T,2)}, {v(XF,2)}, {v(XF+2,2)}\nv_pk_add_f32 {v(T+2,2)}, {v(XF+4,2)}, {v(XF+6,2)}")
    for i in range(4, 28, 2):
        A(f"v_pk_add_f32 {v(T,2)}, {v(T,2)}, {v(XF+2*i,2)}\nv_pk_add_f32 {v(T+2,2)}, {v(T+2,2)}, {v(XF+2*i+2,2)}")
    A(f"v_pk_add_f32 {v(T,2)}, {v(T,2)}, {v(T+2,2)}\nv_add_f32 v{T}, v{T}, v{T+1}")
    dpp_allred8(A, "v_add_f32", T, T + 1)
    A(f"v_mul_f32 v{T}, {hex(np_f(-1.0/448))}, v{T}\nv_mov_b32 v{T+1}, v{T}")
    for i in range(28):
        A(f"v_pk_add_f32 {v(XF+2*i,2)}, {v(XF+2*i,2)}, {v(T,2)}")
    A(f"v_pk_mul_f32 {v(T+2,2)}, {v(XF,2)}, {v(XF,2)}\nv_pk_mul_f32 {v(T+4,2)}, {v(XF+2,2)}, {v(XF+2,2)}")
    for i in range(2, 28, 2):
        A(f"v_pk_fma_f32 {v(T+2,2)}, {v(XF+2*i,2)}, {v(XF+2*i,2)}, {v(T+2,2)}")
        A(f"v_pk_fma_f32 {v(T+4,2)}, {v(XF+2*i+2,2)}, {v(XF+2*i+2,2)}, {v(T+4,2)}")
    A(f"v_pk_add_f32 {v(T+2,2)}, {v(T+2,2)}, {v(T+4,2)}\nv_add_f32 v{T}, v{T+2}, v{T+3}")
    dpp_allred8(A, "v_add_f32", T, T + 1)
    A(f"""
    v_mov_b32 v{T+1}, {hex(np_f(1e-5))}
    v_fmac_f32 v{T+1}, {hex(np_f(1.0/448))}, v{T}
    v_rsq_f32 v{T}, v{T+1}
    s_nop 0
    v_mov_b32 v{T+1}, v{T}
    """)
    for i in range(28):
        A(f"v_pk_mul_f32 {v(XF+2*i,2)}, {v(XF+2*i,2)}, {v(T,2)}")
    for i in range(28):
        A(f"v_cvt_pk_bf16_f32 v{RAW+i}, v{XF+2*i}, v{XF+2*i+1}")
```

```python
from asm import *
import layout as L

WS_SLOT = 96; DBG_SLOT = 88
SPIN_MAX = 400000
TEAM = 30
S_WL = 76
S_MX = 80
S_FL = 84
S_RDY = 78; S_UFO = 79
PROF = L.TB + (1 << 19)

def srd(A, r, base_lo, base_hi, off, size):
    A(f"s_add_u32 s{r}, s{base_lo}, {off}")
    A(f"s_addc_u32 s{r+1}, s{base_hi}, 0")
    A(f"s_mov_b32 s{r+2}, {size}")
    A(f"s_mov_b32 s{r+3}, 0x20000")

S_WS = 4
S_W = 8
S_M = 12
S_P = 16
S_X = 20
S_U = 24
S_STEP = 30; S_MOFF = 31; S_POFF = 32; S_XOFF = 33; S_SPIN = 34; S_ROLE = 35; S_WAVE = 36; S_SLOW = 37
S_T = 38
S_MNEXT = 48; S_UOFF = 49
S_XV = 50
S_MASK = 54
S_T0 = 56
S_CT = 60
S_KB = 62; S_KT = 63

NSTAMP = 8
S_ST = 64
ROLEBIT = [0]
SREG = [list(range(248, 256))]
def stamp(A, prof, i):
    if OPT['sd'] >> (ROLEBIT[0] + i) & 1: A(f"s_sleep {OPT['sdn']}")
    if prof == 2:
        A(f"""
        s_memtime s[72:73]
        s_waitcnt lgkmcnt(0)
        s_sub_u32 s73, s72, s74
        s_mov_b32 s74, s72
        s_add_u32 s{S_ST+i}, s{S_ST+i}, s73
        """)
    if prof == 3:
        A(f"""
        s_mov_b32 m0, s{S_STEP}
        s_memrealtime s[72:73]
        s_waitcnt lgkmcnt(0)
        v_writelane_b32 v{248+i}, s72, m0
        """)
    if prof == 4:
        A(f"s_memrealtime s[{88+2*i}:{89+2*i}]")
def stamp_flush(A, prof, n):
    if prof != 4: return
    A(f"s_waitcnt lgkmcnt(0)\ns_mov_b32 m0, s{S_STEP}\ns_nop 0")
    for i in range(n): A(f"v_writelane_b32 v{SREG[0][i]}, s{88+2*i}, m0")
def stamp_init(A, prof):
    if prof != 2: return
    for i in range(NSTAMP): A(f"s_mov_b32 s{S_ST+i}, 0")
    A("s_memtime s[72:73]\ns_waitcnt lgkmcnt(0)\ns_mov_b32 s74, s72")

def stream(A, mf, fill):
    for x in fill.get(-1, []): A(x)
    for i, m in enumerate(mf):
        A(m)
        for x in fill.get(i, []): A(x)

def store_handoff(A, name, ins):
    l1 = A.uniq(name + "_slow"); l2 = A.uniq(name + "_sd")
    A(f"s_cmp_lg_u32 s{S_SLOW}, 0\ns_cbranch_scc1 {l1}")
    A(ins)
    A.label(l2)
    return (l1, l2, ins)
def handoff_tail(A, t):
    l1, l2, ins = t
    A.label(l1)
    A(ins + " sc1")
    A(f"s_branch {l2}")
def team_mode_issue(A, vt, var):
    A(f"s_add_u32 s{S_CT}, s{S_WL}, {L.CT}\ns_addc_u32 s{S_CT+1}, s{S_WL+1}, 0\nv_mov_b32 v{var}, 0")
    A(f"global_load_dword v{vt}, v{var}, s[{S_CT}:{S_CT+1}] sc0 sc1")
def team_mode(A, name, vt, var):
    lp = A.uniq(name + "_tm"); ok = A.uniq(name + "_tk")
    A(f"""
    {lp}:
    v_readfirstlane_b32 s{S_SLOW}, v{vt}
    s_and_b32 s{S_T}, s{S_SLOW}, 0xffff
    s_cmp_ge_u32 s{S_T}, 32
    s_cbranch_scc1 {ok}
    s_add_u32 s{S_SPIN}, s{S_SPIN}, 1
    s_cmp_lt_u32 s{S_SPIN}, {SPIN_MAX}
    s_cbranch_scc0 {name}_end
    global_load_dword v{vt}, v{var}, s[{S_CT}:{S_CT+1}] sc0 sc1
    s_waitcnt vmcnt(0)
    s_branch {lp}
    {ok}:
    s_lshr_b32 s{S_SLOW}, s{S_SLOW}, 16
    """)

OPT = dict(ms=1, md=0, vs=1, vd=0, ps=1, pd=0,
           noxk=0, noxv=0, nopt=1, ext=1, wst=0, xv0=1, xvs=1,
           qs=0, qs2=0, vsl=0, vps=0, ppt=1, mpt=0, sd=0, sdn=1, qw=5, xpt=4, vpt=0, er=3,
           bar=8, vw=8, chk1=1, nomax=1, lim=48, wp=0, ilr=1, cut=0, st1=0)
def delay(A, n):
    while n > 0:
        k = min(n, 16); A(f"s_nop {k-1}"); n -= k

def poll(A, name, slots, issue, regs, tmp, success, dly, join):
    nl = len(issue(0))
    lp = A.uniq(name + "_pl")
    oks = [A.uniq(name + "_ok") for _ in range(slots)]
    for i in range(slots):
        for x in issue(i): A(x)
        if i + 1 < slots: delay(A, dly)
    A.label(lp)
    for i in range(slots):
        A(f"s_waitcnt vmcnt({nl*(slots-1)})")
        r = list(regs(i)); k = 0; cur = []
        lvl = r; t_ = tmp
        while len(lvl) > 1:
            nxt = []
            while len(lvl) >= 3:
                A(f"v_max3_u32 v{t_}, v{lvl[0]}, v{lvl[1]}, v{lvl[2]}"); nxt.append(t_); t_ += 1; lvl = lvl[3:]
            if len(lvl) == 2 and not nxt:
                A(f"v_max_u32 v{t_}, v{lvl[0]}, v{lvl[1]}"); nxt.append(t_); t_ += 1; lvl = []
            lvl = nxt + lvl
        A(f"v_cmp_eq_u32 vcc, -1, v{lvl[0]}")
        A(f"s_cbranch_vccz {oks[i]}")
        for x in issue(i): A(x)
        if i == slots - 1:
            A(f"""
            s_add_u32 s{S_SPIN}, s{S_SPIN}, 1
            s_cmp_lt_u32 s{S_SPIN}, {SPIN_MAX}
            s_cbranch_scc0 {name}_end
            """)
        delay(A, dly)
    A(f"s_branch {lp}")
    for i in range(slots):
        A.label(oks[i])
        success(i)
        if i + 1 < slots: A(f"s_branch {join}")
    A.label(join)

def sentinel_check(A, r, tmp):
    lvl = list(r); t_ = tmp
    while len(lvl) > 1:
        nxt = []
        while len(lvl) >= 3:
            A(f"v_max3_u32 v{t_}, v{lvl[0]}, v{lvl[1]}, v{lvl[2]}"); nxt.append(t_); t_ += 1; lvl = lvl[3:]
        if len(lvl) == 2 and not nxt:
            A(f"v_max_u32 v{t_}, v{lvl[0]}, v{lvl[1]}"); nxt.append(t_); t_ += 1; lvl = []
        lvl = nxt + lvl
    A(f"v_cmp_eq_u32 vcc, -1, v{lvl[0]}")
def poll_er(A, name, issue, regs, tmp, success, first=None):
    lp = A.uniq(name + "_pl"); ok = [A.uniq(name + "_ok"), A.uniq(name + "_ok")]; join = A.uniq(name + "_pj")
    for x in issue(0): A(x)
    if first: first()
    A.label(lp)
    for i in range(2):
        A("s_waitcnt vmcnt(0)")
        for x in issue(1 - i): A(x)
        sentinel_check(A, regs(i), tmp)
        A(f"s_cbranch_vccz {ok[i]}")
    A(f"""
    s_add_u32 s{S_SPIN}, s{S_SPIN}, 1
    s_cmp_lt_u32 s{S_SPIN}, {SPIN_MAX}
    s_cbranch_scc1 {lp}
    s_branch {name}_end
    """)
    A.label(ok[1]); success(1); A(f"s_branch {join}")
    A.label(ok[0]); success(0)
    A.label(join)

def poll_m(A, name, slotregs, tmp, vMP0, vMP1, slots, dly, prof=0, er=False):
    def issue(i):
        return [f"buffer_load_dwordx4 {v(slotregs[i],4)}, v{vMP0}, s[{S_M}:{S_M+3}], s{S_MOFF} offen sc1",
                f"buffer_load_dwordx4 {v(slotregs[i]+4,4)}, v{vMP1}, s[{S_M}:{S_M+3}], s{S_MOFF} offen sc1"]
    def success(i):
        A(f"ds_write_b128 v{vMP0}, {v(slotregs[i],4)}")
        A(f"ds_write_b128 v{vMP1}, {v(slotregs[i]+4,4)}")
    if er: poll_er(A, name, issue, lambda i: range(slotregs[i], slotregs[i] + 8), tmp, success)
    else: poll(A, name, slots, issue, lambda i: range(slotregs[i], slotregs[i] + 8), tmp, success, dly, A.uniq(name + "_mj"))
    stamp(A, prof, 0)
    A("s_waitcnt lgkmcnt(0)\ns_barrier")
    if prof != 4: stamp(A, prof, 1)

def common_addr(A, vLANE, vMP0, vMP1, vLR, vIDX):
    A(f"""
    v_and_b32 v{vLANE}, 63, v0
    v_lshlrev_b32 v{vLR}, 4, v{vLANE}
    s_lshl_b32 s{S_T}, s{S_WAVE}, 10
    v_add_u32 v{vMP0}, s{S_T}, v{vLR}
    s_add_u32 s{S_T+1}, s{S_T}, 4096
    s_cmp_eq_u32 s{S_WAVE}, 3
    s_cselect_b32 s{S_T}, s{S_T}, s{S_T+1}
    v_add_u32 v{vMP1}, s{S_T}, v{vLR}
    v_and_b32 v{vIDX}, 1, v{vLANE}
    v_cmp_eq_u32 vcc, 0, v{vIDX}
    v_mov_b32 v{vIDX}, 0xeeee
    v_mov_b32 v19, 0x4444
    v_cndmask_b32 v{vIDX}, v{vIDX}, v19, vcc
    """)

class LdsTrack:
    def __init__(self): self.ops = []
    def add(self, pos, seq, tag): self.ops.append((pos, seq, tag))
    def after(self, tag, pos):
        o = sorted(x for x in self.ops if x[0] <= pos)
        last = max(i for i, x in enumerate(o) if x[2] == tag)
        return len(o) - 1 - last

def qk_role(A, name, layer, prof):
    ROLEBIT[0] = 0
    SREG[0] = [116, 117, 118, 119, 0, 19]
    LANE = 1; MP0 = 2; MP1 = 3; FR5 = 4; IDX = 5; TW = 6; TR = 7; MKA = 8
    XK0 = 12; XK1 = 13; SW = 14; SR = 15; PS = 16; T0 = 17; FR6 = 18; LR = 19
    MF = 20
    ACC = 40
    MK = ACC
    XK = 68
    PB = [100, 108]
    SA = 100; TF0 = 112; TF1 = MF
    WV = 120
    def W(nt, j):
        g = nt * 7 + j
        return a(8 * g, 8) if g < 32 else v(WV + 8 * (g - 32), 8)
    def Wq(nt, j, half):
        g = nt * 7 + j
        return a(8 * g + 4 * half, 4) if g < 32 else v(WV + 8 * (g - 32) + 4 * half, 4)
    TBASE = 8192; TWAVE = 3072; SBASE = TBASE + 4 * TWAVE; SPW = 2304
    S_K = 64
    A.label(f"{name}_qk")
    srd(A, S_W, S_WS, S_WS + 1, L.AI, L.IMG)
    srd(A, S_X, S_WL, S_WL + 1, L.XI, L.XB)
    A(f"""
    v_and_b32 v{LANE}, 63, v0
    v_lshlrev_b32 v{LR}, 4, v{LANE}
    s_mul_i32 s{S_T}, s{S_ROLE}, {28*14*1024}
    s_mul_i32 s{S_T+1}, s{S_WAVE}, {7*14*1024}
    s_add_u32 s{S_T}, s{S_T}, s{S_T+1}
    """)
    for j, dk in enumerate((0, 4, 1, 2, 3, 5, 6)):
        A(f"""
        s_add_u32 s{S_T+1}, s{S_WAVE}, {dk}
        s_sub_u32 s{S_T+2}, s{S_T+1}, 7
        s_cmp_ge_u32 s{S_T+1}, 7
        s_cselect_b32 s{S_T+1}, s{S_T+2}, s{S_T+1}
        s_lshl_b32 s{S_K+j}, s{S_T+1}, 11
        """)
    for nt in range(7):
        for j in range(7):
            A(f"s_add_u32 s{S_T+1}, s{S_T}, s{S_K+j}")
            for hf in range(2):
                A(f"buffer_load_dwordx4 {Wq(nt,j,hf)}, v{LR}, s[{S_W}:{S_W+3}], s{S_T+1} offen offset:{1024*hf}")
            if nt * 7 + j >= 24: A("s_waitcnt vmcnt(48)")
        A(f"s_add_u32 s{S_T}, s{S_T}, {14*1024}")
    A(f"""
    s_lshr_b32 s{S_T}, s{S_K}, 1
    v_add_u32 v{MP0}, s{S_T}, v{LR}
    s_lshr_b32 s{S_T}, s{S_K+1}, 1
    v_add_u32 v{MP1}, s{S_T}, v{LR}
    s_lshr_b32 s{S_T}, s{S_K+5}, 1
    v_add_u32 v{FR5}, s{S_T}, v{LR}
    s_lshr_b32 s{S_T}, s{S_K+6}, 1
    v_add_u32 v{FR6}, s{S_T}, v{LR}
    v_and_b32 v{IDX}, 1, v{LANE}
    v_cmp_eq_u32 vcc, 0, v{IDX}
    v_mov_b32 v{IDX}, 0xeeee
    v_mov_b32 v22, 0x4444
    v_cndmask_b32 v{IDX}, v{IDX}, v22, vcc
    v_and_b32 v20, 15, v{LANE}            ; n
    v_lshrrev_b32 v21, 4, v{LANE}         ; g
    s_mul_i32 s{S_T}, s{S_WAVE}, {TWAVE}
    s_add_u32 s{S_T}, s{S_T}, {TBASE}
    v_lshrrev_b32 v22, 2, v20
    v_lshlrev_b32 v22, 6, v22
    v_and_b32 v23, 1, v20
    v_lshl_add_u32 v22, v23, 5, v22
    v_lshl_add_u32 v22, v21, 3, v22
    v_bfe_u32 v23, v20, 1, 1
    v_lshl_add_u32 v22, v23, 1, v22
    v_add_u32 v{TW}, s{S_T}, v22
    v_lshrrev_b32 v22, 2, v20
    v_lshlrev_b32 v22, 5, v22
    v_and_b32 v23, 3, v20
    v_lshl_add_u32 v22, v23, 3, v22
    v_mul_u32_u24 v23, 384, v21
    v_add_u32 v22, v22, v23
    v_add_u32 v{TR}, s{S_T}, v22
    s_mul_i32 s{S_T+1}, s{S_WAVE}, 112
    """)
    for kp in range(2):
        for b in range(2):
            A(f"""
            v_lshlrev_b32 v22, 3, v21
            v_add_u32 v22, s{S_T+1}, v22
            v_add_u32 v22, {64*kp+32*b}, v22
            v_min_u32 v22, 440, v22
            v_lshrrev_b32 v23, 6, v22
            v_lshlrev_b32 v23, 10, v23
            v_bfe_u32 v24, v22, 4, 2
            v_lshl_add_u32 v23, v24, 8, v23
            v_bfe_u32 v24, v22, 2, 2
            v_lshl_add_u32 v23, v24, 2, v23
            v_lshrrev_b32 v24, 1, v20
            v_lshl_add_u32 v{MKA+2*kp+b}, v24, 5, v23
            """)
    A(f"""
    s_mul_i32 s{S_T+1}, s{S_WAVE}, 14
    v_add_u32 v22, s{S_T+1}, v21
    v_lshrrev_b32 v23, 2, v22
    v_lshlrev_b32 v23, 10, v23
    v_and_b32 v22, 3, v22
    v_lshl_add_u32 v23, v22, 8, v23
    v_lshl_add_u32 v{XK0}, v20, 4, v23
    s_lshl_b32 s{S_T+1}, s{S_ROLE}, 2
    s_add_u32 s{S_T+1}, s{S_T+1}, s{S_WAVE}
    s_lshl_b32 s{S_T+1}, s{S_T+1}, 2
    v_add_u32 v22, s{S_T+1}, v{LANE}
    v_lshlrev_b32 v22, 7, v22
    v_add_u32 v22, {28*1024}, v22
    v_mov_b32 v23, 0x40000000
    v_cmp_gt_u32 vcc, 4, v{LANE}
    v_cndmask_b32 v{XK1}, v23, v22, vcc
    v_mul_u32_u24 v22, 576, v21
    v_lshl_add_u32 v22, v20, 2, v22
    s_mul_i32 s{S_T+1}, s{S_WAVE}, {SPW}
    s_add_u32 s{S_T+1}, s{S_T+1}, {SBASE}
    v_add_u32 v{SW}, s{S_T+1}, v22
    v_and_b32 v22, 1, v21
    v_mul_u32_u24 v23, 384, v22
    s_mul_i32 s{S_T+1}, s{S_WAVE}, 576
    s_add_u32 s{S_T+1}, s{S_T+1}, {SBASE}
    v_add_u32 v23, s{S_T+1}, v23
    v_lshlrev_b32 v24, 3, v20
    v_and_b32 v25, 7, v20
    v_lshlrev_b32 v25, 3, v25
    v_add_u32 v25, 128, v25
    v_cmp_gt_u32 vcc, 2, v21
    v_cndmask_b32 v24, v25, v24, vcc
    v_add_u32 v{SR}, v23, v24
    s_lshl_b32 s{S_T+2}, s{S_ROLE}, 9
    s_lshl_b32 s{S_T+3}, s{S_WAVE}, 7
    s_add_u32 s{S_T+2}, s{S_T+2}, s{S_T+3}
    v_and_b32 v22, 1, v21
    v_lshlrev_b32 v22, 5, v22                        ; 32 (g&1)
    v_bfe_u32 v23, v20, 2, 1
    v_lshl_add_u32 v23, v23, 6, v22
    v_and_b32 v24, 1, v20
    v_lshl_add_u32 v23, v24, 4, v23
    v_bfe_u32 v24, v20, 1, 1
    v_lshl_add_u32 v23, v24, 3, v23
    v_bfe_u32 v24, v20, 3, 1
    v_lshl_add_u32 v23, v24, 2, v23
    v_add_u32 v23, s{S_T+2}, v23
    s_lshl_b32 s{S_T+2}, s{S_ROLE}, 8
    s_lshl_b32 s{S_T+3}, s{S_WAVE}, 6
    s_add_u32 s{S_T+2}, s{S_T+2}, s{S_T+3}
    s_add_u32 s{S_T+2}, s{S_T+2}, 8192
    v_lshl_add_u32 v24, v20, 2, v22
    v_add_u32 v24, s{S_T+2}, v24
    v_cmp_gt_u32 vcc, 2, v21
    v_cndmask_b32 v{PS}, v24, v23, vcc
    v_cmp_gt_u32 s[{S_T+4}:{S_T+5}], 8, v20
    s_or_b64 s[{S_MASK}:{S_MASK+1}], vcc, s[{S_T+4}:{S_T+5}]
    v_mov_b32 v24, 0x40000000
    v_cndmask_b32 v{PS}, v24, v{PS}, s[{S_MASK}:{S_MASK+1}]
    v_lshlrev_b32 v22, 2, v{LANE}
    v_add_u32 v22, s{S_T}, v22
    v_mov_b32 v24, 0
    ds_write_b32 v22, v24 offset:{7*384}
    s_mov_b32 s{S_XOFF}, 0
    """)
    def xk_loads():
        l = []
        for tau in range(2):
            l.append(f"s_add_u32 s{S_KT}, s{S_XOFF}, {tau*14*1024}")
            for kp in range(2):
                for b in range(2):
                    l.append(f"buffer_load_dwordx4 {v(XK+16*kp+8*tau+4*b,4)}, v{XK0}, s[{S_X}:{S_X+3}], s{S_KT} offen offset:{2048*kp+1024*b}")
        return l
    def zero_acc():
        for i in range(14): A(f"v_mov_b64 {v(ACC+2*i,2)}, 0")
    for x in xk_loads(): A(x)
    zero_acc()
    team_mode_issue(A, T0, MF)
    A("s_waitcnt vmcnt(0) lgkmcnt(0)")
    team_mode(A, name, T0, MF)
    if prof: A(f"s_memtime s[{S_T0}:{S_T0+1}]\ns_waitcnt lgkmcnt(0)")
    stamp_init(A, prof)
    A.label(f"{name}_qk_loop")
    BAR = OPT['bar']
    def smf(nt, j, fr): return f"v_smfmac_f32_16x16x64_bf16 {v(ACC+4*nt,4)}, {v(fr,4)}, {W(nt,j)}, v{IDX}"
    def issue(i):
        return [f"buffer_load_dwordx4 {v(PB[i],4)}, v{MP0}, s[{S_M}:{S_M+3}], s{S_MOFF} offen sc1",
                f"buffer_load_dwordx4 {v(PB[i]+4,4)}, v{MP1}, s[{S_M}:{S_M+3}], s{S_MOFF} offen sc1"]
    def success(i):
        stamp(A, prof, 0)
        wr = [f"ds_write_b128 v{MP0}, {v(PB[i],4)}", f"ds_write_b128 v{MP0}, {v(PB[i]+4,4)} offset:4096"]
        rd = [f"ds_read_b128 {v(MF,4)}, v{MP0} offset:1024", f"ds_read_b128 {v(MF+4,4)}, v{MP0} offset:2048",
              f"ds_read_b128 {v(MF+8,4)}, v{MP0} offset:3072", f"ds_read_b128 {v(MF+12,4)}, v{FR5}", f"ds_read_b128 {v(MF+16,4)}, v{FR6}"]
        wp = OPT['wp']
        if wp == 0: A(wr[0]); A(wr[1])
        if wp == 1: A(wr[0])
        n = 0
        for j in range(2):
            for nt in range(7):
                A(smf(nt, j, PB[i] + 4 * j)); n += 1
                if wp == 1 and n == 1: A(wr[1])
                if wp == 2 and n <= 2: A(wr[n - 1])
                if wp == 3 and n in (1, 3): A(wr[n >> 1])
                if n == OPT['xpt']: A(f"buffer_load_dword v{T0}, v{XK1}, s[{S_X}:{S_X+3}], s{S_XOFF} offen")
                if n == BAR:
                    A("s_waitcnt lgkmcnt(0)\ns_barrier")
                    stamp(A, prof, 1)
                    if not OPT['ilr']:
                        for x in rd: A(x)
                if OPT['ilr'] and BAR <= n < BAR + 5: A(rd[n - BAR])
    chk = (lambda i: [PB[i], PB[i] + 4]) if OPT['chk1'] else (lambda i: range(PB[i], PB[i] + 8))
    poll_er(A, name, issue, chk, MF, success)
    assert 0 < OPT['xpt'] <= 14
    mf = []; fill = {}; lt = LdsTrack()
    def F(i, *ins): fill.setdefault(i, []).extend(ins)
    def D(i, ins, tag):
        F(i, ins); lt.add(i, len(lt.ops), tag)
    for nt in range(7):
        for j in range(2, 7): mf.append(smf(nt, j, MF + 4 * (j - 2)))
    assert BAR + 5 <= 14
    vfill = {}
    def V(i, ins):
        assert i not in vfill, i
        vfill[i] = ins
    for k in range(5): F(k - 1, f"s_waitcnt lgkmcnt({4-k})")
    def epi(nt):
        d = ACC + 4 * nt
        return [f"v_add_f32 v{d}, v{d}, v{d+1}", f"v_add_f32 v{d+2}, v{d+2}, v{d+3}", f"v_cvt_pk_bf16_f32 v{d}, v{d}, v{d+2}",
                f"ds_write_b16 v{TW}, v{d} offset:{384*nt}", f"ds_write_b16_d16_hi v{TW}, v{d} offset:{384*nt+4}"]
    for nt in range(6):
        b = 5 * (nt + 1); e = epi(nt)
        V(b + 1, e[0]); V(b + 2, e[1]); V(b + 3, e[2])
        D(b + 4, e[3], f"w{nt}")
        if nt < 5: D(b + 5, e[4], f"w{nt}")
    F(OPT['vw'], "s_waitcnt vmcnt(1)")
    for p_, i_ in zip([9, 10, 14, 15], range(4)): V(p_, f"v_mov_b64 {v(SA+2*i_,2)}, 0")
    assert OPT['vw'] < 9
    def mk(kp):
        l = []
        for b in range(2):
            l.append(f"ds_read2_b32 {v(MK+8*kp+4*b,2)}, v{MKA+2*kp+b} offset0:0 offset1:4")
            l.append(f"ds_read2_b32 {v(MK+8*kp+4*b+2,2)}, v{MKA+2*kp+b} offset0:1 offset1:5")
        return l
    for p_, x in zip([16, 17, 18, 21], mk(0)): D(p_, x, "mk0")
    D(26, f"ds_read_b64_tr_b16 {v(TF0,2)}, v{TR} offset:0", "tf0")
    D(27, f"ds_read_b64_tr_b16 {v(TF0+2,2)}, v{TR} offset:128", "tf0")
    mk1 = mk(1)
    for p_, x in zip([28, 31, 32, 33], mk1): D(p_, x, "mk1")
    for p_, x in vfill.items(): F(p_, x)
    if OPT['cut']:
        mf = [("s_nop 0" if (i % 5) >= 5 - OPT['cut'] else m) for i, m in enumerate(mf)]
    stream(A, mf, fill)
    stamp(A, prof, 2)
    def smf_s(kp, tau):
        b_ = v(XK + 16 * kp + 8 * tau, 8) if tau < 2 else v(MK + 8 * kp, 8)
        return f"v_smfmac_f32_16x16x64_bf16 {v(SA+4*tau,4)}, {v(TF1 if kp else TF0,4)}, {b_}, v{IDX}"
    e = epi(6); e5 = epi(5)
    A(f"s_waitcnt lgkmcnt({lt.after('tf0', 99)})")
    A(f"v_mov_b64 {v(SA+8,2)}, 0")
    A(smf_s(0, 0))
    A(e5[4])
    A(f"v_mov_b64 {v(SA+10,2)}, 0")
    A(smf_s(0, 1))
    for x in e: A(x)
    A(f"""
    ds_read_b64_tr_b16 {v(TF1,2)}, v{TR} offset:1536
    ds_read_b64_tr_b16 {v(TF1+2,2)}, v{TR} offset:{1536+128}
    {smf_s(0,2)}
    s_waitcnt lgkmcnt(0)
    {smf_s(1,0)}
    {smf_s(1,1)}
    {smf_s(1,2)}
    """)
    stamp(A, prof, 3)
    for tau in range(3):
        d = SA + 4 * tau
        A(f"""
        v_add_f32 v{d}, v{d}, v{d+1}
        v_add_f32 v{d+2}, v{d+2}, v{d+3}
        ds_write2_b32 v{SW}, v{d}, v{d+2} offset0:{16*tau} offset1:{16*tau+96}
        """)
    A("s_waitcnt lgkmcnt(0)\ns_barrier")
    stamp(A, prof, 4)
    R = MF
    for w in range(4):
        A(f"ds_read_b64 {v(R+2*w,2)}, v{SR} offset:{w*SPW}")
    X0 = R + 8; X1 = R + 9; MX = R + 10; T = R + 11; E0 = R + 12; E1 = R + 13
    A(f"""
    s_waitcnt lgkmcnt(2)
    v_add_f32 v{R}, v{R}, v{R+2}
    v_add_f32 v{R+1}, v{R+1}, v{R+3}
    s_waitcnt lgkmcnt(0)
    v_add_f32 v{R+4}, v{R+4}, v{R+6}
    v_add_f32 v{R+5}, v{R+5}, v{R+7}
    v_add_f32 v{X0}, v{R}, v{R+4}
    v_add_f32 v{X1}, v{R+1}, v{R+5}
    """)
    def allred(op, last):
        A(f"""
        {op} v{MX}, v{MX}, v{MX} row_ror:8 row_mask:0xf bank_mask:0xf
        {op} v{MX}, v{MX}, v{MX} row_ror:4 row_mask:0xf bank_mask:0xf
        {op} v{MX}, v{MX}, v{MX} row_ror:2 row_mask:0xf bank_mask:0xf
        {op} v{MX}, v{MX}, v{MX} row_ror:1 row_mask:0xf bank_mask:0xf
        v_mov_b32 v{T}, v{MX}
        v_permlane32_swap_b32 v{MX}, v{T}
        {last}
        """)
    def true_max():
        A(f"v_max_f32 v{MX}, v{X0}, v{X1}")
        allred("v_max_f32", f"v_max_f32 v{MX}, v{MX}, v{T}")
        A(f"""
        v_sub_f32 v{X0}, v{X0}, v{MX}
        v_sub_f32 v{X1}, v{X1}, v{MX}
        v_exp_f32 v{E0}, v{X0}
        v_exp_f32 v{E1}, v{X1}
        """)
    lslow = A.uniq(name + "_mx"); lback = A.uniq(name + "_mxb")
    if OPT['nomax']:
        A(f"""
        v_max_f32 v{MX}, |v{X0}|, |v{X1}|
        v_cmp_lt_f32 vcc, {hex(np_f32(OPT['lim']))}, v{MX}
        v_exp_f32 v{E0}, v{X0}
        v_exp_f32 v{E1}, v{X1}
        s_cbranch_vccnz {lslow}
        {lback}:
        """)
    else: true_max()
    A(f"v_add_f32 v{MX}, v{E0}, v{E1}")
    allred("v_add_f32", f"v_fmac_f32 v{MX}, 0x3e800000, v{T}")
    A(f"""
    v_rcp_f32 v{MX}, v{MX}
    v_mul_f32 v{E0}, v{E0}, v{MX}
    v_mul_f32 v{E1}, v{E1}, v{MX}
    v_cvt_pk_bf16_f32 v{E0}, v{E0}, v{E1}
    v_min_u32 v{E0}, -2, v{E0}
    """)
    ho = store_handoff(A, name, f"buffer_store_dword v{E0}, v{PS}, s[{S_P}:{S_P+3}], s{S_POFF} offen")
    stamp(A, prof, 5)
    A(f"s_add_u32 s{S_XOFF}, s{S_XOFF}, {28*1024}")
    zero_acc()
    if OPT['qw'] & 1: A("s_waitcnt vmcnt(0)")
    if not OPT['noxk']:
        for x in xk_loads(): A(x)
    if OPT['qw'] & 2: A("s_waitcnt vmcnt(0)")
    stamp_flush(A, prof, 6)
    A(f"""
    s_add_u32 s{S_MOFF}, s{S_MOFF}, {L.MB}
    s_add_u32 s{S_POFF}, s{S_POFF}, {L.PB}
    s_add_u32 s{S_STEP}, s{S_STEP}, 1
    s_cmp_lt_u32 s{S_STEP}, 63
    s_cbranch_scc1 {name}_qk_loop
    """)
    if prof: prof_out(A, name, layer, prof)
    A(f"s_branch {name}_end")
    handoff_tail(A, ho)
    if OPT['nomax']:
        A.label(lslow)
        true_max()
        A(f"s_branch {lback}")

def np_f32(x):
    import struct
    return struct.unpack("<I", struct.pack("<f", float(x)))[0]

def prof_out(A, name, layer, prof):
    A(f"""
    s_add_u32 s{S_CT}, s{S_WS}, {PROF - 8192}
    s_addc_u32 s{S_CT+1}, s{S_WS+1}, 0
    s_memtime s[{S_T0+2}:{S_T0+3}]
    s_waitcnt lgkmcnt(0)
    s_sub_u32 s{S_T0+2}, s{S_T0+2}, s{S_T0}
    s_lshl_b32 s{S_T}, s{S_ROLE}, 2
    s_add_u32 s{S_T}, s{S_T}, s{S_WAVE}
    s_lshl_b32 s{S_T}, s{S_T}, 3
    s_add_u32 s{S_T}, s{S_T}, 8192
    v_mov_b32 v1, s{S_T}
    v_mov_b32 v2, s{S_T0+2}
    v_mov_b32 v3, s{S_SPIN}
    s_mov_b64 exec, 1
    global_store_dwordx2 v1, v[2:3], s[{S_CT}:{S_CT+1}]
    s_waitcnt vmcnt(0)
    """)
    if prof >= 3:
        A(f"s_sub_u32 s{S_T}, s{S_T}, 8192\ns_lshl_b32 s{S_T}, s{S_T}, 8\ns_mov_b64 exec, -1\nv_mbcnt_lo_u32_b32 v1, -1, 0\nv_mbcnt_hi_u32_b32 v1, -1, v1\nv_lshlrev_b32 v1, 2, v1\nv_add_u32 v1, s{S_T}, v1")
        A(f"s_add_u32 s{S_T+2}, s{S_WS}, {L.TB}\ns_addc_u32 s{S_T+3}, s{S_WS+1}, 0")
        if prof == 4:
            A(f"v_mbcnt_lo_u32_b32 v2, -1, 0\nv_mbcnt_hi_u32_b32 v2, -1, v2\nv_lshlrev_b32 v2, 2, v2\nv_add_u32 v2, s{S_T}, v2")
            for i in range(6): A(f"global_store_dword v2, v{SREG[0][i]}, s[{S_T+2}:{S_T+3}] offset:{256*i}")
        else:
            for i in range(8): A(f"global_store_dword v1, v{248+i}, s[{S_T+2}:{S_T+3}] offset:{256*i}")
        A("s_waitcnt vmcnt(0)")
    if prof == 2:
        A(f"s_sub_u32 s{S_T}, s{S_T}, 8192\ns_lshl_b32 s{S_T}, s{S_T}, 2\ns_add_u32 s{S_T}, s{S_T}, 10240\nv_mov_b32 v1, s{S_T}")
        for i in range(NSTAMP): A(f"v_mov_b32 v{2+i}, s{S_ST+i}")
        A(f"global_store_dwordx4 v1, v[2:5], s[{S_CT}:{S_CT+1}]\nglobal_store_dwordx4 v1, v[6:9], s[{S_CT}:{S_CT+1}] offset:16\ns_waitcnt vmcnt(0)")
    A("s_mov_b64 exec, -1")

def vo_role(A, name, layer, prof):
    ROLEBIT[0] = 8
    SREG[0] = [152, 153, 155, 156, 157, 158]
    LANE = 1; MP0 = 2; MP1 = 3; LR = 4; IDX = 5; PX = 6; PM = 7; XVA = 8; US = 9; OW = 10; OR = 11; MS = 12; WL = 13; XT = 14; T0 = 15
    MF = 16
    UD = 44
    UB = 52
    XV = 68
    PR = 100
    OA = 112
    WT = 120
    MP = 136
    FLA = 146; UFA = 147; FLD = 148; IDX2 = IDX; MXA = 154
    WV = 160
    WBASE = 16384; OBASE = 8192; OWS = 1024
    ldsg = []
    for c in range(8):
        if c & 1: ldsg.append((c, 3))
        ldsg.append((c, 6))
    idx = {}; n = 0
    for c in range(8):
        for k in range(7):
            if (c, k) not in ldsg:
                idx[(c, k)] = n; n += 1
    assert n == 44
    def Wr(c, k, hf=None):
        g = idx[(c, k)]
        o = 8 * g + (0 if hf is None else 4 * hf); nn = 8 if hf is None else 4
        return a(o, nn) if g < 32 else v(WV + o - 256, nn)
    A.label(f"{name}_vo")
    srd(A, S_W, S_WS, S_WS + 1, L.VI, L.IMG)
    srd(A, S_X, S_WL, S_WL + 1, L.XV, L.XV_SZ)
    srd(A, S_FL, S_WL, S_WL + 1, L.FL - 512, L.CT_SZ - 4096 + 512)
    A(f"""
    s_sub_u32 s{S_ROLE}, s{S_ROLE}, 16          ; c
    v_and_b32 v{LANE}, 63, v0
    v_lshlrev_b32 v{LR}, 4, v{LANE}
    s_mul_i32 s{S_T+2}, s{S_WAVE}, {24*1024}
    s_add_u32 s{S_T+2}, s{S_T+2}, {WBASE}
    v_add_u32 v{WL}, s{S_T+2}, v{LR}
    """)
    nload = 0
    for c in range(8):
        hl, t = c >> 1, c & 1
        A(f"""
        s_lshl_b32 s{S_T}, s{S_WAVE}, 2
        s_add_u32 s{S_T}, s{S_T}, {hl}
        s_mul_i32 s{S_T}, s{S_T}, 28
        s_lshl_b32 s{S_T+1}, s{S_ROLE}, 1
        s_add_u32 s{S_T}, s{S_T}, s{S_T+1}
        s_add_u32 s{S_T}, s{S_T}, {t}
        s_mul_i32 s{S_T}, s{S_T}, {14*1024}
        """)
        for k in range(7):
            if (c, k) in ldsg:
                j = ldsg.index((c, k))
                A(f"""
                s_add_u32 s{S_T+3}, s{S_T+2}, {2048*j}
                s_mov_b32 m0, s{S_T+3}
                buffer_load_dwordx4 v{LR}, s[{S_W}:{S_W+3}], s{S_T} offen lds
                buffer_load_dwordx4 v{LR}, s[{S_W}:{S_W+3}], s{S_T} offen offset:1024 lds
                """)
            else:
                for hf in range(2):
                    A(f"buffer_load_dwordx4 {Wr(c,k,hf)}, v{LR}, s[{S_W}:{S_W+3}], s{S_T} offen offset:{1024*hf}")
            if c * 7 + k >= 24: A("s_waitcnt vmcnt(48)")
            A(f"s_add_u32 s{S_T}, s{S_T}, 2048")
    common_addr(A, LANE, MP0, MP1, LR, IDX)
    A(f"""
    v_and_b32 v20, 15, v{LANE}            ; n
    v_lshrrev_b32 v21, 4, v{LANE}         ; g
    v_lshrrev_b32 v22, 2, v20
    v_and_b32 v23, 3, v20
    v_lshlrev_b32 v23, 4, v23             ; 16 (n&3)
    v_lshl_add_u32 v24, v22, 7, v23
    v_and_b32 v25, 1, v21
    v_lshl_add_u32 v24, v25, 6, v24
    v_lshrrev_b32 v25, 1, v21
    v_lshl_add_u32 v24, v25, 9, v24
    s_lshl_b32 s{S_T}, s{S_WAVE}, 11
    v_add_u32 v{PX}, s{S_T}, v24
    v_and_b32 v24, 1, v20
    v_lshlrev_b32 v24, 8, v24
    v_lshl_add_u32 v24, v25, 9, v24
    v_lshrrev_b32 v22, 1, v20
    v_lshl_add_u32 v24, v22, 5, v24
    v_and_b32 v22, 1, v21
    v_lshl_add_u32 v24, v22, 4, v24
    s_lshl_b32 s{S_T}, s{S_WAVE}, 10
    s_add_u32 s{S_T}, s{S_T}, 8192
    v_add_u32 v{PM}, s{S_T}, v24
    s_mul_i32 s{S_T}, s{S_WAVE}, {4*28}
    s_lshl_b32 s{S_T+1}, s{S_ROLE}, 1
    s_add_u32 s{S_T}, s{S_T}, s{S_T+1}
    s_lshl_b32 s{S_T}, s{S_T}, 10
    v_add_u32 v{XVA}, s{S_T}, v{LR}
    v_lshrrev_b32 v22, 4, v0
    v_mul_u32_u24 v22, {28*1024}, v22
    v_and_b32 v23, 15, v0
    v_lshl_add_u32 v22, v23, 7, v22
    s_lshl_b32 s{S_T}, s{S_ROLE}, 11
    s_add_u32 s{S_T}, s{S_T}, {16*28*1024}
    v_add_u32 v{XT}, s{S_T}, v22
    s_mul_i32 s{S_T}, s{S_WAVE}, {OWS}
    s_add_u32 s{S_T}, s{S_T}, {OBASE}
    v_lshrrev_b32 v22, 1, v21
    v_lshlrev_b32 v22, 6, v22
    v_and_b32 v23, 1, v21
    v_lshl_add_u32 v22, v23, 4, v22
    v_add_u32 v22, v22, v20
    v_lshlrev_b32 v22, 2, v22
    v_add_u32 v{OW}, s{S_T}, v22
    v_bfe_u32 v22, v{LANE}, 3, 1          ; r&1
    v_lshlrev_b32 v24, 5, v22
    v_bfe_u32 v22, v{LANE}, 4, 1          ; (r>>1)&1
    v_lshl_add_u32 v24, v22, 4, v24
    v_and_b32 v23, 3, v{LANE}             ; p
    v_lshl_add_u32 v24, v23, 2, v24
    v_bfe_u32 v23, v{LANE}, 2, 1          ; hf
    v_lshl_add_u32 v24, v23, 1, v24
    s_lshl_b32 s{S_T}, s{S_WAVE}, 6       ; 128 t + 64 (w&1)
    v_add_u32 v24, s{S_T}, v24
    v_lshlrev_b32 v24, 2, v24
    v_add_u32 v{OR}, {OBASE}, v24
    s_lshl_b32 s{S_T}, s{S_ROLE}, 9
    s_lshl_b32 s{S_T+1}, s{S_WAVE}, 7
    s_add_u32 s{S_T}, s{S_T}, s{S_T+1}
    v_lshlrev_b32 v22, 2, v{LANE}
    v_add_u32 v22, s{S_T}, v22
    v_mov_b32 v23, 0x40000000
    v_cmp_gt_u32 vcc, 32, v{LANE}
    v_cndmask_b32 v{MS}, v23, v22, vcc
    v_lshrrev_b32 v22, 2, v{LANE}
    v_lshlrev_b32 v22, 8, v22
    v_and_b32 v24, 3, v{LANE}
    v_lshl_add_u32 v{FLA}, v24, 4, v22
    s_mov_b32 s{S_RDY}, 0

    s_mov_b32 s{S_XV}, 0
    s_mov_b32 s{S_XV+1}, {28*1024}
    s_mov_b32 s{S_XV+2}, {2*28*1024}
    s_mov_b32 s{S_XV+3}, {3*28*1024}
    """)
    team_mode_issue(A, T0, MXA)
    A("s_waitcnt vmcnt(0) lgkmcnt(0)")
    team_mode(A, name, T0, MXA)
    if prof: A(f"s_memtime s[{S_T0}:{S_T0+1}]\ns_waitcnt lgkmcnt(0)")
    stamp_init(A, prof)
    A.label(f"{name}_vo_loop")
    def wrd(j):
        b = WT + 8 * (j & 1)
        return [f"ds_read_b128 {v(b,4)}, v{WL} offset:{2048*j}", f"ds_read_b128 {v(b+4,4)}, v{WL} offset:{2048*j+1024}"]
    poll_m(A, name, [PR, WT, WT + 8], MP, MP0, MP1, OPT['vs'], OPT['vd'], prof)
    if OPT['vs'] > 1: A('s_waitcnt vmcnt(0)')
    for k in range(7):
        A(f"ds_read_b128 {v(MF+4*k,4)}, v{LR} offset:{1024*k}")
    for x in wrd(0) + wrd(1): A(x)
    A(f"v_mov_b64 {v(UD,2)}, 0\nv_mov_b64 {v(UD+2,2)}, 0")
    def fl_load():
        A(f"""
        s_add_u32 s{S_T}, s{S_RDY}, 2
        s_lshl_b32 s{S_T}, s{S_T}, 8
        buffer_load_dwordx4 {v(FLD,4)}, v{FLA}, s[{S_FL}:{S_FL+3}], s{S_T} offen sc0 sc1
        """)
    def fl_update():
        A(f"""
        v_min_u32 v{FLD}, v{FLD}, v{FLD+1}
        v_min3_u32 v{FLD}, v{FLD}, v{FLD+2}, v{FLD+3}
        v_cmp_ne_u32 vcc, 0, v{FLD}
        s_nop 1
        s_ff0_i32_b64 s{S_T}, vcc
        s_cmp_eq_u32 s{S_T}, -1
        s_cselect_b32 s{S_T}, 64, s{S_T}
        s_lshr_b32 s{S_T}, s{S_T}, 2
        s_add_u32 s{S_RDY}, s{S_RDY}, s{S_T}
        """)
    if OPT['ext']:
        lw = A.uniq(name + "_xw"); lo = A.uniq(name + "_xo"); ln = A.uniq(name + "_xn")
        A(f"""
        s_cmp_lt_u32 s{S_STEP}, s{S_RDY}
        s_cbranch_scc1 {lo}
        {lw}:
        """)
        fl_load()
        A("s_waitcnt vmcnt(0)")
        fl_update()
        A(f"""
        s_add_u32 s{S_SPIN}, s{S_SPIN}, 1
        s_cmp_lt_u32 s{S_SPIN}, {SPIN_MAX}
        s_cbranch_scc0 {name}_end
        s_cmp_lt_u32 s{S_STEP}, s{S_RDY}
        s_cbranch_scc0 {lw}
        {lo}:
        s_cmp_ge_u32 s{S_RDY}, 64
        s_cbranch_scc1 {ln}
        """)
        fl_load()
        A.label(ln)
    mf = []; fill = {}
    def F(i, *ins): fill.setdefault(i, []).extend(ins)
    pos = {}
    for c in range(8):
        d = UD + 4 * (c & 1)
        for k in range(7):
            if (c, k) in ldsg:
                j = ldsg.index((c, k)); b = v(WT + 8 * (j & 1), 8); pos[j] = len(mf)
            else:
                b = Wr(c, k)
            mf.append(f"v_smfmac_f32_16x16x64_bf16 {v(d,4)}, {v(MF+4*k,4)}, {b}, v{IDX}")
    A("s_waitcnt lgkmcnt(10)")
    for k in range(6): F(k, f"s_waitcnt lgkmcnt({9-k})")
    for j in range(12):
        F(pos[j] - 1, f"s_waitcnt lgkmcnt({2 if j < 11 else 0})")
        if j + 2 < 12: F(pos[j], *wrd(j + 2))
    F(0, f"v_mov_b64 {v(UD+4,2)}, 0"); F(1, f"v_mov_b64 {v(UD+6,2)}, 0")
    def epi_u(c):
        d = UD + 4 * (c & 1); hl, t = c >> 1, c & 1
        q = UB + 8 * t + 4 * (hl >> 1) + (hl & 1)
        return [f"v_cvt_pk_bf16_f32 v{q}, v{d}, v{d+1}", f"v_cvt_pk_bf16_f32 v{q+2}, v{d+2}, v{d+3}",
                f"v_mov_b64 {v(d,2)}, 0", f"v_mov_b64 {v(d+2,2)}, 0"]
    for c in range(7):
        b = 7 * (c + 1)
        e = epi_u(c)
        F(b + 3, e[0], e[1]); F(b + 4, e[2], e[3])
    xl = []
    for hl in range(4):
        for t in range(2):
            xl.append(f"buffer_load_dwordx4 {v(XV+16*t+4*hl,4)}, v{XVA}, s[{S_X}:{S_X+3}], s{S_XV+hl} offen offset:{1024*t} sc1")
    pl = [f"buffer_load_dwordx4 {v(PR,4)}, v{PX}, s[{S_P}:{S_P+3}], s{S_POFF} offen sc1",
          f"buffer_load_dwordx4 {v(PR+4,4)}, v{PX}, s[{S_P}:{S_P+3}], s{S_POFF} offen offset:1024 sc1",
          f"buffer_load_dwordx4 {v(PR+8,4)}, v{PM}, s[{S_P}:{S_P+3}], s{S_POFF} offen sc1"]
    if OPT['noxv']: xl = []
    pl0 = [] if (OPT['nopt'] and not OPT['ppt']) else pl
    for i_, x in enumerate(pl0 + xl): F(OPT['xv0'] + OPT['xvs'] * i_, x)
    if OPT['vpt'] or not OPT['nopt']: F(OPT['vpt'] or 36, f"buffer_load_dword v{T0}, v{XT}, s[{S_X}:{S_X+3}], s{S_XV} offen")
    F(2, f"v_mov_b64 {v(OA,2)}, 0", f"v_mov_b64 {v(OA+2,2)}, 0")
    F(3, f"v_mov_b64 {v(OA+4,2)}, 0", f"v_mov_b64 {v(OA+6,2)}, 0")
    stream(A, mf, fill)
    stamp(A, prof, 2)
    e = epi_u(7)
    A("s_nop 7")
    A(e[0]); A(e[1])
    if OPT.get('wst'):
        A("s_waitcnt vmcnt(0)")
        stamp(A, prof, 6)
    if OPT['vps']: A(f"s_sleep {OPT['vps']}")
    pslot = [PR, MF, MF + 12]
    def pissue(i):
        b = pslot[i]
        return [f"buffer_load_dwordx4 {v(b,4)}, v{PX}, s[{S_P}:{S_P+3}], s{S_POFF} offen sc1",
                f"buffer_load_dwordx4 {v(b+4,4)}, v{PX}, s[{S_P}:{S_P+3}], s{S_POFF} offen offset:1024 sc1",
                f"buffer_load_dwordx4 {v(b+8,4)}, v{PM}, s[{S_P}:{S_P+3}], s{S_POFF} offen sc1"]
    def psucc(i):
        stamp(A, prof, 3)
        b = pslot[i]
        for pair in range(2):
            for t in range(2):
                A(f"v_smfmac_f32_16x16x64_bf16 {v(OA+4*t,4)}, {v(b+4*pair,4)}, {v(XV+16*t+8*pair,8)}, v{IDX2}")
        for t in range(2):
            A(f"v_smfmac_f32_16x16x64_bf16 {v(OA+4*t,4)}, {v(b+8,4)}, {v(UB+8*t,8)}, v{IDX2}")
    pchk = (lambda i: [pslot[i], pslot[i] + 4, pslot[i] + 8]) if OPT['chk1'] else (lambda i: range(pslot[i], pslot[i] + 12))
    def pfirst():
        if prof == 4 and OPT['st1'] == 1:
            A("s_waitcnt vmcnt(0)"); stamp(A, prof, 1)
        if prof == 4 and OPT['st1'] == 2:
            A("s_waitcnt vmcnt(3)"); stamp(A, prof, 1)
    if OPT['er'] & 2: poll_er(A, name, pissue, pchk, MP, psucc, pfirst)
    else: poll(A, name, OPT['ps'], pissue, lambda i: range(pslot[i], pslot[i] + 12), MP, psucc, OPT['pd'], A.uniq(name + "_pj"))
    for t in range(2):
        o = OA + 4 * t
        A(f"v_add_f32 v{o}, v{o}, v{o+1}\nv_add_f32 v{o+2}, v{o+2}, v{o+3}")
        A(f"ds_write2_b32 v{OW}, v{o}, v{o+2} offset0:{128*t} offset1:{128*t+32}")
    A("s_waitcnt lgkmcnt(0)\ns_barrier")
    stamp(A, prof, 4)
    R = MP
    for w in range(4):
        A(f"ds_read_b64 {v(R+2*w,2)}, v{OR} offset:{w*OWS}")
    A(f"""
    s_add_u32 s{S_MNEXT}, s{S_MOFF}, {L.MB}
    s_waitcnt lgkmcnt(2)
    v_add_f32 v{R}, v{R}, v{R+2}
    v_add_f32 v{R+1}, v{R+1}, v{R+3}
    s_waitcnt lgkmcnt(0)
    v_add_f32 v{R+4}, v{R+4}, v{R+6}
    v_add_f32 v{R+5}, v{R+5}, v{R+7}
    v_add_f32 v{R}, v{R}, v{R+4}
    v_add_f32 v{R+1}, v{R+1}, v{R+5}
    v_cvt_pk_bf16_f32 v{R}, v{R}, v{R+1}
    v_min_u32 v{R}, -2, v{R}
    """)
    ho = store_handoff(A, name, f"buffer_store_dword v{R}, v{MS}, s[{S_M}:{S_M+3}], s{S_MNEXT} offen")
    stamp(A, prof, 5)
    if OPT['qw'] & 4: A("s_waitcnt vmcnt(0)")
    if prof == 4 and OPT['st1'] == 0: stamp(A, prof, 1)
    stamp_flush(A, prof, 6)
    if OPT['vsl']: A(f"s_sleep {OPT['vsl']}")
    if OPT['ext']:
        lu = A.uniq(name + "_xu")
        A(f"""
        s_cmp_ge_u32 s{S_RDY}, 64
        s_cbranch_scc1 {lu}
        """)
        fl_update()
        A.label(lu)
    A(f"""
    s_mov_b32 s{S_MOFF}, s{S_MNEXT}
    s_add_u32 s{S_POFF}, s{S_POFF}, {L.PB}
    s_add_u32 s{S_XV}, s{S_XV}, {16*28*1024}
    s_add_u32 s{S_XV+1}, s{S_XV+1}, {16*28*1024}
    s_add_u32 s{S_XV+2}, s{S_XV+2}, {16*28*1024}
    s_add_u32 s{S_XV+3}, s{S_XV+3}, {16*28*1024}
    s_add_u32 s{S_STEP}, s{S_STEP}, 1
    s_cmp_lt_u32 s{S_STEP}, 63
    s_cbranch_scc1 {name}_vo_loop
    s_waitcnt vmcnt(0)
    """)
    if prof:
        A(f"s_add_u32 s{S_ROLE}, s{S_ROLE}, 16")
        prof_out(A, name, layer, prof)
    A(f"s_branch {name}_end")
    handoff_tail(A, ho)

def team_code(A, name, prof=False):
    srd(A, S_M, S_WL, S_WL + 1, L.MI, L.MI_SZ)
    srd(A, S_P, S_WL, S_WL + 1, L.PBUF, L.PB_SZ)
    A(f"""
    s_mov_b32 s{S_STEP}, 0
    s_mov_b32 s{S_MOFF}, 0
    s_mov_b32 s{S_POFF}, 0
    s_mov_b32 s{S_SPIN}, 0
    s_cmp_lt_u32 s{S_ROLE}, 16
    s_cbranch_scc0 {name}_vo
    """)
    qk_role(A, name, 0, prof)
    vo_role(A, name, 0, prof)
```

```python
import numpy as np
from layout import *
def bf16(x):
    x = np.ascontiguousarray(x, dtype=np.float32)
    u = x.view(np.uint32)
    r = ((u >> 16) & 1) + 0x7FFF
    return ((u + r) >> 16).astype(np.uint16)
def f32(u):
    return (u.astype(np.uint32) << 16).view(np.float32)
def rb(x): return f32(bf16(x))
def img_B(W):
    K, N = W.shape
    x = W.reshape(K // 32, 4, 8, N // 16, 16)
    return np.ascontiguousarray(x.transpose(3, 0, 1, 4, 2))
def unimg_B(I, K=448, N=448):
    x = I.reshape(N // 16, K // 32, 4, 16, 8)
    return np.ascontiguousarray(x.transpose(1, 2, 4, 0, 3)).reshape(K, N)
def m_image(m):
    out = np.zeros(3584, np.uint16)
    col = np.arange(448)
    for r in range(8):
        byte = 1024 * (col >> 6) + 16 * (2 * r + ((col >> 1) & 1) + 16 * ((col >> 4) & 3)) + 4 * ((col >> 2) & 3) + 2 * (col & 1)
        out[byte // 2] = m[r]
    return out
def m_unimage(img):
    m = np.zeros((8, 448), np.uint16)
    col = np.arange(448)
    for r in range(8):
        byte = 1024 * (col >> 6) + 16 * (2 * r + ((col >> 1) & 1) + 16 * ((col >> 4) & 3)) + 4 * ((col >> 2) & 3) + 2 * (col & 1)
        m[r] = img[byte // 2]
    return m
def xv_image(xvo):
    x = xvo.reshape(16, 4, 8, 28, 16)
    return np.ascontiguousarray(x.transpose(0, 3, 1, 4, 2))
def xv_unimage(I):
    x = I.reshape(16, 28, 4, 16, 8)
    return np.ascontiguousarray(x.transpose(0, 2, 4, 1, 3)).reshape(16, 32, 448)
def p_unbuf(buf):
    P = np.zeros((16, 8, 40), np.uint16)
    for h in range(16):
        for r in range(8):
            for key in range(32):
                g1 = key >> 4; p = (key >> 2) & 3; hf = (key >> 1) & 1; e = key & 1
                byte = 1024 * (h >> 1) + 512 * (h & 1) + 256 * g1 + 128 * hf + 16 * r + 4 * p + 2 * e
                P[h, r, 8 + key] = buf[byte // 2]
            for k in range(8):
                cp = k >> 1; e = k & 1
                byte = 8192 + 512 * (h >> 2) + 256 * ((h >> 1) & 1) + 128 * (cp & 1) + 16 * r + 4 * (2 * (cp >> 1) + (h & 1)) + 2 * e
                P[h, r, k] = buf[byte // 2]
    return P
def u_unimage(I):
    x = f32(I.reshape(4, 28, 2, 4, 16, 8))
    U = np.zeros((16, 8, 448), np.float32)
    for w in range(4):
        for un in range(2):
            for jj in range(8):
                h = 4 * w + 2 * un + (jj >> 2); i = jj & 3
                for gp in range(4):
                    rho = 4 * (gp & 1) + i
                    U[h, rho] += x[w, :, un, gp, :, jj].reshape(448)
    return U
def layernorm(x):
    x = x.astype(np.float32)
    m = x.mean(-1, keepdims=True); v = ((x - m) ** 2).mean(-1, keepdims=True)
    return (x - m) / np.sqrt(v + 1e-5)
def fuse(Wq, Wk, Wv, Wo):
    q = f32(Wq).reshape(448, 16, 256); k = f32(Wk).reshape(448, 16, 256); vv = f32(Wv).reshape(448, 16, 256)
    o = f32(Wo).reshape(16, 256, 448)
    sc = np.float32(np.log2(np.e) / 16)
    Ap = np.stack([(q[:, h] @ k[:, h].T) * sc for h in range(16)])
    VO = np.stack([vv[:, h] @ o[h] for h in range(16)])
    return rb(Ap), rb(VO)
def recur(Ap, VO, xn, m0, nsteps=64):
    m = m0.astype(np.float32); ms = [m]; Ps = []; Us = []
    for s in range(nsteps):
        X = xn[32 * s:32 * s + 32]
        U = np.stack([m @ VO[h] for h in range(16)]); Us.append(U)
        if s == nsteps - 1: break
        keys = np.concatenate([m, X], 0)
        out = np.zeros((8, 448), np.float32); P = []
        for h in range(16):
            t = rb(m @ Ap[h]); sc = t @ keys.T
            p = np.exp2(sc - sc.max(-1, keepdims=True)); p = rb(p / p.sum(-1, keepdims=True)); P.append(p)
            V = np.concatenate([rb(U[h]), rb(X @ VO[h])], 0)
            out += p @ V
        m = rb(out); ms.append(m); Ps.append(np.stack(P))
    return ms, Ps, Us

def xi_image(xn):
    out = np.zeros((64, 2, 14, 4, 16, 8), np.uint16)
    x = xn.reshape(64, 32, 14, 4, 8)
    for mu in range(2):
        for n in range(16):
            out[:, mu, :, :, n, :] = x[:, 8 * (n >> 2) + 4 * mu + (n & 3)]
    return out

TOK = np.array([[8 * (n >> 2) + 4 * nu + (n & 3) for n in range(16)] for nu in range(2)])
def ptx_unimage(I):
    x = I.reshape(16, 2, 4, 16, 8)
    P = np.zeros((16, 32, 32), np.uint16)
    for nu in range(2):
        P[:, TOK[nu], :] = x[:, nu].transpose(0, 2, 1, 3).reshape(16, 16, 32)
    return P
def ptm_unimage(I):
    x = I.reshape(8, 2, 4, 16, 2, 4)
    assert (x[:, :, :2] == x[:, :, 2:]).all()
    P = np.zeros((16, 32, 8), np.uint16)
    for nu in range(2):
        y = x[:, nu, :2]
        y = y.transpose(0, 3, 2, 1, 4).reshape(16, 16, 8)
        P[:, TOK[nu], :] = y
    return P
def ptx_image(P):
    out = np.zeros((16, 2, 4, 16, 8), np.uint16)
    for nu in range(2):
        out[:, nu] = P[:, TOK[nu], :].reshape(16, 16, 4, 8).transpose(0, 2, 1, 3)
    return out
def ptm_image(P):
    out = np.zeros((8, 2, 4, 16, 2, 4), np.uint16)
    for nu in range(2):
        y = P[:, TOK[nu], :].reshape(8, 2, 16, 2, 4).transpose(0, 3, 2, 1, 4)
        out[:, nu, :2] = y; out[:, nu, 2:] = y
    return out
def tok_attn(Ap, X, m):
    keys = np.concatenate([m, X], 0)
    mask = np.arange(40)[None, :] <= (np.arange(32)[:, None] + 8)
    P = []
    for h in range(16):
        t = rb(X @ Ap[h]); sc = np.where(mask, t @ keys.T, -np.inf)
        p = np.exp2(sc - sc.max(-1, keepdims=True)); P.append(p / p.sum(-1, keepdims=True))
    return np.stack(P)
def u_image(U):
    x = np.zeros((4, 28, 2, 4, 16, 8), np.float32)
    for w in range(4):
        for un in range(2):
            for jj in range(8):
                h = 4 * w + 2 * un + (jj >> 2); i = jj & 3
                for gp in range(4):
                    rho = 4 * (gp & 1) + i
                    x[w, :, un, gp, :, jj] = U[h, rho].reshape(28, 16) * (0.75 if gp < 2 else 0.25)
    return bf16(x)

def dft_tables():
    d = np.arange(448)[:, None]; b = np.arange(225)[None, :]
    ang = 2 * np.pi * ((d * b) % 448) / 448
    F = np.concatenate([np.cos(ang), -np.sin(ang[:, 1:224])], 1)
    wc = np.full(225, 2.0); wc[0] = 1; wc[224] = 1
    G = np.concatenate([np.cos(ang) * wc, -2 * np.sin(ang[:, 1:224])], 1).T / 448
    return F.astype(np.float32), G.astype(np.float32)

def wt_image(wr, wi):
    out = np.zeros((225, 4, 4, 16, 8, 2), np.uint16)
    a = bf16(f32(wr) * 2.0**-11); b = bf16(f32(wi) * 2.0**-11)
    w, g, n, j = np.meshgrid(np.arange(4), np.arange(4), np.arange(16), np.arange(8), indexing='ij')
    k = 16 * w + n + 64 * (8 * g + j)
    out[..., 0] = a[k].transpose(4, 0, 1, 2, 3); out[..., 1] = b[k].transpose(4, 0, 1, 2, 3)
    return out

def gi_image(G):
    out = np.zeros((28, 14, 4, 16, 8), np.uint16)
    x = G.reshape(14, 4, 8, 448)
    for T in range(28):
        for m in range(16):
            out[T, :, :, m, :] = x[:, :, :, 32 * (T >> 1) + 8 * (m >> 2) + 4 * (T & 1) + (m & 3)]
    return out
def xi_unimage(I):
    x = I.reshape(64, 2, 14, 4, 16, 8)
    out = np.zeros((64, 32, 14, 4, 8), np.uint16)
    for mu in range(2):
        for n in range(16):
            out[:, 8 * (n >> 2) + 4 * mu + (n & 3)] = x[:, mu, :, :, n, :]
    return out.reshape(2048, 448)

def u2_unimage(I):
    x = f32(I.reshape(4, 28, 4, 16, 8))
    return x.transpose(0, 2, 4, 1, 3).reshape(16, 8, 448)
def ptm2_unimage(I):
    x = I.reshape(4, 2, 4, 16, 8)
    P = np.zeros((16, 32, 8), np.uint16)
    for nu in range(2):
        P[:, TOK[nu], :] = x[:, nu].reshape(16, 16, 8)
    return P
```

```python
import sys, os, time, numpy as np
sys.path.insert(0, "../gen")
from hiph import Buf, Module, sync, Timer
from build import *
import layout as L
from model import *
np.set_printoptions(linewidth=200, suppress=True)
def inputs(seed=1):
    rng = np.random.default_rng(seed)
    def rn(*s): return rng.standard_normal(s, dtype=np.float32)
    d = {}
    d['x'] = bf16(rb(rn(2048,448))*0.05); d['m0'] = bf16(rb(rn(8,448))*0.2)
    d['Wq'] = bf16(rb(rb(rn(448,16,256))*1.6)*448**-0.5); d['Wk'] = bf16(rb(rb(rn(448,16,256))*1.6)*448**-0.5)
    d['Wv'] = bf16(rb(rb(rn(448,16,256))*0.2)*448**-0.5); d['Wo'] = bf16(rb(rb(rn(16,256,448))*0.2)*4096**-0.5)
    d['wr'] = bf16(rb(rb(rn(2048,225))*0.4)*0.02); d['wi'] = bf16(rb(rb(rn(2048,225))*0.4)*0.02)
    return d
def timeit(m, name, grid, ptrs, lds, n=5, pre=None):
    ts = []
    for it in range(n):
        if pre: pre()
        sync()
        t = Timer(); t.start()
        m.launch(name, (grid + (it & 1) * 3, 1, 1), (256, 1, 1), ptrs, lds=lds)
        ts.append(t.stop())
    return np.array(ts).round(1)
def relerr(a, b): return np.abs(a - b).max() / np.abs(b).max()
def bench(m, name, grid, ptrs, lds, reps=20, block=256):
    out = []
    for k in (1, 1 + reps):
        best = 1e9
        for it in range(4):
            sync()
            t = Timer(); t.start()
            for _ in range(k): m.launch(name, (grid, 1, 1), (block, 1, 1), ptrs, lds=lds)
            best = min(best, t.stop())
        out.append(best)
    return round((out[1] - out[0]) / reps, 2)
```

```python
from common import *
import main as Mn, kr, kf, kp, kb
import sys
for kv in sys.argv[1:]:
    if "=" in kv:
        k_, v_ = kv.split("=")
        if k_ in kf.OPT: kf.OPT[k_] = int(v_, 0)
        elif k_ in kr.OPT: kr.OPT[k_] = int(v_, 0)
        elif k_ in kp.POPT: kp.POPT[k_] = v_.replace("_", " ") if isinstance(kp.POPT[k_], str) else int(v_, 0)
        elif k_ in getattr(kb, "BOPT", {}): kb.BOPT[k_] = v_.replace("_", " ") if isinstance(kb.BOPT[k_], str) else int(v_, 0)
        else: raise SystemExit("unknown option " + k_)
import asm
asm.STAMPS[0] = True
K = Mn.kernels(); LAUNCH = Mn.LAUNCH
TR = L.WS_END + 8192
names = [l[0] for l in LAUNCH]
def wrap(name, lines):
    pre = f"""
    s_memrealtime s[96:97]
    s_mov_b32 s100, s0
    s_mov_b32 s101, s1
    s_mov_b32 s99, s2
    v_lshrrev_b32 v1, 6, v0
    s_nop 1
    v_readfirstlane_b32 s98, v1
    s_waitcnt lgkmcnt(0)
    """.strip().split("\n")
    if not name.startswith("ka"): pre = pre + [f"s_mov_b32 s{64+i}, 0" for i in range(24)]
    else: pre = pre
    return pre, [x.replace("s_endpgm", f"s_branch tl_end") if x.strip() == "s_endpgm" else x for x in lines]
K2 = []
for (name, lines, vg, ag) in K:
    pre, body = wrap(name, lines)
    K2.append((name, pre + body, vg, ag))
tail = f"""
tl_end:
s_memrealtime s[94:95]
s_load_dwordx2 s[92:93], s[100:101], 96
s_load_dword s91, s[100:101], 48
s_waitcnt lgkmcnt(0)
s_add_u32 s92, s92, {TR}
s_addc_u32 s93, s93, 0
s_lshl_b32 s91, s91, 9
s_add_u32 s91, s91, s99
s_lshl_b32 s91, s91, 2
s_add_u32 s91, s91, s98
s_lshl_b32 s91, s91, 6
s_mov_b64 exec, 1
v_mov_b32 v1, s91
v_mov_b32 v2, s96
v_mov_b32 v3, s94
global_store_dwordx2 v1, v[2:3], s[92:93]
""".strip().split("\n")
for i in range(6):
    tail += [f"v_mov_b32 v2, s{64+4*i}", f"v_mov_b32 v3, s{66+4*i}", f"global_store_dwordx2 v1, v[2:3], s[92:93] offset:{8+8*i}"]
tail += ["s_waitcnt vmcnt(0)", "s_endpgm"]
n, l, vg, ag = K2[-1]; K2[-1] = (n, l + tail, vg, ag)
build(K2, "tl.s"); assemble("tl.s", "tl.co")
if "gen" in sys.argv: sys.exit()
d = inputs()
B = {k_: Buf.of(v_) for k_, v_ in d.items()}
ws = Buf(TR + 16 * 512 * 4 * 64 + 4096, 0xAB)
dbg = Buf(4096 * 16, 0); out = Buf(2048 * 448 * 2, 0)
m = Module("tl.co")
big = Buf(512 << 20, 0)
res = []
for it in range(8):
    if "flush" in sys.argv: big.memset(it + 1)
    sync()
    t = Timer(); t.start()
    for i, (k, g, lds) in enumerate(LAUNCH):
        ptrs = [B['x'].ptr, B['m0'].ptr, B['Wq'].ptr, B['Wk'].ptr, B['Wv'].ptr, B['Wo'].ptr, i, 0, B['wr'].ptr, B['wi'].ptr, out.ptr, dbg.ptr + 4096 * i, ws.ptr]
        m.launch(k, (g, 1, 1), (256, 1, 1), ptrs, lds=lds)
    ev = t.stop()
    tr = ws.get(np.uint32, 16 * 512 * 4 * 16, TR).reshape(16, 512, 4, 16).astype(np.int64)
    t0 = tr[0, :LAUNCH[0][1], :, 0].min()
    row = []
    for i, (k, g, lds) in enumerate(LAUNCH):
        s = (tr[i, :g, :, 0] - t0) / 100.0; e = (tr[i, :g, :, 1] - t0) / 100.0
        row.append((s.min(), s.max(), e.min(), e.max()))
    res.append((ev, row)); last = tr
for ev, row in res[2:]:
    print("event %.1f  span %.1f" % (ev, row[-1][3]))
row = np.array([r for _, r in res[2:]])
med = np.median(row, 0)
prev = 0
for i, (k, g, lds) in enumerate(LAUNCH):
    print(f"{k[:14]:14s} first start {med[i,0]:7.2f} last start {med[i,1]:7.2f} first end {med[i,2]:7.2f} last end {med[i,3]:7.2f}  dur {med[i,3]-med[i,0]:6.2f} gap {med[i,0]-prev:5.2f}")
    prev = med[i, 3]

t0 = last[0, :256, :, 0].min()
for i, (k, g, lds) in enumerate(LAUNCH):
    if k.startswith("ka"): continue
    x = last[i, :g, :, 2:14]
    if (x == 0).all(): continue
    b = last[i, :g, :, 0].min()
    print(k[:14], "stamps rel. to first start (min / mean / max):")
    for j in range(12):
        y = x[:, :, j]; y = y[y != 0]
        if len(y): print(f"   {j}: {(y.min()-b)/100:6.2f} {(y.mean()-b)/100:6.2f} {(y.max()-b)/100:6.2f}")
    s_ = last[i, :g, :, 0]; e_ = last[i, :g, :, 1]
    print(f"   start {(s_.min()-b)/100:6.2f} {(s_.mean()-b)/100:6.2f} {(s_.max()-b)/100:6.2f}   end {(e_.min()-b)/100:6.2f} {(e_.mean()-b)/100:6.2f} {(e_.max()-b)/100:6.2f}")
    if i == 0:
        print("   end by wg%8", [round((e_[j::8].mean()-b)/100, 2) for j in range(8)], "wg<64", (e_[:64].mean()-b)/100, "wg>=72", (e_[72:].mean()-b)/100)
```
